```python
import torch

def _softmax(x, axis=-1):
    return torch.softmax(x, dim=axis)

def _gelu(x):
    return torch.nn.functional.gelu(x, approximate='tanh')

def _silu(x):
    return torch.nn.functional.silu(x)

def _sigmoid(x):
    return torch.sigmoid(x)

def _layernorm(x, axis=-1, eps=1e-05):
    m = x.mean(dim=axis, keepdim=True)
    v = x.var(dim=axis, keepdim=True, unbiased=False)
    return (x - m) / torch.sqrt(v + eps)

def _scatter_add(tgt, idx, src, axis=0):
    return tgt.clone().index_add_(axis, idx, src)

def _segment_sum(src, seg, n):
    out = torch.zeros((n,) + src.shape[1:], dtype=src.dtype)
    return out.index_add_(0, seg, src)

def _pad(x, pw):
    flat = tuple((v for pair in reversed(pw) for v in pair))
    return torch.nn.functional.pad(x, flat)
kernel_name = 'gated_mix__memory_aug_recurrent_mem_tr__glu_gated_swiglu__prompt'

def setup_inputs():

    _w = lambda a: (lambda t: t.to(torch.bfloat16) if t.is_floating_point() else t)(torch.as_tensor(a))

    def _A_setup():
        B, S, Dm = (1, 2048, 512)
        H, Dh = (32, 128)
        M, seg = (8, 32)
        seg = min(seg, S)
        S = S // seg * seg
        return {'x': _w((lambda *s: torch.randn(*s, dtype=torch.bfloat16) * 0.05)(B, S, Dm)), 'mem0': _w((lambda *s: torch.randn(*s, dtype=torch.bfloat16) * 0.4)(B, M, Dm)), 'Wq': _w((lambda *s: torch.randn(*s, dtype=torch.bfloat16) * 6.4)(Dm, H, Dh) * Dm ** (-0.5)), 'Wk': _w((lambda *s: torch.randn(*s, dtype=torch.bfloat16) * 6.4)(Dm, H, Dh) * Dm ** (-0.5)), 'Wv': _w((lambda *s: torch.randn(*s, dtype=torch.bfloat16) * 0.4)(Dm, H, Dh) * Dm ** (-0.5)), 'Wo': _w((lambda *s: torch.randn(*s, dtype=torch.bfloat16) * 0.4)(H, Dh, Dm) * (H * Dh) ** (-0.5)), 'seg_len': seg}
    _A_in = _A_setup()

    def _B_setup():
        B, S, D, F = (1, 2048, 512, 1792)
        return {'x': _w((lambda *s: torch.randn(*s, dtype=torch.bfloat16) * 0.05)(B, S, D)), 'w1': _w((lambda *s: torch.randn(*s, dtype=torch.bfloat16) * 0.8)(D, F) * (2.0 / D) ** 0.5), 'w3': _w((lambda *s: torch.randn(*s, dtype=torch.bfloat16) * 0.8)(D, F) * (2.0 / D) ** 0.5), 'w2': _w((lambda *s: torch.randn(*s, dtype=torch.bfloat16) * 0.8)(F, D) * (2.0 / F) ** 0.5)}
    _B_in = _B_setup()
    return {'A_x': _A_in['x'], 'A_mem0': _A_in['mem0'], 'A_Wq': _A_in['Wq'], 'A_Wk': _A_in['Wk'], 'A_Wv': _A_in['Wv'], 'A_Wo': _A_in['Wo'], 'A_seg_len': _A_in['seg_len'], 'B_x': _B_in['x'], 'B_w1': _B_in['w1'], 'B_w3': _B_in['w3'], 'B_w2': _B_in['w2'], 'gate_w': _w((lambda *s: torch.randn(*s, dtype=torch.bfloat16) * 0.05)(512) * 16.0)}

def reference(A_x, A_mem0, A_Wq, A_Wk, A_Wv, A_Wo, A_seg_len, B_x, B_w1, B_w3, B_w2, gate_w):

    def _A_ref(x, mem0, Wq, Wk, Wv, Wo, seg_len):
        B, S, Dm = x.shape
        H, Dh = (Wq.shape[1], Wq.shape[2])
        M = mem0.shape[1]
        scale = Dh ** (-0.5)
        n_seg = S // seg_len
        L = M + seg_len
        idx = torch.arange(L)
        mask = (idx[:, None] < M) | (idx[:, None] >= idx[None, :])
        mem = mem0
        outs = []
        for s in range(n_seg):
            xs = x[:, s * seg_len:(s + 1) * seg_len, :].clone()
            h = torch.concatenate([mem, xs], axis=1)
            q = torch.einsum('btd,dhe->bhte', h, Wq)
            k = torch.einsum('btd,dhe->bhte', h, Wk)
            v = torch.einsum('btd,dhe->bhte', h, Wv)
            scores = torch.einsum('bhqe,bhke->bhqk', q, k) * scale
            scores = torch.where(mask[None, None], scores, -1000000000.0)
            p = _softmax(scores, axis=-1)
            o = torch.einsum('bhqk,bhke->bhqe', p, v)
            o = torch.einsum('bhte,hed->btd', o, Wo)
            mem = o[:, :M, :].clone()
            outs.append(o[:, M:, :])
        return torch.concatenate(outs, axis=1)

    def _B_ref(x, w1, w3, w2):
        gate = torch.einsum('bsd,df->bsf', x, w1)
        up = torch.einsum('bsd,df->bsf', x, w3)
        h = _silu(gate) * up
        out = torch.einsum('bsf,fd->bsd', h, w2)
        return out
    x = A_x
    g = _sigmoid((x * gate_w).sum(-1, keepdims=True))
    a = _A_ref(x, A_mem0, A_Wq, A_Wk, A_Wv, A_Wo, A_seg_len)
    b = _B_ref(x, B_w1, B_w3, B_w2)
    return g * a + (1 - g) * b
```

```python
import re

REG_RE = re.compile(r'^(v|a|s)(\d+)$')
RNG_RE = re.compile(r'^(v|a|s)\[(\d+):(\d+)\]$')

def parse_reg(tok):
    tok = tok.strip()
    if tok.startswith('-'):
        tok = tok[1:]
    if tok.startswith('abs(') or tok.startswith('|'):
        tok = tok.strip('|').replace('abs(', '').rstrip(')')
    m = REG_RE.match(tok)
    if m:
        return {(m.group(1), int(m.group(2)))}
    m = RNG_RE.match(tok)
    if m:
        return {(m.group(1), i) for i in range(int(m.group(2)), int(m.group(3)) + 1)}
    if tok == 'vcc':
        return {('s', 106), ('s', 107)}
    if tok == 'vcc_lo':
        return {('s', 106)}
    if tok == 'vcc_hi':
        return {('s', 107)}
    if tok == 'exec':
        return {('s', 126), ('s', 127)}
    if tok == 'm0':
        return {('s', 124)}
    return set()

def split_ops(s):
    ops = []
    depth = 0
    cur = ''
    for ch in s:
        if ch == '[' or ch == '(':
            depth += 1
        if ch == ']' or ch == ')':
            depth -= 1
        if ch == ',' and depth == 0:
            ops.append(cur.strip()); cur = ''
        else:
            cur += ch
    if cur.strip():
        ops.append(cur.strip())
    return ops

TRANS = ('v_exp_f32', 'v_log_f32', 'v_rcp_f32', 'v_rsq_f32', 'v_sqrt_f32', 'v_sin_f32', 'v_cos_f32', 'v_rcp_iflag_f32')

class Ins:
    __slots__ = ('text', 'op', 'kind', 'vdst', 'vsrc', 'sdst', 'ssrc', 'A', 'B', 'C', 'idx', 'passes', 'label', 'target',
                 'dpp', 'trans', 'perm', 'rdlane', 'storedata', 'wide', 'ldsdma', 'nops', 'comment', 'valu', 'mask')
    def __init__(self, text):
        self.text = text
        self.label = None; self.target = None
        self.vdst = set(); self.vsrc = set(); self.sdst = set(); self.ssrc = set()
        self.A = set(); self.B = set(); self.C = set(); self.idx = set()
        self.passes = 0; self.dpp = False; self.trans = False; self.perm = False; self.rdlane = False
        self.storedata = set(); self.wide = False; self.ldsdma = False; self.nops = 1; self.valu = False
        self.kind = 'other'; self.op = ''; self.mask = set()
        t = text.split(';')[0].strip()
        if not t:
            self.kind = 'empty'; self.nops = 0; return
        if t.endswith(':'):
            self.kind = 'label'; self.label = t[:-1]; self.nops = 0; return
        if t.startswith('.'):
            self.kind = 'directive'; self.nops = 0; return
        parts = t.split(None, 1)
        op = parts[0]; self.op = op
        rest = parts[1] if len(parts) > 1 else ''
        ops = split_ops(rest)
        mods = ''
        if ops:
            last = ops[-1].split()
            if len(last) > 1:
                ops[-1] = last[0]; mods = ' '.join(last[1:])
        isv = lambda r: r[0] in ('v', 'a')
        def addsrc(o, tgt=None):
            for r in parse_reg(o):
                if isv(r):
                    self.vsrc.add(r)
                    if tgt is not None: tgt.add(r)
                else:
                    self.ssrc.add(r)
        def adddst(o):
            for r in parse_reg(o):
                if isv(r): self.vdst.add(r)
                else: self.sdst.add(r)
        if op == 's_nop':
            self.kind = 'nop'; self.nops = int(ops[0], 0) + 1; return
        if op.startswith('v_mfma') or op.startswith('v_smfmac'):
            self.kind = 'mfma'
            self.passes = 8 if '32x32' in op else 4
            adddst(ops[0]); addsrc(ops[1], self.A); addsrc(ops[2], self.B)
            if op.startswith('v_smfmac'):
                addsrc(ops[0], self.C); addsrc(ops[3], self.idx)
            else:
                addsrc(ops[3], self.C)
            return
        if op.startswith('ds_'):
            self.kind = 'ds'
            if op.startswith('ds_read') or op.startswith('ds_bpermute') or op.startswith('ds_swizzle'):
                adddst(ops[0])
                for o in ops[1:]: addsrc(o)
            else:
                for o in ops: addsrc(o)
            return
        if op.startswith('buffer_') or op.startswith('global_'):
            self.kind = 'vmem'
            lds = (' lds' in (' ' + mods)) or op.startswith('global_load_lds')
            if op in ('buffer_wbl2', 'buffer_inv'):
                return
            if lds:
                self.ldsdma = True
                for o in ops: addsrc(o)
                self.ssrc.add(('s', 124))
            elif 'load' in op:
                adddst(ops[0])
                for o in ops[1:]: addsrc(o)
            elif 'store' in op:
                for o in ops: addsrc(o)
                d = ops[0] if op.startswith('buffer_') else ops[1]
                self.storedata = parse_reg(d)
                self.wide = ('x4' in op or 'x3' in op)
            elif 'atomic' in op:
                if 'sc0' in mods.split():
                    adddst(ops[0])
                for o in ops: addsrc(o)
            return
        if op.startswith('s_'):
            self.kind = 'salu'
            if op.startswith('s_cbranch') or op == 's_branch':
                self.kind = 'branch'; self.target = ops[0]; return
            if op in ('s_endpgm',):
                self.kind = 'end'; return
            if op in ('s_waitcnt', 's_barrier', 's_sleep', 's_setprio', 's_cmp_eq_u32', 's_cmp_lg_u32', 's_cmp_lt_u32', 's_cmp_le_u32',
                      's_cmp_gt_u32', 's_cmp_ge_u32', 's_cmp_eq_i32', 's_cmp_lt_i32', 's_cmp_gt_i32', 's_cmp_ge_i32', 's_cmp_le_i32', 's_cmp_lg_i32',
                      's_cmp_eq_u64', 's_cmp_lg_u64', 's_bitcmp1_b32', 's_bitcmp0_b32'):
                for o in ops: addsrc(o)
                return
            if op.startswith('s_load') or op.startswith('s_memtime') or op.startswith('s_memrealtime') or op.startswith('s_buffer_load'):
                self.kind = 'smem'
                adddst(ops[0])
                for o in ops[1:]: addsrc(o)
                return
            if ops: adddst(ops[0])
            for o in ops[1:]: addsrc(o)
            if 'saveexec' in op:
                self.sdst |= {('s', 126), ('s', 127)}
            return
        if op.startswith('v_'):
            self.kind = 'valu'; self.valu = True
            base = op.replace('_e32', '').replace('_e64', '').replace('_dpp', '')
            self.trans = base in TRANS
            self.dpp = op.endswith('_dpp') or 'row_' in mods or 'quad_perm' in mods
            if base.startswith('v_permlane'):
                self.perm = True
                adddst(ops[0]); adddst(ops[1]); addsrc(ops[0]); addsrc(ops[1]); return
            if base in ('v_readfirstlane_b32', 'v_readlane_b32'):
                self.rdlane = True
                adddst(ops[0])
                for o in ops[1:]: addsrc(o)
                return
            if base.startswith('v_cmp'):
                adddst(ops[0])
                for o in ops[1:]: addsrc(o)
                if base.startswith('v_cmpx'):
                    self.sdst |= {('s', 126), ('s', 127)}
                return
            if base in ('v_add_co_u32', 'v_sub_co_u32', 'v_subrev_co_u32', 'v_addc_co_u32', 'v_subb_co_u32'):
                adddst(ops[0]); adddst(ops[1])
                for o in ops[2:]: addsrc(o)
                return
            if base == 'v_accvgpr_write_b32' or base == 'v_accvgpr_read_b32':
                adddst(ops[0]); addsrc(ops[1]); return
            adddst(ops[0])
            for o in ops[1:]: addsrc(o)
            if base in ('v_fmac_f32', 'v_pk_fmac_f16', 'v_mac_f32', 'v_dot2c_f32_bf16') or self.dpp or base.endswith('_d16_hi'):
                addsrc(ops[0])
            if base == 'v_cndmask_b32':
                if len(ops) >= 4:
                    self.mask = parse_reg(ops[3])
                else:
                    self.mask = {('s', 106), ('s', 107)}
                    self.ssrc |= self.mask
            return
        raise ValueError('cannot parse: ' + text)

XDL_VALU = {2: 5, 4: 8, 8: 12, 16: 20}
XDL_AB = {2: 5, 4: 8, 8: 12, 16: 20}
XDL_COVL = {2: 4, 4: 6, 8: 10, 16: 18}
XDL_WARC = {2: 1, 4: 3, 8: 7, 16: 15}

def need(prod, cons):
    n = 0
    if prod.kind == 'valu':
        if cons.kind == 'mfma' and prod.vdst & cons.vsrc: n = max(n, 2)
        if cons.kind == 'valu':
            if cons.perm and prod.vdst & cons.vsrc: n = max(n, 2)
            if cons.dpp and prod.vdst & cons.vsrc: n = max(n, 2)
            if cons.rdlane and prod.vdst & cons.vsrc: n = max(n, 1)
            if prod.trans and not cons.trans and prod.vdst & (cons.vsrc): n = max(n, 1)
            if prod.trans and cons.trans and prod.vdst & cons.vsrc: n = max(n, 1)
            if prod.sdst & cons.ssrc: n = max(n, 2)
            if cons.rdlane and prod.sdst & cons.ssrc: n = max(n, 4)
            if (prod.sdst & {('s', 126), ('s', 127)}):
                if cons.dpp: n = max(n, 5)
                if cons.rdlane or cons.perm: n = max(n, 4)
        if cons.kind == 'mfma' and (prod.sdst & {('s', 126), ('s', 127)}): n = max(n, 4)
        if cons.kind == 'vmem' and prod.sdst & cons.ssrc: n = max(n, 5)
        if cons.kind in ('salu', 'branch') and prod.sdst & (cons.ssrc): n = max(n, 0)
        if prod.trans and cons.kind in ('vmem', 'ds') and prod.vdst & cons.vsrc: n = max(n, 1)
    if prod.kind == 'mfma':
        D = prod.vdst; P = prod.passes
        if cons.kind == 'mfma':
            if D & cons.C:
                if cons.C == D and cons.passes == P:
                    n = max(n, 0)
                else:
                    n = max(n, XDL_COVL[P])
            if D & (cons.A | cons.B | cons.idx): n = max(n, XDL_AB[P])
            if (D & cons.vdst) and not (D & cons.C):
                n = max(n, XDL_COVL[P])
        if cons.kind == 'valu':
            if D & (cons.vsrc | cons.vdst): n = max(n, XDL_VALU[P])
            if prod.C & cons.vdst: n = max(n, XDL_WARC[P])
        if cons.kind in ('vmem', 'ds'):
            if D & (cons.vsrc | cons.vdst): n = max(n, XDL_VALU[P])
    if prod.kind == 'salu':
        if ('s', 124) in prod.sdst and cons.ldsdma: n = max(n, 1)
        if (prod.sdst & {('s', 126), ('s', 127)}) and cons.kind == 'valu' and (cons.dpp): n = max(n, 0)
    if prod.kind == 'vmem' and prod.storedata and prod.wide:
        if cons.kind == 'valu' and (prod.storedata & cons.vdst): n = max(n, 2)
        if cons.kind in ('ds', 'vmem', 'mfma') and (prod.storedata & cons.vdst): n = max(n, 1)
    return n

WINDOW = 22
MFMA_TIMED = True

class Asm:
    def __init__(self):
        self.lines = []
    def __call__(self, text):
        for ln in text.split('\n'):
            if ln.strip() == '':
                continue
            self.lines.append(ln.rstrip())
    def label(self, name):
        self.lines.append(name + ':')
    def comment(self, c):
        self.lines.append('    ; ' + c)
    def finalize(self, verbose=False):
        ins = [Ins(l) for l in self.lines]
        changed = True
        total = 0
        it = 0
        while changed:
            changed = False
            it += 1
            labels = {x.label: i for i, x in enumerate(ins) if x.kind == 'label'}
            brsrc = {}
            for i, x in enumerate(ins):
                if x.kind == 'branch' and x.target in labels:
                    brsrc.setdefault(labels[x.target], []).append(i)
            inserts = {}
            for i, c in enumerate(ins):
                if c.kind not in ('valu', 'mfma', 'vmem', 'ds', 'salu', 'branch'):
                    continue
                if c.kind in ('salu', 'branch') :
                    continue
                worst = 0
                stack = [(i - 1, ())]
                seen = set()
                while stack:
                    j, path = stack.pop()
                    if j < 0:
                        continue
                    dist = sum(x.nops for x in path)
                    if dist >= WINDOW:
                        continue
                    key = (j, dist, sum(1 for x in path if x.kind == 'mfma'))
                    if key in seen:
                        continue
                    seen.add(key)
                    p = ins[j]
                    if p.kind == 'label':
                        for b in brsrc.get(j, []):
                            stack.append((b, path))
                        k = j - 1
                        while k >= 0 and ins[k].kind in ('empty', 'directive', 'label'):
                            if ins[k].kind == 'label':
                                for b in brsrc.get(k, []):
                                    stack.append((b, path))
                            k -= 1
                        if k >= 0 and not (ins[k].kind == 'end' or (ins[k].kind == 'branch' and ins[k].op == 's_branch')):
                            stack.append((k, path))
                        continue
                    if p.kind in ('empty', 'directive'):
                        stack.append((j - 1, path)); continue
                    r = need(p, c)
                    if r > 0:
                        t = 0
                        lastm = 0 if p.kind == 'mfma' else None
                        lastp = p.passes if p.kind == 'mfma' else 0
                        prevn = 1
                        for x in path + (c,):
                            t = t + prevn
                            if x.kind == 'mfma':
                                if lastm is not None and MFMA_TIMED:
                                    t = max(t, lastm + lastp)
                                lastm = t; lastp = x.passes
                            prevn = x.nops
                        have = t - 1
                        if r > have:
                            worst = max(worst, r - have)
                    if p.kind == 'end':
                        continue
                    stack.append((j - 1, (p,) + path))
                if worst > 0:
                    inserts[i] = worst
            if inserts:
                changed = True
                new = []
                for i, x in enumerate(ins):
                    if i in inserts:
                        n = inserts[i]; total += n
                        while n > 0:
                            k = min(n, 16)
                            new.append(Ins('    s_nop %d' % (k - 1)))
                            n -= k
                    new.append(x)
                ins = new
            if it > 20:
                raise RuntimeError('hazard pass did not converge')
        if verbose:
            print('inserted wait states:', total)
        return '\n'.join(x.text for x in ins) + '\n'

def vr(a, n=1):
    return 'v%d' % a if n == 1 else 'v[%d:%d]' % (a, a + n - 1)
def ar(a, n=1):
    return 'a%d' % a if n == 1 else 'a[%d:%d]' % (a, a + n - 1)
def sr(a, n=1):
    return 's%d' % a if n == 1 else 's[%d:%d]' % (a, a + n - 1)
```

```python
from asmlib import *
from layout import *
import struct
def f2u(x): return struct.unpack('<I', struct.pack('<f', x))[0]
SOFT_C = (128 ** -0.5) * 1.4426950408889634

S_W = 4
SRD_WS = 8
S_U, S_S, S_HH = 5, 6, 7
S_QO, S_KO, S_VO, S_KMO, S_VMO, S_OO = 12, 13, 14, 15, 16, 17
S_T0, S_T1 = 18, 19
S_CC = 20
WS = f's[{SRD_WS}:{SRD_WS+3}]'
V_LIN16, V_STK, V_KM, V_L = 0, 1, 2, 3
V_MASK = 16
B_Q, B_K, B_V, B_KM, B_VM = 32, 64, 96, 128, 160
SX, SM, PX, PM, T = 176, 192, 208, 216, 220
OA = 224 - 0
O0 = 32

def emit_setup(a):
    L = V_L; t0, t1 = 4, 5
    a(f'''
    v_and_b32 {vr(L)}, 63, v0
    v_lshlrev_b32 {vr(V_LIN16)}, 4, {vr(L)}
    v_and_b32 {vr(t0)}, 31, {vr(L)}
    v_bfe_u32 {vr(t1)}, {vr(L)}, 4, 1
    v_lshlrev_b32 {vr(t1)}, 3, {vr(t1)}
    v_xor_b32 {vr(t0)}, {vr(t0)}, {vr(t1)}
    v_lshlrev_b32 {vr(t0)}, 4, {vr(t0)}
    v_lshrrev_b32 {vr(t1)}, 5, {vr(L)}
    v_lshlrev_b32 {vr(t1)}, 9, {vr(t1)}
    v_add_u32 {vr(V_STK)}, {vr(t0)}, {vr(t1)}
    v_lshrrev_b32 {vr(t0)}, 5, {vr(L)}
    v_lshlrev_b32 {vr(t0)}, 7, {vr(t0)}
    v_and_b32 {vr(t1)}, 7, {vr(L)}
    v_lshlrev_b32 {vr(t1)}, 4, {vr(t1)}
    v_add_u32 {vr(V_KM)}, {vr(t0)}, {vr(t1)}
    v_and_b32 {vr(t0)}, 31, {vr(L)}
    v_lshrrev_b32 {vr(t1)}, 5, {vr(L)}
    v_lshlrev_b32 {vr(t1)}, 2, {vr(t1)}
    v_sub_u32 {vr(t0)}, {vr(t0)}, {vr(t1)}
    v_mov_b32 {vr(t1)}, {f2u(-1e30):#x}
''')
    for r in range(16):
        k = 8 * (r >> 2) + (r & 3)
        a(f'    v_cmp_le_i32 vcc, {k}, {vr(t0)}')
        a(f'    v_cndmask_b32 {vr(V_MASK + r)}, {vr(t1)}, 0, vcc' if False else f'    v_cndmask_b32_e64 {vr(V_MASK + r)}, {vr(t1)}, 0, vcc')
    a(f'    s_mov_b32 s{S_CC}, {f2u(SOFT_C):#x}\n    s_mov_b32 s{S_CC+1}, {f2u(SOFT_C):#x}')

def emit_offsets(a):
    a(f'''
    s_lshl_b32 s{S_T0}, s{S_S}, 5
    s_add_u32 s{S_T0}, s{S_T0}, s{S_HH}          ; s*32+h
    s_lshl_b32 s{S_T1}, s{S_T0}, 13
    s_add_u32 s{S_QO}, s{S_T1}, {WS_Q}
    s_add_u32 s{S_KO}, s{S_T1}, {WS_K}
    s_add_u32 s{S_VO}, s{S_T1}, {WS_V}
    s_add_u32 s{S_OO}, s{S_T1}, {WS_O}
    s_lshl_b32 s{S_T1}, s{S_T0}, 11
    s_add_u32 s{S_KMO}, s{S_T1}, {WS_KM}
    s_lshl_b32 s{S_T1}, s{S_T0}, 12
    s_add_u32 s{S_VMO}, s{S_T1}, {WS_VM}
''')

def ld(a, dst, vaddr, so, off, fl):
    if off >= 4096:
        a(f'    s_add_u32 s{S_T0}, s{so}, {off & ~4095}')
        a(f'    buffer_load_dwordx4 {vr(dst,4)}, {vr(vaddr)}, {WS}, s{S_T0} offen offset:{off & 4095} {fl}')
    else:
        a(f'    buffer_load_dwordx4 {vr(dst,4)}, {vr(vaddr)}, {WS}, s{so} offen offset:{off} {fl}')

def emit_loads_x(a, fl=''):
    for j in range(8): ld(a, B_Q + 4 * j, V_STK, S_QO, j * 1024, fl)
    for j in range(8): ld(a, B_K + 4 * j, V_STK, S_KO, j * 1024, fl)
    for j in range(8): ld(a, B_V + 4 * j, V_LIN16, S_VO, j * 1024, fl)
def emit_loads_m(a, fl=''):
    for j in range(8): ld(a, B_KM + 4 * j, V_KM, S_KMO, j * 256, fl)
    for j in range(4): ld(a, B_VM + 4 * j, V_LIN16, S_VMO, j * 1024, fl)

def emit_compute(a, ST=''):
    for j in range(8):
        a(f'    s_waitcnt vmcnt({36 - 9 - j})')
        C = vr(V_MASK, 16) if j == 0 else vr(SX, 16)
        a(f'    v_mfma_f32_32x32x16_bf16 {vr(SX,16)}, {vr(B_K + 4*j,4)}, {vr(B_Q + 4*j,4)}, {C}')
    for j in range(8):
        a(f'    s_waitcnt vmcnt({36 - 25 - j})')
        C = '0' if j == 0 else vr(SM, 16)
        a(f'    v_mfma_f32_32x32x16_bf16 {vr(SM,16)}, {vr(B_KM + 4*j,4)}, {vr(B_Q + 4*j,4)}, {C}')
    M, T1, NEG = T, T + 1, T + 2
    a(f'    v_max3_f32 {vr(M)}, {vr(SX)}, {vr(SX+1)}, {vr(SX+2)}')
    for r in range(3, 15, 2):
        a(f'    v_max3_f32 {vr(M)}, {vr(M)}, {vr(SX+r)}, {vr(SX+r+1)}')
    a(f'    v_max_f32 {vr(M)}, {vr(M)}, {vr(SX+15)}')
    a(f'    v_max3_f32 {vr(M)}, {vr(M)}, {vr(SM)}, {vr(SM+1)}')
    a(f'    v_max3_f32 {vr(M)}, {vr(M)}, {vr(SM+2)}, {vr(SM+3)}')
    a(f'''
    v_mov_b32 {vr(T1)}, {vr(M)}
    v_permlane32_swap_b32 {vr(M)}, {vr(T1)}
    v_max_f32 {vr(M)}, {vr(M)}, {vr(T1)}
    v_mul_f32 {vr(NEG)}, s{S_CC}, {vr(M)}
''')
    regs = [SX + 2 * i for i in range(8)] + [SM, SM + 2]
    for r in regs:
        a(f'    v_pk_fma_f32 {vr(r,2)}, {vr(r,2)}, s[{S_CC}:{S_CC+1}], {vr(NEG,2)} op_sel_hi:[1,1,0] neg_lo:[0,0,1] neg_hi:[0,0,1]')
    for r in regs:
        a(f'    v_exp_f32 {vr(r)}, {vr(r)}'); a(f'    v_exp_f32 {vr(r+1)}, {vr(r+1)}')
    for i in range(8):
        a(f'    v_cvt_pk_bf16_f32 {vr(PX+i)}, {vr(SX+2*i)}, {vr(SX+2*i+1)}')
    a(f'''
    v_cvt_pk_bf16_f32 {vr(PM)}, {vr(SM)}, {vr(SM+1)}
    v_mov_b32 {vr(PM+1)}, 0
    v_cvt_pk_bf16_f32 {vr(PM+2)}, {vr(SM+2)}, {vr(SM+3)}
    v_mov_b32 {vr(PM+3)}, 0
''')
    for i in range(1, 8):
        a(f'    v_pk_add_f32 {vr(SX,2)}, {vr(SX,2)}, {vr(SX+2*i,2)}')
    a(f'    v_pk_add_f32 {vr(SX,2)}, {vr(SX,2)}, {vr(SM,2)}')
    a(f'    v_pk_add_f32 {vr(SX,2)}, {vr(SX,2)}, {vr(SM+2,2)}')
    a(f'''
    v_add_f32 {vr(M)}, {vr(SX)}, {vr(SX+1)}
    v_mov_b32 {vr(T1)}, {vr(M)}
    v_permlane32_swap_b32 {vr(M)}, {vr(T1)}
    v_add_f32 {vr(M)}, {vr(M)}, {vr(T1)}
    v_rcp_f32 {vr(NEG)}, {vr(M)}
    s_waitcnt vmcnt(0)
''')
    for ft in range(4):
        a(f'    v_permlane16_swap_b32 {vr(B_VM + 4*ft)}, {vr(B_VM + 4*ft + 2)}')
    for ft in range(4):
        D = O0 + 16 * ft
        a(f'    v_mfma_f32_32x32x16_bf16 {vr(D,16)}, {vr(B_V + 8*ft,4)}, {vr(PX,4)}, 0')
        a(f'    v_mfma_f32_32x32x16_bf16 {vr(D,16)}, {vr(B_V + 8*ft + 4,4)}, {vr(PX+4,4)}, {vr(D,16)}')
        a(f'    v_mfma_f32_32x32x16_bf16 {vr(D,16)}, {vr(B_VM + 4*ft,4)}, {vr(PM,4)}, {vr(D,16)}')
    a(f'    s_add_u32 s{S_T1}, s{S_OO}, 4096')
    k = 0
    for ft in range(4):
        D = O0 + 16 * ft
        for cb in range(2):
            E = SX + (k % 4) * 4; k += 1
            for i in range(4):
                r = D + 8 * cb + 2 * i
                a(f'    v_pk_mul_f32 {vr(r,2)}, {vr(r,2)}, {vr(NEG,2)} op_sel_hi:[1,0]')
                a(f'    v_cvt_pk_bf16_f32 {vr(E+i)}, {vr(r)}, {vr(r+1)}')
            off = (4 * ft + 2 * cb) * 512
            so = S_OO if off < 4096 else S_T1
            a(f'    buffer_store_dwordx4 {vr(E,4)}, {vr(V_LIN16)}, {WS}, s{so} offen offset:{off % 4096} {ST}')

def emit_attn_kernel(a, cfg):
    a(f"""
    s_load_dwordx2 s[{SRD_WS}:{SRD_WS+1}], s[0:1], {KA_WS}
    v_lshrrev_b32 v1, 6, v0
    s_nop 1
    v_readfirstlane_b32 s{S_W}, v1
    s_waitcnt lgkmcnt(0)
    s_mov_b32 s{SRD_WS+2}, {WS_SIZE}
    s_mov_b32 s{SRD_WS+3}, 0x20000
    s_lshl_b32 s{S_U}, s2, 2
    s_add_u32 s{S_U}, s{S_U}, s{S_W}
""")
    emit_setup(a)
    a('L_at_loop:')
    a(f"""
    s_lshr_b32 s{S_S}, s{S_U}, 5
    s_and_b32 s{S_HH}, s{S_U}, 31
""")
    emit_offsets(a)
    emit_loads_x(a); emit_loads_m(a)
    emit_compute(a)
    a(f"""
    s_add_u32 s{S_U}, s{S_U}, 1024
    s_cmp_lt_u32 s{S_U}, 2048
    s_waitcnt vmcnt(0)
    s_cbranch_scc1 L_at_loop
""")
```

```python
from asmlib import *
from layout import *
import struct

LDS_M, LDS_QK, LDS_OX, LDS_MISC, LDS_KB, LDS_W = 0, 8192, 12288, 14336, 16384, 32768

S_H, S_W, S_STEP, S_ERR, S_CNT = 3, 4, 5, 6, 7
SRD_WS, SRD_A = 8, 12
S_DBG, S_WSP = 16, 18
S_MCUR, S_MNXT, S_MOTH, S_MPOLL = 20, 21, 22, 47
S_PST, S_PL0, S_PL1, S_PR0, S_PR1 = 23, 24, 25, 26, 27
S_KSRC, S_KDST, S_VSRC, S_KMO, S_VMO = 28, 29, 30, 31, 32
S_T0, S_T1, S_T2 = 33, 34, 35
S_KMP, S_VMP = 62, 63
S_MASK_T = 36
S_MASK_ODD = 38
S_MASK_M = 40
S_MASK_PB = 42
S_EXEC = 44
S_C = 46
S_SEL = 48
S_TM0, S_TM1 = 56, 58
S_WBASE, S_WBASE_O, S_DBGM = 60, 61, 45
S_MASK_ODDL = 100
S_ST = 64
S_TS = 80
SRD_Q, SRD_K, SRD_V, SRD_O = 84, 88, 92, 96

V_LIN16, V_PLD, V_MST, V_QW, V_QR, V_K0, V_K1, V_OW, V_OR, V_VLD, V_IDX, V_WL = range(12)
V_VB = 12
V_VX = 16
V_ON16 = 24
R_X = 26
R_M, R_S, R_Q, R_K = 32, 64, 96, 112
V_WV = 128

def wq(ks, sel): return ar(0 + (ks * 2 + sel) * 8, 8)
def wk(ks, sel): return ar(96 + (ks * 2 + sel) * 8, 8)
def wo0(tau): return ar(192 + tau * 8, 8)
def wv(ks, sel): return vr(V_WV + (ks * 2 + sel) * 8, 8)

SOFT_C = (128 ** -0.5) * 1.4426950408889634
def f2u(x): return struct.unpack('<I', struct.pack('<f', x))[0]
WS = f's[{SRD_WS}:{SRD_WS+3}]'

class LG:
    def __init__(self, a):
        self.a = a; self.n = 0; self.tags = {}; self.done = 0
    def issue(self, text, tag=None):
        self.a(text); self.n += 1
        if tag is not None: self.tags[tag] = self.n
    def wait(self, tag):
        pos = self.tags[tag]
        if pos <= self.done: return
        k = self.n - pos
        self.a('    s_waitcnt lgkmcnt(%d)' % min(k, 15))
        self.done = self.n - min(k, 15)
    def wait_all(self):
        self.a('    s_waitcnt lgkmcnt(0)'); self.done = self.n

STAMP_RAW = 64
STAMP_ACC = 84
def stamp(a, cfg, k):
    if not cfg.get('stamp'): return
    a(f'    s_memtime s[{STAMP_RAW+2*k}:{STAMP_RAW+2*k+1}]')

def T(a, cfg, k):
    if 'trace' not in cfg: return
    if k in cfg.get('tset', range(16)):
        a(f'    s_memtime s[{64+2*k}:{64+2*k+1}]')

def trace_dump(a, cfg, w):
    if 'trace' not in cfg: return
    lab = f'L_trd{w}'
    a(f"""
    s_cmp_lg_u32 s{S_STEP}, {cfg['trace']}
    s_cbranch_scc1 {lab}
    s_waitcnt lgkmcnt(0)
    s_lshl_b32 s{S_T0}, s{S_H}, 2
    s_add_u32 s{S_T0}, s{S_T0}, {w}
    s_lshl_b32 s{S_T0}, s{S_T0}, 7
    s_add_u32 s{S_T0}, s{S_T0}, 0x8000
    s_mov_b64 exec, 1
    v_mov_b32 {vr(R_X)}, 0
""")
    for k in range(16):
        a(f'    v_mov_b32 {vr(R_X+1)}, s{64+2*k}')
        a(f'    buffer_store_dword {vr(R_X+1)}, {vr(R_X)}, {WS}, s{S_T0} offen offset:{4*k}')
    a(f'    s_mov_b64 exec, -1\n{lab}:')

def stamp_accum(a, cfg):
    if not cfg.get('stamp'): return
    a('    s_waitcnt lgkmcnt(0)')
    order = [9, 0, 1, 2, 3, 4, 5, 6, 7, 8]
    prev = 94
    for k in order:
        a(f'    s_sub_u32 s{S_T0}, s{STAMP_RAW+2*k}, s{prev}')
        a(f'    s_add_u32 s{STAMP_ACC+k}, s{STAMP_ACC+k}, s{S_T0}')
        prev = STAMP_RAW + 2 * k
    a(f'    s_mov_b32 s94, s{STAMP_RAW+2*8}')

DUMP_BASE = 0x0800_0000
_dumpn = [0]
def dump(a, cfg, w, slot, first, n):
    if 'dumpstep' not in cfg: return
    _dumpn[0] += 1
    lab = 'L_dmp%d' % _dumpn[0]
    a(f"""
    s_cmp_lg_u32 s{S_STEP}, {cfg['dumpstep']}
    s_cbranch_scc1 {lab}
    s_waitcnt lgkmcnt(0)
    s_nop 15
    s_lshl_b32 s{S_T0}, s{S_H}, 2
    s_add_u32 s{S_T0}, s{S_T0}, {w}
    s_lshl_b32 s{S_T0}, s{S_T0}, 15
    s_add_u32 s{S_T0}, s{S_T0}, {DUMP_BASE + slot * 0x400000}
""")
    for r in range(n):
        a(f'    buffer_store_dword {vr(first + r)}, {vr(V_LIN16)}, {WS}, s{S_T0} offen')
        a(f'    s_add_u32 s{S_T0}, s{S_T0}, 1024')
    a(f'{lab}:')

def smf(acc, A, B):
    return f'    v_smfmac_f32_16x16x64_bf16 {vr(acc,4)}, {vr(A,4)}, {B}, {vr(V_IDX)}'
def mf32(D, A, B, C):
    return f'    v_mfma_f32_16x16x32_bf16 {vr(D,4)}, {A}, {B}, {C}'
def pkadd(d, x, y):
    return f'    v_pk_add_f32 {vr(d,2)}, {vr(x,2)}, {vr(y,2)}'
def cvt(d, x, y):
    return f'    v_cvt_pk_bf16_f32 {vr(d)}, {vr(x)}, {vr(y)}'

def emit_setup(a, cfg, w):
    t0, t1, t2 = R_X, R_X + 1, R_X + 2
    L = R_X + 5
    a(f'''
    v_and_b32 {vr(L)}, 63, v0
    v_lshlrev_b32 {vr(V_LIN16)}, 4, {vr(L)}
    ; V_PLD = (l>>2)*8192 + R*64 + (l&3)*16 ; R = 4h+w
    s_lshl_b32 s{S_T0}, s{S_H}, 2
    s_add_u32 s{S_T0}, s{S_T0}, {w}          ; R
    s_lshl_b32 s{S_T1}, s{S_T0}, 6
    v_lshrrev_b32 {vr(t0)}, 2, {vr(L)}
    v_lshlrev_b32 {vr(t0)}, 13, {vr(t0)}
    v_and_b32 {vr(t1)}, 3, {vr(L)}
    v_lshlrev_b32 {vr(t1)}, 4, {vr(t1)}
    v_add3_u32 {vr(V_PLD)}, {vr(t0)}, {vr(t1)}, s{S_T1}
    s_lshr_b32 s{S_T1}, s{S_T0}, 4
    s_lshl_b32 s{S_T1}, s{S_T1}, 10
    s_and_b32 s{S_T2}, s{S_T0}, 3
    s_lshl_b32 s{S_T2}, s{S_T2}, 8
    s_add_u32 s{S_T1}, s{S_T1}, s{S_T2}
    s_and_b32 s{S_T2}, s{S_T0}, 12              ; gR*4
    s_lshl_b32 s{S_T2}, s{S_T2}, 4              ; 4 gR * 16
    s_add_u32 s{S_T1}, s{S_T1}, s{S_T2}
    v_bfe_u32 {vr(t0)}, {vr(L)}, 4, 1
    v_lshlrev_b32 {vr(t0)}, 5, {vr(t0)}
    v_bfe_u32 {vr(t1)}, {vr(L)}, 2, 1
    v_lshlrev_b32 {vr(t1)}, 4, {vr(t1)}
    v_and_b32 {vr(t2)}, 3, {vr(L)}
    v_lshlrev_b32 {vr(t2)}, 2, {vr(t2)}
    v_add3_u32 {vr(t0)}, {vr(t0)}, {vr(t1)}, {vr(t2)}
    v_add_u32 {vr(V_MST)}, s{S_T1}, {vr(t0)}
    v_and_b32 {vr(t0)}, 15, {vr(L)}
    v_lshlrev_b32 {vr(t0)}, 4, {vr(t0)}
    v_lshrrev_b32 {vr(t1)}, 4, {vr(L)}
    v_lshlrev_b32 {vr(t1)}, 2, {vr(t1)}
    v_add_u32 {vr(t0)}, {vr(t0)}, {vr(t1)}
    v_add_u32 {vr(V_QW)}, {LDS_QK + w * 1024}, {vr(t0)}
    v_lshrrev_b32 {vr(t0)}, 5, {vr(L)}
    v_lshlrev_b32 {vr(t0)}, 9, {vr(t0)}
    v_bfe_u32 {vr(t1)}, {vr(L)}, 4, 1
    v_lshlrev_b32 {vr(t1)}, 6, {vr(t1)}
    v_bfe_u32 {vr(t2)}, {vr(L)}, 2, 2
    v_lshlrev_b32 {vr(t2)}, 4, {vr(t2)}
    v_add3_u32 {vr(t0)}, {vr(t0)}, {vr(t1)}, {vr(t2)}
    v_bfe_u32 {vr(t1)}, {vr(L)}, 1, 1
    v_lshlrev_b32 {vr(t1)}, 3, {vr(t1)}
    v_add_u32 {vr(t0)}, {vr(t0)}, {vr(t1)}
    v_add_u32 {vr(V_QR)}, {LDS_QK}, {vr(t0)}
    v_lshrrev_b32 {vr(t0)}, 4, {vr(L)}
    v_lshlrev_b32 {vr(t0)}, 9, {vr(t0)}
    v_and_b32 {vr(t1)}, 15, {vr(L)}
    v_lshlrev_b32 {vr(t1)}, 4, {vr(t1)}
    v_add_u32 {vr(t0)}, {vr(t0)}, {vr(t1)}
    v_bfe_u32 {vr(t2)}, {vr(L)}, 3, 1
    v_lshlrev_b32 {vr(t2)}, 8, {vr(t2)}
    v_add_u32 {vr(V_K0)}, {vr(t0)}, {vr(t2)}
    v_add_u32 {vr(V_K0)}, {LDS_KB}, {vr(V_K0)}
    v_add_u32 {vr(V_K1)}, {LDS_KB + 128}, {vr(t0)}
    v_lshrrev_b32 {vr(t0)}, 4, {vr(L)}
    v_lshlrev_b32 {vr(t0)}, 7, {vr(t0)}
    v_bfe_u32 {vr(t1)}, {vr(L)}, 3, 1
    v_lshlrev_b32 {vr(t1)}, 6, {vr(t1)}
    v_and_b32 {vr(t2)}, 3, {vr(L)}
    v_lshlrev_b32 {vr(t2)}, 4, {vr(t2)}
    v_add3_u32 {vr(V_OW)}, {vr(t0)}, {vr(t1)}, {vr(t2)}
    v_lshrrev_b32 {vr(t0)}, 4, {vr(L)}
    v_lshlrev_b32 {vr(t0)}, 8, {vr(t0)}
    v_bfe_u32 {vr(t1)}, {vr(L)}, 1, 1
    v_lshlrev_b32 {vr(t1)}, 7, {vr(t1)}
    v_bfe_u32 {vr(t2)}, {vr(L)}, 2, 2
    v_lshlrev_b32 {vr(t2)}, 5, {vr(t2)}
    v_add3_u32 {vr(t0)}, {vr(t0)}, {vr(t1)}, {vr(t2)}
    v_and_b32 {vr(t1)}, 1, {vr(L)}
    v_lshlrev_b32 {vr(t1)}, 4, {vr(t1)}
    v_add_u32 {vr(t0)}, {vr(t0)}, {vr(t1)}
    v_add_u32 {vr(V_OR)}, {LDS_OX}, {vr(t0)}
    ; V_VLD = (g>>1)*1024 + (g&1)*512 + f16*16
    v_lshrrev_b32 {vr(t0)}, 5, {vr(L)}
    v_lshlrev_b32 {vr(t0)}, 10, {vr(t0)}
    v_bfe_u32 {vr(t1)}, {vr(L)}, 4, 1
    v_lshlrev_b32 {vr(t1)}, 9, {vr(t1)}
    v_and_b32 {vr(t2)}, 15, {vr(L)}
    v_lshlrev_b32 {vr(t2)}, 4, {vr(t2)}
    v_add3_u32 {vr(V_VLD)}, {vr(t0)}, {vr(t1)}, {vr(t2)}
    v_bfe_u32 {vr(t0)}, {vr(L)}, 1, 1
    v_mov_b32 {vr(t1)}, 0x4444
    v_mov_b32 {vr(t2)}, 0xeeee
    v_cmp_eq_u32 vcc, 1, {vr(t0)}
    v_cndmask_b32 {vr(V_IDX)}, {vr(t1)}, {vr(t2)}, vcc
    v_add_u32 {vr(V_WL)}, {LDS_W + w * 32768}, {vr(V_LIN16)}
    v_mov_b32 {vr(V_VB+1)}, 0
    v_mov_b32 {vr(V_VB+3)}, 0
    v_mov_b32 {vr(V_ON16)}, 0x3f803f80
    v_mov_b32 {vr(V_ON16+1)}, 0
    v_bfe_u32 {vr(t0)}, {vr(L)}, 1, 3
''')
    for u in range(4):
        a(f'    v_cmp_eq_u32 s[{S_SEL+2*u}:{S_SEL+2*u+1}], {u}, {vr(t0)}')
    a(f'''
    s_mov_b32 s{S_MASK_T}, 0x0f0f0f0f
    s_mov_b32 s{S_MASK_T+1}, 0x0f0f0f0f
    s_mov_b32 s{S_MASK_ODD}, 0xffff0000
    s_mov_b32 s{S_MASK_ODD+1}, 0xffff0000
    s_mov_b32 s{S_MASK_M}, 0x00ff00ff
    s_mov_b32 s{S_MASK_M+1}, 0
    s_mov_b32 s{S_MASK_PB}, 0xf0f0f0f0
    s_mov_b32 s{S_MASK_PB+1}, 0xf0f0f0f0
    s_mov_b32 s{S_C}, {f2u(SOFT_C):#x}
''')

def emit_init(a, cfg, w):
    t = R_S
    L = R_X + 5
    ST = cfg['st']
    a(f"""
    v_mov_b32 {vr(t)}, -1
    v_mov_b32 {vr(t+1)}, -1
    v_mov_b32 {vr(t+2)}, -1
    v_mov_b32 {vr(t+3)}, -1
""")
    for off in (0, 131072, 262144, 262144 + 131072):
        a(f"""
    s_mov_b32 s{S_T0}, {WS_P + off}
    buffer_store_dwordx4 {vr(t,4)}, {vr(V_PLD)}, {WS}, s{S_T0} offen {ST}
""")
    a(f"""
    s_lshl_b32 s{S_T0}, s{S_H}, 2
    s_add_u32 s{S_T0}, s{S_T0}, {w}
    s_lshr_b32 s{S_T1}, s{S_T0}, 4
    s_lshl_b32 s{S_T1}, s{S_T1}, 7
    s_and_b32 s{S_T2}, s{S_T0}, 3
    s_lshl_b32 s{S_T2}, s{S_T2}, 3          ; 4 ga * 2
    s_add_u32 s{S_T1}, s{S_T1}, s{S_T2}
    s_bfe_u32 s{S_T2}, s{S_T0}, 0x20002     ; gR
    s_lshl_b32 s{S_T2}, s{S_T2}, 11         ; 2 gR * 1024
    s_add_u32 s{S_T1}, s{S_T1}, s{S_T2}
    v_bfe_u32 {vr(t+4)}, {vr(L)}, 4, 1
    v_lshlrev_b32 {vr(t+4)}, 6, {vr(t+4)}    ; 32 half * 2
    v_bfe_u32 {vr(t+5)}, {vr(L)}, 2, 1
    v_lshlrev_b32 {vr(t+5)}, 10, {vr(t+5)}
    v_and_b32 {vr(t+6)}, 3, {vr(L)}
    v_lshlrev_b32 {vr(t+6)}, 1, {vr(t+6)}
    v_add3_u32 {vr(t+4)}, {vr(t+4)}, {vr(t+5)}, {vr(t+6)}
    v_add_u32 {vr(t+4)}, s{S_T1}, {vr(t+4)}
    buffer_load_ushort {vr(t+5)}, {vr(t+4)}, s[{SRD_A}:{SRD_A+3}], 0 offen
    buffer_load_ushort {vr(t+6)}, {vr(t+4)}, s[{SRD_A}:{SRD_A+3}], 0 offen offset:32
    s_waitcnt vmcnt(0)
    v_lshl_or_b32 {vr(t+5)}, {vr(t+6)}, 16, {vr(t+5)}
    v_min_u32 {vr(t+5)}, -2, {vr(t+5)}
    s_mov_b64 exec, s[{S_MASK_M}:{S_MASK_M+1}]
    s_mov_b32 s{S_T0}, {WS_M}
    buffer_store_dword {vr(t+5)}, {vr(V_MST)}, {WS}, s{S_T0} offen {ST}
    s_mov_b32 s{S_T0}, {WS_M + 8192}
    buffer_store_dword {vr(t)}, {vr(V_MST)}, {WS}, s{S_T0} offen {ST}
    s_mov_b32 s{S_T0}, {WS_M + 16384}
    buffer_store_dword {vr(t)}, {vr(V_MST)}, {WS}, s{S_T0} offen {ST}
""")
    if cfg.get('dbgm'):
        a(f"""
    s_mov_b32 s{S_T0}, {WS_DBGM}
    buffer_store_dword {vr(t+5)}, {vr(V_MST)}, {WS}, s{S_T0} offen
""")
    a(f"""
    s_mov_b64 exec, -1
    s_waitcnt vmcnt(0)
""")

def emit_weight_prologue(a, cfg, w):
    L = R_X + 5
    vq0, vq1, vo0, vo1 = R_Q, R_Q + 1, R_Q + 2, R_Q + 3
    t0, t1, t2 = R_X, R_X + 1, R_X + 2
    tA, tB, tA2, tB2, tO = R_Q + 4, R_Q + 5, R_Q + 6, R_Q + 7, R_Q + 8
    for gb1, (vq, vo) in enumerate(((vq0, vo0), (vq1, vo1))):
        a(f'''
    v_lshrrev_b32 {vr(t0)}, 4, {vr(L)}                ; r
    v_bfe_u32 {vr(t1)}, {vr(L)}, 1, 3                 ; pp
    v_add_u32 {vr(t2)}, {gb1*4}, {vr(t0)}
    v_xor_b32 {vr(t1)}, {vr(t1)}, {vr(t2)}
    v_lshlrev_b32 {vr(t1)}, 5, {vr(t1)}
    v_and_b32 {vr(t2)}, 1, {vr(L)}
    v_lshlrev_b32 {vr(t2)}, 4, {vr(t2)}
    v_add_u32 {vr(t1)}, {vr(t1)}, {vr(t2)}
    v_and_b32 {vr(t2)}, 1, {vr(t0)}
    v_lshlrev_b32 {vr(t2)}, 17, {vr(t2)}
    v_add_u32 {vr(vq)}, {vr(t1)}, {vr(t2)}
    v_lshrrev_b32 {vr(t2)}, 1, {vr(t0)}
    v_lshlrev_b32 {vr(t2)}, 18, {vr(t2)}
    v_add_u32 {vr(vq)}, {vr(vq)}, {vr(t2)}
    v_and_b32 {vr(t2)}, 1, {vr(t0)}
    v_lshlrev_b32 {vr(t2)}, 10, {vr(t2)}
    v_add_u32 {vr(vo)}, {vr(t1)}, {vr(t2)}
    v_lshrrev_b32 {vr(t2)}, 1, {vr(t0)}
    v_lshlrev_b32 {vr(t2)}, 12, {vr(t2)}
    v_add_u32 {vr(vo)}, {vr(vo)}, {vr(t2)}
''')
    a(f'''
    v_lshrrev_b32 {vr(t0)}, 2, {vr(L)}
    v_lshlrev_b32 {vr(t1)}, 8, {vr(t0)}
    v_and_b32 {vr(t0)}, 7, {vr(t0)}
    v_lshlrev_b32 {vr(t0)}, 5, {vr(t0)}
    v_and_b32 {vr(t2)}, 3, {vr(L)}
    v_lshlrev_b32 {vr(t2)}, 3, {vr(t2)}
    v_add3_u32 {vr(t0)}, {vr(t0)}, {vr(t1)}, {vr(t2)}
    v_add_u32 {vr(tO)}, {LDS_W}, {vr(t0)}
    v_xor_b32 {vr(tA)}, {(2*w) << 5}, {vr(tO)}
    v_xor_b32 {vr(tB)}, 32, {vr(tA)}
    v_add_u32 {vr(tA2)}, 0x10000, {vr(tA)}
    v_add_u32 {vr(tB2)}, 0x10000, {vr(tB)}
    s_lshl_b32 s{S_WBASE}, s{S_H}, 8
    s_add_u32 s{S_WBASE}, s{S_WBASE}, {(8 * (w >> 1) + (w & 1)) * 8192}
    s_lshl_b32 s{S_WBASE_O}, s{S_H}, 17
    s_add_u32 s{S_WBASE_O}, s{S_WBASE_O}, {(32 * (w >> 1) + 2 * (w & 1)) * 1024}
''')
    units = []
    for m in ('q', 'k'):
        for ks in range(6): units.append((m, ks))
    for ks in range(8): units.append(('v', ks))
    for p in range(4): units.append(('o0', p))
    units += [('q', 6), ('o1', 0), ('q', 7), ('o1', 1), ('k', 6), ('o1', 2), ('k', 7), ('o1', 3)]
    srd = {'q': SRD_Q, 'k': SRD_K, 'v': SRD_V, 'o0': SRD_O, 'o1': SRD_O}
    def issue(u):
        m, x = units[u]
        slot = u % 8
        S = srd[m]
        for gb in range(4):
            if m in ('q', 'k', 'v'):
                uni = (64 * x + 4 * (gb >> 1) + 2 * (gb & 1)) * 8192
                vo = vq1 if gb & 1 else vq0
                base = S_WBASE
            else:
                kap = 0 if m == 'o0' else 1
                uni = (64 * kap + 16 * (gb & 1) + 8 * (gb >> 1)) * 1024 + x * 256
                vo = vo1 if gb & 1 else vo0
                base = S_WBASE_O
            a(f'''
    s_mov_b32 m0, {LDS_W + slot * 16384 + w * 4096 + gb * 1024}
    s_add_u32 s{S_T1}, s{base}, {uni}
    buffer_load_dwordx4 {vr(vo)}, s[{S}:{S+3}], s{S_T1} offen lds
''')
    def qkv_reads(slot, dsts):
        for sel in range(2):
            addr = (tA, tB)[sel] if slot < 4 else (tA2, tB2)[sel]
            off = (slot % 4) * 16384
            for U in range(4):
                a(f'    ds_read_b64_tr_b16 {dsts(sel, U)}, {vr(addr)} offset:{off + U * 4096}')
    def wo_reads(slot, dsts):
        a(f'    v_add_u32 {vr(tO+1)}, {slot * 16384}, {vr(tO)}')
        for tau in range(8):
            a(f'    v_xor_b32 {vr(tO+2)}, {tau << 5}, {vr(tO+1)}')
            for U in range(4):
                a(f'    ds_read_b64_tr_b16 {dsts(tau, U)}, {vr(tO+2)} offset:{U * 4096}')
            if tau % 2 == 1: a('    s_waitcnt lgkmcnt(0)')
    NIF = 7
    for u in range(NIF): issue(u)
    for u in range(24):
        m, x = units[u]
        slot = u % 8
        a(f'    s_waitcnt vmcnt({4 * (NIF - 1)}) lgkmcnt(0)')
        a('    s_barrier')
        if m == 'v':
            qkv_reads(slot, lambda sel, U: vr(V_WV + (x * 2 + sel) * 8 + 2 * U, 2))
        elif m in ('q', 'k'):
            qkv_reads(slot, lambda sel, U: ar((0 if m == 'q' else 96) + (x * 2 + sel) * 8 + 2 * U, 2))
        elif x == w:
            wo_reads(slot, lambda tau, U: ar(192 + tau * 8 + 2 * U, 2))
        issue(u + NIF)
    a('    s_waitcnt lgkmcnt(0)')
    a('    s_barrier')
    issue(31)
    a('    s_waitcnt vmcnt(0)')
    a('    s_barrier')
    for f2, slot in enumerate((0, 2, 4, 6)):
        qkv_reads(slot, lambda sel, U: vr(R_M + (f2 * 2 + sel) * 8 + 2 * U, 2))
        a('    s_waitcnt lgkmcnt(0)')
    a('    s_barrier')
    for f in range(8):
        for hh in range(2):
            a(f'    ds_write_b128 {vr(V_WL)}, {vr(R_M + f * 8 + 4 * hh, 4)} offset:{f * 2048 + hh * 1024}')
    a('    s_waitcnt lgkmcnt(0)')
    wo_reads(2 * w + 1, lambda tau, U: vr(R_M + tau * 8 + 2 * U, 2))
    a('    s_waitcnt lgkmcnt(0)')
    for f in range(8):
        for hh in range(2):
            a(f'    ds_write_b128 {vr(V_WL)}, {vr(R_M + f * 8 + 4 * hh, 4)} offset:{16384 + f * 2048 + hh * 1024}')
    a('    s_waitcnt lgkmcnt(0)')
    a('    s_barrier')

def stage(lg, dst, f, tag=None):
    return [(lambda hh=hh: lg.issue(f'    ds_read_b128 {vr(dst + 4*hh, 4)}, {vr(V_WL)} offset:{f * 2048 + hh * 1024}', tag if hh == 1 else None)) for hh in range(2)]

def poll_check(a, regs, retry):
    a(f"""
    v_max3_u32 {vr(R_X)}, {vr(regs)}, {vr(regs+1)}, {vr(regs+2)}
    v_max3_u32 {vr(R_X+1)}, {vr(regs+3)}, {vr(regs+4)}, {vr(regs+5)}
    v_max3_u32 {vr(R_X)}, {vr(R_X)}, {vr(regs+6)}, {vr(regs+7)}
    v_max_u32 {vr(R_X)}, {vr(R_X)}, {vr(R_X+1)}
    v_cmp_eq_u32 vcc, -1, {vr(R_X)}
    s_cbranch_vccnz {retry}
""")

def retry_block(a, name, back, done, loads):
    a(f"""
{name}:
    s_add_u32 s{S_CNT}, s{S_CNT}, 1
    s_cmp_lt_u32 s{S_CNT}, s{S_ERR}
    s_cbranch_scc0 {name}_to
{loads}
    s_branch {back}
{name}_to:
    s_mov_b32 s{S_ERR}, 0
    s_branch {done}
""")

def hop2_loads(w):
    PM = R_M + 8 * w
    return (f'    buffer_load_dwordx4 {vr(PM,4)}, {vr(V_LIN16)}, {WS}, s{S_MPOLL} offen sc1\n'
            f'    buffer_load_dwordx4 {vr(PM+4,4)}, {vr(V_LIN16)}, {WS}, s{S_MPOLL} offen offset:1024 sc1\n')
def hop1_loads():
    PA = R_Q
    return (f'    buffer_load_dwordx4 {vr(PA,4)}, {vr(V_PLD)}, {WS}, s{S_PL0} offen sc1\n'
            f'    buffer_load_dwordx4 {vr(PA+4,4)}, {vr(V_PLD)}, {WS}, s{S_PL1} offen sc1\n')

def idle_prep(a, lg):
    for f in range(4):
        for th in stage(lg, R_S + f * 8, f, f'wq{f}'): th()
    for r in range(16):
        a(f'    v_mov_b32 {vr(R_K + r)}, 0')

def weave(a, mf, fill):
    for i, m in enumerate(mf):
        if callable(m): m()
        else: a(m)
        for f in fill.get(i, []):
            if callable(f): f()
            else: a(f)

def mov64(r, src='0'):
    return f'    v_mov_b64 {vr(r,2)}, {src}'

class Sched:
    def __init__(self, a): self.a = a; self.mf = []; self.ds = {}; self.va = {}; self.pre = {}
    def add(self, m): self.mf.append(m); return len(self.mf) - 1
    def D(self, i, x): self.ds.setdefault(i, []).append(x)
    def V(self, i, x): self.va.setdefault(i, []).append(x)
    def P(self, i, x): self.pre.setdefault(i, []).append(x)
    def emit(self):
        run = lambda x: x() if callable(x) else self.a(x)
        for i, m in enumerate(self.mf):
            for x in self.pre.get(i, []): run(x)
            run(m)
            for x in self.ds.get(i, []): run(x)
            for x in self.va.get(i, []): run(x)

S_CC = 96
S_ONE2 = 98

def emit_step(a, cfg, w, last, ool):
    lg = LG(a)
    ST = cfg['st']
    tag = f'{w}' + ('l' if last else 'm')
    own = (2 * w, 2 * w + 1)
    PM = R_M + 8 * w
    accQ, accK = R_K, R_K + 8
    X = R_X
    np2 = cfg.get('np2', 1)
    nres = 2 if not cfg.get('noreset') else 0
    a(f"    s_waitcnt vmcnt({2 * (np2 - 1)})")
    poll_check(a, PM, f'L_p2r_{tag}')
    a(f'L_p2d_{tag}:')
    T(a, cfg, 0)
    def ool2():
        a(f"""
L_p2r_{tag}:
    s_add_u32 s{S_CNT}, s{S_CNT}, 1
    s_cmp_lt_u32 s{S_CNT}, s{S_ERR}
    s_cbranch_scc0 L_p2r_{tag}_to
""")
        a(hop2_loads(w))
        a(f"    s_waitcnt vmcnt({2 * (np2 - 1)})")
        poll_check(a, PM, f'L_p2r_{tag}')
        a(f"""
    s_branch L_p2d_{tag}
L_p2r_{tag}_to:
    s_mov_b32 s{S_ERR}, 0
    s_branch L_p2d_{tag}
""")
    ool.append(ool2)
    stamp(a, cfg, 9)
    lg.n = 8; lg.done = 0
    for f in range(4): lg.tags[f'wq{f}'] = 2 * f + 2
    lg.issue(f'    ds_write_b128 {vr(V_LIN16)}, {vr(PM,4)} offset:{LDS_M + own[0] * 1024}')
    lg.issue(f'    ds_write_b128 {vr(V_LIN16)}, {vr(PM+4,4)} offset:{LDS_M + own[1] * 1024}', 'mw')
    def Wq(ks, sel): return wq(ks, sel) if ks < 6 else vr(R_S + ((ks - 6) * 2 + sel) * 8, 8)
    def Wk(ks, sel): return wk(ks, sel) if ks < 6 else vr(R_S + ((ks - 6) * 2 + sel) * 8, 8)
    def Qs(ks, sel): return smf(accQ + 4 * sel, R_M + 4 * ks, Wq(ks, sel))
    def Ks(ks, sel): return smf(accK + 4 * sel, R_M + 4 * ks, Wk(ks, sel))
    accV = R_S + 16
    def Vs(ks, sel): return smf(accV + 4 * sel, R_M + 4 * ks, wv(ks, sel))
    others = [ks for ks in (6, 7, 0, 1, 2, 3, 4, 5) if ks not in own]
    mread = {ks: (lambda ks=ks: lg.issue(f'    ds_read_b128 {vr(R_M + 4*ks, 4)}, {vr(V_LIN16)} offset:{LDS_M + ks * 1024}', f'm{ks}')) for ks in others}
    wkst = []
    for f in range(4): wkst += stage(lg, R_S + f * 8, 4 + f, f'wk{f}')
    def waits(*tags):
        def f():
            for t in tags:
                if t in lg.tags: lg.wait(t)
        return f
    S = Sched(a)
    if not last:
        for ks in own:
            for sel in range(2):
                i = S.add(Qs(ks, sel))
                if ks >= 6 and sel == 0: S.P(i, waits('wq3'))
    if w < 3:
        for ks in own:
            for sel in range(2): S.add(Ks(ks, sel))
    nE = len(S.mf)
    bgv = []
    KP = R_Q
    pub_prev = [lambda: lg.issue(f'    ds_read_b64_tr_b16 {vr(KP, 2)}, {vr(V_QR)} offset:{256 + w * 1024}'),
                lambda: lg.issue(f'    ds_read_b64_tr_b16 {vr(KP + 2, 2)}, {vr(V_QR)} offset:{256 + w * 1024 + 128}', 'kp')]
    if not last:
        bgv += [f'    s_mov_b32 m0, s{S_KDST}',
                f'    buffer_load_dwordx4 {vr(V_LIN16)}, {WS}, s{S_KSRC} offen lds',
                f'    buffer_load_dwordx4 {vr(V_LIN16)}, {WS}, s{S_KSRC} offen offset:1024 lds',
                f'    s_mov_b32 m0, {LDS_MISC + w * 512}',
                f'    buffer_load_dword {vr(V_VLD)}, {WS}, s{S_VSRC} offen lds',
                f'    buffer_load_dword {vr(V_VLD)}, {WS}, s{S_VSRC} offen offset:256 lds']
    bgv += [f'    buffer_store_dwordx4 {vr(X+2,4)}, {vr(V_PLD)}, {WS}, s{S_PR0} offen {ST}',
            f'    buffer_store_dwordx4 {vr(X+2,4)}, {vr(V_PLD)}, {WS}, s{S_PR1} offen {ST}',
            f'    buffer_store_dwordx4 {vr(V_VB,4)}, {vr(V_LIN16)}, {WS}, s{S_VMP} offen offset:{w * 1024} sc1']
    if cfg.get('progress') and w == 0:
        bgv += [f'    s_sub_u32 s{S_T1}, s{S_STEP}, 1', f'    s_max_i32 s{S_T1}, s{S_T1}, 0', f'    s_lshl_b32 s{S_T0}, s{S_H}, 2',
                f'    v_mov_b32 {vr(X)}, s{S_T1}', f'    v_mov_b32 {vr(X+1)}, s{S_T0}', f'    s_mov_b64 exec, 1',
                f'    global_store_dword {vr(X+1)}, {vr(X)}, s[{S_DBG}:{S_DBG+1}] offset:128 sc1', f'    s_mov_b64 exec, -1']
    kmpub = [waits('kp'), f'    s_mov_b64 exec, s[{S_MASK_T}:{S_MASK_T+1}]',
             f'    buffer_store_dwordx4 {vr(KP,4)}, {vr(V_OW)}, {WS}, s{S_KMP} offen offset:{w * 512} sc1',
             f'    s_mov_b64 exec, -1']
    PB = min(cfg.get('pb', 5), nE - 1)
    rd = list(others)
    for th in pub_prev: th()
    if nE > 0:
        S.D(PB, lambda: T(a, cfg, 1)); S.D(PB, waits('mw')); S.D(PB, '    s_barrier'); S.D(PB, lambda: T(a, cfg, 2))
        S.D(PB, mread[rd.pop(0)]); S.D(PB, mread[rd.pop(0)])
        S.D(PB, lambda: stamp(a, cfg, 0))
        g = PB + 1
    laststagedQ = None
    if not last:
        for ks in others:
            for sel in range(2):
                i = S.add(Qs(ks, sel))
                if sel == 0: S.P(i, waits(f'm{ks}', 'wq3') if ks >= 6 else waits(f'm{ks}'))
                if ks >= 6: laststagedQ = i
        if laststagedQ is None: laststagedQ = 3
        while rd:
            S.D(g, mread[rd.pop(0)]); g += 1
        groups = []; cur = []
        for x in bgv:
            cur.append(x)
            if x.strip().startswith('buffer') or x.strip().endswith('exec, -1'):
                groups.append(cur); cur = []
        late = groups[2:]
        for x in groups[0]: S.V(1, x)
        for x in groups[1]: S.V(nE + 3, x)
        for x in kmpub: S.V(nE + 8, x)
        bg_late = late
        g = max(g, laststagedQ)
        k = 0
        while k < 8 and g < len(S.mf):
            S.D(g, wkst[k]); k += 1; g += 1
        S.emit()
        while k < 8: wkst[k](); k += 1
    else:
        for x in bgv: a(x)
        for x in kmpub: x() if callable(x) else a(x)
        if nE > 0:
            S.emit()
        else:
            lg.wait('mw'); a('    s_barrier')
        for ks in rd: mread[ks]()
        for th in wkst: th()
    stamp(a, cfg, 1)
    T(a, cfg, 3)
    nonst = [ks for ks in others if ks < 6]
    if w < 3: kord = [6, nonst[0], 7] + nonst[1:]
    else: kord = [0, 6, 1, 7, 2, 3, 4, 5]
    S = Sched(a)
    pos6 = pos7 = None
    for ks in kord:
        for sel in range(2):
            i = S.add(Ks(ks, sel))
            if sel == 0:
                t = [f'm{ks}']
                if ks >= 6: t.append(f'wk{(ks - 6) * 2 + 1}')
                S.P(i, waits(*t))
            if ks == 6: pos6 = i
            if ks == 7: pos7 = i
    nk = len(S.mf)
    Sx, KA, Sm = R_K, R_S, R_S + 24
    if not last:
        S.V(1, pkadd(accQ, accQ, accQ + 2)); S.V(1, pkadd(accQ + 4, accQ + 4, accQ + 6))
        S.V(2, cvt(accQ, accQ, accQ + 1)); S.V(2, cvt(accQ + 4, accQ + 4, accQ + 5))
        S.D(3, lambda: lg.issue(f'    ds_write2_b32 {vr(V_QW)}, {vr(accQ)}, {vr(accQ+4)} offset0:0 offset1:128', 'qw'))
        kx = {(tau, k2): (lambda tau=tau, k2=k2: lg.issue(f'    ds_read_b128 {vr(R_S + tau*16 + 4*k2, 4)}, {vr((V_K0, V_K1)[tau])} offset:{k2 * 2048}', f'kx{tau}{k2}'))
              for tau in range(2) for k2 in range(4)}
        qb = [(lambda k2=k2, hh=hh: lg.issue(f'    ds_read_b64_tr_b16 {vr(R_Q + 4*k2 + 2*hh, 2)}, {vr(V_QR)} offset:{k2 * 1024 + hh * 128}', f'q{k2}'))
              for k2 in range(4) for hh in range(2)]
        g = max(pos6, 4)
        for k2 in range(4):
            S.D(g, kx[(0, k2)]); g += 1
        gb = cfg.get('gb1', 8)
        S.D(gb, waits('qw')); S.D(gb, '    s_barrier'); S.D(gb, lambda: T(a, cfg, 4))
        rest = qb[:]
        gq = gb
        while rest:
            S.D(min(gq, nk - 1), rest.pop(0))
            if rest: S.D(min(gq, nk - 1), rest.pop(0))
            gq += 1
        kx1 = [kx[(1, k2)] for k2 in range(4)]
        for gi, grp in zip((0, 2, 5, 10), (bg_late[0], bg_late[1], bg_late[2], bg_late[4])):
            for x in grp: S.V(gi, x)
        S.emit()
    else:
        S.emit()
    stamp(a, cfg, 2)
    T(a, cfg, 5)
    kf = [pkadd(accK, accK, accK + 2), pkadd(accK + 4, accK + 4, accK + 6), cvt(accK, accK, accK + 1), cvt(accK + 4, accK + 4, accK + 5)]
    kw = lambda: lg.issue(f'    ds_write2_b32 {vr(V_QW)}, {vr(accK)}, {vr(accK+4)} offset0:64 offset1:192', 'kw')
    kar = [(lambda k2=k2, hh=hh: lg.issue(f'    ds_read_b64_tr_b16 {vr(KA + 4*k2 + 2*hh, 2)}, {vr(V_QR)} offset:{256 + k2 * 1024 + hh * 128}', f'k{k2}'))
           for k2 in range(4) for hh in range(2)]
    if not last:
        for th in kx1: th()
        S = Sched(a)
        for tau in range(2):
            for k2 in range(4):
                i = S.add(mf32(Sx + 4 * tau, vr(R_S + tau * 16 + 4 * k2, 4), vr(R_Q + 4 * k2, 4), '0' if k2 == 0 else vr(Sx + 4 * tau, 4)))
                S.P(i, waits(f'q{k2}', f'kx{tau}{k2}'))
        S.V(0, kf[0]); S.V(0, kf[1]); S.V(1, kf[2]); S.V(1, kf[3]); S.D(2, kw)
        S.V(6, mov64(accV)); S.V(6, mov64(accV + 2)); S.V(7, mov64(accV + 4)); S.V(7, mov64(accV + 6))
        S.D(7, waits('kw')); S.D(7, '    s_barrier'); S.D(7, kar[0]); S.D(7, kar[1])
        for x in bg_late[3]: S.V(4, x)
        if len(bg_late) > 5:
            for x in bg_late[5]: S.V(5, x)
        dump(a, cfg, w, 0, R_Q, 16)
        S.emit()
        karest = kar[2:]
    else:
        for x in kf: a(x)
        kw()
        for r in range(0, 8, 2): a(mov64(accV + r))
        lg.wait('kw'); a('    s_barrier')
        karest = kar
    stamp(a, cfg, 3)
    T(a, cfg, 6)
    MX, NEG, T0 = X, X + 2, X + 4
    Px, Lx, ON, Ox = R_K + 8, R_K + 12, R_S + 28, R_K
    vm = [Vs(ks, sel) for ks in range(8) for sel in range(2)]
    kmst = [f'    s_mov_b64 exec, s[{S_MASK_T}:{S_MASK_T+1}]',
            f'    buffer_store_dwordx4 {vr(KA + 4*w,4)}, {vr(V_OW)}, {WS}, s{S_KMO} offen offset:{w * 512} sc1',
            f'    s_mov_b64 exec, -1']
    if last:
        for th in karest: th()
        for x in vm: a(x)
        lg.wait('k3')
        for x in kmst: a(x)
        a(pkadd(accV, accV, accV + 2)); a(pkadd(accV + 4, accV + 4, accV + 6))
        a(cvt(V_VB, accV, accV + 1)); a(cvt(V_VB + 2, accV + 4, accV + 5))
        a(f'    buffer_store_dwordx4 {vr(V_VB,4)}, {vr(V_LIN16)}, {WS}, s{S_VMO} offen offset:{w * 1024} sc1')
        return
    T1 = X + 1
    sx = [f'    v_max3_f32 {vr(MX)}, {vr(Sx)}, {vr(Sx+1)}, {vr(Sx+2)}',
          f'    v_max3_f32 {vr(T1)}, {vr(Sx+3)}, {vr(Sx+4)}, {vr(Sx+5)}',
          f'    v_max3_f32 {vr(MX)}, {vr(MX)}, {vr(Sx+6)}, {vr(Sx+7)}',
          f'    v_max_f32 {vr(MX)}, {vr(MX)}, {vr(T1)}',
          f'    v_mov_b32 {vr(T1)}, {vr(MX)}',
          mov64(ON, f's[{S_ONE2}:{S_ONE2+1}]'),
          f'    v_permlane16_swap_b32 {vr(MX)}, {vr(T1)}',
          mov64(ON + 2, f's[{S_ONE2}:{S_ONE2+1}]'),
          f'    v_max_f32 {vr(MX)}, {vr(MX)}, {vr(T1)}',
          f'    v_mov_b32 {vr(T1)}, {vr(MX)}',
          '    s_nop 0',
          f'    v_permlane32_swap_b32 {vr(MX)}, {vr(T1)}',
          f'    v_max_f32 {vr(MX)}, {vr(MX)}, {vr(T1)}',
          f'    v_mul_f32 {vr(NEG)}, s{S_C}, {vr(MX)}']
    for r in range(4):
        sx.append(f'    v_pk_fma_f32 {vr(Sx+2*r,2)}, {vr(Sx+2*r,2)}, s[{S_CC}:{S_CC+1}], {vr(NEG,2)} op_sel_hi:[1,1,0] neg_lo:[0,0,1] neg_hi:[0,0,1]')
    for r in range(8):
        sx.append(f'    v_exp_f32 {vr(Sx+r)}, {vr(Sx+r)}')
    for r in range(4):
        sx.append(cvt(Px + r, Sx + 2 * r, Sx + 2 * r + 1))
    NV1 = cfg.get('nv1', 8)
    S = Sched(a)
    for x in vm[:NV1]: S.add(x)
    g = 0
    while karest:
        S.D(g, karest.pop(0)); S.D(g, karest.pop(0)); g += 1
    q = list(sx)
    per = -(-len(q) // NV1)
    for g in range(NV1):
        for x in q[:per]: S.V(g, x)
        q = q[per:]
    b = len(S.mf)
    for k2 in range(4):
        i = S.add(mf32(Sm, vr(KA + 4 * k2, 4), vr(R_Q + 4 * k2, 4), '0' if k2 == 0 else vr(Sm, 4)))
        S.P(i, waits(f'k{k2}'))
    S.P(b, lambda: T(a, cfg, 7))
    for phi in range(2):
        S.add(mf32(Ox + 4 * phi, vr(V_VX + 4 * phi, 4), vr(Px, 4), '0'))
    il = S.add(mf32(Lx, vr(ON, 4), vr(Px, 4), '0'))
    S.V(il - 1, f'    buffer_load_dwordx4 {vr(V_VX,4)}, {vr(V_VLD)}, {WS}, s{S_VSRC} offen')
    S.V(il, f'    buffer_load_dwordx4 {vr(V_VX+4,4)}, {vr(V_VLD)}, {WS}, s{S_VSRC} offen offset:256')
    MM = X + 1
    S0 = Px + 0
    al = T0
    sl = [f'    v_max3_f32 {vr(MM)}, {vr(Sm)}, {vr(Sm+1)}, {vr(Sm+2)}',
          f'    v_cndmask_b32 {vr(S0)}, {vr(Sm)}, {vr(Sm+2)}, s[{S_MASK_ODD}:{S_MASK_ODD+1}]',
          f'    v_max3_f32 {vr(MM)}, {vr(MM)}, {vr(Sm+3)}, {vr(MX)}',
          f'    v_cndmask_b32 {vr(S0+1)}, {vr(Sm+1)}, {vr(Sm+3)}, s[{S_MASK_ODD}:{S_MASK_ODD+1}]',
          f'    v_mov_b32 {vr(al)}, {vr(MM)}',
          mov64(R_Q), mov64(R_Q + 2),
          f'    v_permlane32_swap_b32 {vr(MM)}, {vr(al)}',
          f'    v_max_f32 {vr(MM)}, {vr(MM)}, {vr(al)}',
          f'    v_mul_f32 {vr(NEG)}, s{S_C}, {vr(MM)}',
          f'    v_sub_f32 {vr(al)}, {vr(MX)}, {vr(MM)}',
          f'    v_pk_fma_f32 {vr(S0,2)}, {vr(S0,2)}, s[{S_CC}:{S_CC+1}], {vr(NEG,2)} op_sel_hi:[1,1,0] neg_lo:[0,0,1] neg_hi:[0,0,1]',
          f'    v_mul_f32 {vr(al)}, s{S_C}, {vr(al)}',
          f'    v_exp_f32 {vr(S0)}, {vr(S0)}',
          f'    v_exp_f32 {vr(S0+1)}, {vr(S0+1)}',
          f'    v_exp_f32 {vr(al)}, {vr(al)}',
          cvt(Px + 2, S0, S0 + 1)]
    for r in range(4):
        sl.append(f'    v_pk_mul_f32 {vr(Ox+2*r,2)}, {vr(Ox+2*r,2)}, {vr(al,2)} op_sel_hi:[1,0]')
    sl.append(f'    v_mul_f32 {vr(Lx)}, {vr(Lx)}, {vr(al)}')
    b2 = len(S.mf)
    for x in vm[NV1:]: S.add(x)
    nrem = 16 - NV1
    first = cfg.get('slfirst', 1)
    q = list(sl)
    per = -(-len(q) // (nrem - first))
    for g in range(first, nrem):
        for x in q[:per]: S.V(b2 + g, x)
        q = q[per:]
    S.emit()
    stamp(a, cfg, 4)
    T(a, cfg, 8)
    PM16 = Px + 2
    nyoung = 2 + 2 + 2 + 1 + 1 + 2 + (1 if (cfg.get('progress') and w == 0) else 0)
    a(f'    s_waitcnt vmcnt({nyoung})')
    stg = []
    for tau in range(4): stg += stage(lg, R_M + tau * 8, 8 + tau, f'wo{tau}')
    seq = [stg[0], mov64(R_Q + 4), mov64(R_Q + 6), stg[1],
           pkadd(accV, accV, accV + 2), pkadd(accV + 4, accV + 4, accV + 6), stg[2],
           cvt(V_VB, accV, accV + 1), cvt(V_VB + 2, accV + 4, accV + 5), stg[3]]
    for x in seq: x() if callable(x) else a(x)
    for phi in range(2):
        a(f'    v_mfma_f32_16x16x16_bf16 {vr(Ox + 4*phi, 4)}, {vr(V_VB + 2*phi, 2)}, {vr(PM16, 2)}, {vr(Ox + 4*phi, 4)}')
    a(f'    v_mfma_f32_16x16x16_bf16 {vr(Lx, 4)}, {vr(V_ON16, 2)}, {vr(PM16, 2)}, {vr(Lx, 4)}')
    for r in range(8, 16, 2): a(mov64(R_Q + r))
    stg[4](); stg[5]()
    a(f'    v_rcp_f32 {vr(al)}, {vr(Lx)}')
    for r in range(4):
        a(f'    v_pk_mul_f32 {vr(Ox+2*r,2)}, {vr(Ox+2*r,2)}, {vr(al,2)} op_sel_hi:[1,0]')
    dump(a, cfg, w, 2, Ox, 8)
    O4 = Px
    for r in range(4): a(cvt(O4 + r, Ox + 2 * r, Ox + 2 * r + 1))
    a(f'    s_mov_b64 exec, s[{S_MASK_T}:{S_MASK_T+1}]')
    lg.issue(f'    ds_write_b128 {vr(V_OW)}, {vr(O4,4)} offset:{LDS_OX + w * 512}', 'ow')
    a('    s_mov_b64 exec, -1')
    for r in range(0, 8, 2): a(mov64(R_K + r))
    T(a, cfg, 9)
    lg.wait('ow')
    a('    s_barrier')
    T(a, cfg, 10)
    OA = R_S + 24
    for kap in range(2):
        lg.issue(f'    ds_read_b128 {vr(OA + 4*kap, 4)}, {vr(V_OR)} offset:{kap * 1024}', f'oa{kap}')
    stg[6](); stg[7]()
    for r in range(8, 16, 2): a(mov64(R_K + r))
    stamp(a, cfg, 5)
    dump(a, cfg, w, 4, OA, 8)
    accO = [R_Q + 4 * i for i in range(4)] + [R_K + 4 * i for i in range(4)]
    def src1(tau): return R_M + tau * 8 if tau < 4 else (R_S + (tau - 4) * 8 if tau < 7 else R_M)
    stg2 = []
    for tau in range(4, 7): stg2 += stage(lg, R_S + (tau - 4) * 8, 8 + tau, f'wo{tau}')
    last7 = stage(lg, R_M, 8 + 7, 'wo7')
    def gran(q):
        T = [accO[4 * q + t] for t in range(4)]
        ins = [pkadd(T[t], T[t], T[t] + 2) for t in range(4)]
        ins += [cvt(T[0], T[0], T[0] + 1), cvt(T[0] + 1, T[1], T[1] + 1), cvt(T[0] + 2, T[2], T[2] + 1), cvt(T[0] + 3, T[3], T[3] + 1)]
        ins.append(f'    buffer_store_dwordx4 {vr(T[0],4)}, {vr(V_LIN16)}, {WS}, s{S_PST} offen offset:{q*1024} {ST}')
        return ins
    S = Sched(a)
    order = [(0,0),(1,0),(2,0),(3,0),(4,0),(5,0),(0,1),(1,1),(2,1),(3,1),(6,0),(7,0),(4,1),(5,1),(6,1),(7,1)]
    idx = {}
    for tau, kap in order:
        if kap == 0:
            i = S.add(smf(accO[tau], OA, wo0(tau))); S.P(i, waits('oa0'))
        else:
            i = S.add(smf(accO[tau], OA + 4, vr(src1(tau), 8))); S.P(i, waits('oa1', f'wo{tau}'))
        idx[(tau, kap)] = i
    for k, th in enumerate(stg2): S.D(k, th)
    S.D(idx[(0, 1)], last7[0]); S.D(idx[(0, 1)] + 1, last7[1])
    g0 = gran(0)
    p = idx[(3, 1)] + 2
    S.V(p, g0[0]); S.V(p, g0[1]); S.V(p + 1, g0[2]); S.V(p + 1, g0[3]); S.V(p + 2, g0[4]); S.V(p + 2, g0[5]); S.V(p + 3, g0[6]); S.V(p + 3, g0[7]); S.V(p + 4, g0[8])
    S.emit()
    for x in gran(1): a(x)
    stamp(a, cfg, 6)
    T(a, cfg, 11)
    PA, D, SEL = R_Q, R_Q + 8, R_Q + 12
    lg2 = LG(a)
    a(f'    v_mov_b32 {vr(X)}, 0x3f80')
    a(f'    v_mov_b32 {vr(X+1)}, 0x3f800000')
    a(f'    v_cndmask_b32 {vr(X)}, {vr(X)}, {vr(X+1)}, s[{S_MASK_ODDL}:{S_MASK_ODDL+1}]')
    for u in range(4):
        a(f'    v_cndmask_b32 {vr(SEL+u)}, 0, {vr(X)}, s[{S_SEL+2*u}:{S_SEL+2*u+1}]')
    for f in range(4):
        for th in stage(lg2, R_S + f * 8, f): th()
    for r in range(0, 16, 2): a(mov64(R_K + r))
    a(mov64(X + 2, '-1')); a(mov64(X + 4, '-1'))
    a(f'    s_mov_b32 s{S_CNT}, 0')
    delay(a, cfg.get('d1', 0))
    a(hop1_loads())
    T(a, cfg, 12)
    np1 = cfg.get('np1', 1)
    for i in range(np1 - 1):
        delay(a, cfg.get('g1', 0))
        a(hop1_loads())
    a(f'L_p1w_{tag}:')
    a(f'    s_waitcnt vmcnt({2 * (np1 - 1)})')
    a(mf32(D, vr(SEL, 4), vr(PA, 4), '0'))
    a(mf32(D, vr(SEL, 4), vr(PA + 4, 4), vr(D, 4)))
    a(f'    v_cmp_u_f32 vcc, {vr(D)}, {vr(D)}')
    a(f'    s_cbranch_vccnz L_p1r_{tag}')
    a(f'L_p1d_{tag}:')
    ool.append(lambda: retry_block(a, f'L_p1r_{tag}', f'L_p1w_{tag}', f'L_p1d_{tag}', hop1_loads()))
    stamp(a, cfg, 7)
    T(a, cfg, 13)
    for r in range(4):
        a(f'    v_add_f32_dpp {vr(D+r)}, {vr(D+r)}, {vr(D+r)} row_ror:8 row_mask:0xf bank_mask:0xf')
    for r in range(4):
        a(f'    v_add_f32_dpp {vr(D+r)}, {vr(D+r)}, {vr(D+r)} row_ror:4 row_mask:0xf bank_mask:0xf')
    a(f"""
    v_cvt_pk_bf16_f32 {vr(D)}, {vr(D)}, {vr(D+2)}
    v_cvt_pk_bf16_f32 {vr(D+1)}, {vr(D+1)}, {vr(D+3)}
    s_mov_b64 exec, s[{S_MASK_M}:{S_MASK_M+1}]
    v_cndmask_b32 {vr(D)}, {vr(D)}, {vr(D+1)}, s[{S_MASK_PB}:{S_MASK_PB+1}]
    v_min_u32 {vr(D)}, -2, {vr(D)}
    buffer_store_dword {vr(D)}, {vr(V_MST)}, {WS}, s{S_MNXT} offen {ST}
""")
    if cfg.get('dbgm'):
        a(f"""
    s_add_u32 s{S_DBGM}, s{S_DBGM}, 8192
    buffer_store_dword {vr(D)}, {vr(V_MST)}, {WS}, s{S_DBGM} offen
""")
    a(f"""
    buffer_store_dword {vr(X+2)}, {vr(V_MST)}, {WS}, s{S_MCUR} offen {ST}
    s_mov_b64 exec, -1
""")
    stamp(a, cfg, 8)
    T(a, cfg, 14)
    a(f"""
    s_add_u32 s{S_MPOLL}, s{S_MNXT}, {w * 2048}
    s_mov_b32 s{S_CNT}, 0
    s_add_u32 s{S_STEP}, s{S_STEP}, 1
""")
    delay(a, cfg.get('d2', 0))
    a(hop2_loads(w))
    a(f"""
    s_mov_b32 s{S_T0}, s{S_MCUR}
    s_mov_b32 s{S_MCUR}, s{S_MNXT}
    s_mov_b32 s{S_MNXT}, s{S_MOTH}
    s_mov_b32 s{S_MOTH}, s{S_T0}
    s_xor_b32 s{S_PST}, s{S_PST}, 0x40000
    s_mov_b32 s{S_PR0}, s{S_PL0}
    s_mov_b32 s{S_PR1}, s{S_PL1}
    s_xor_b32 s{S_PL0}, s{S_PL0}, 0x40000
    s_xor_b32 s{S_PL1}, s{S_PL1}, 0x40000
    s_add_u32 s{S_KSRC}, s{S_KSRC}, 0x40000
    s_xor_b32 s{S_KDST}, s{S_KDST}, 8192
    s_add_u32 s{S_VSRC}, s{S_VSRC}, 0x40000
    s_mov_b32 s{S_KMP}, s{S_KMO}
    s_mov_b32 s{S_VMP}, s{S_VMO}
    s_add_u32 s{S_KMO}, s{S_KMO}, 65536
    s_add_u32 s{S_VMO}, s{S_VMO}, 131072
    v_xor_b32 {vr(V_K0)}, 0x2000, {vr(V_K0)}
    v_xor_b32 {vr(V_K1)}, 0x2000, {vr(V_K1)}
""")
    T(a, cfg, 15)
    stamp_accum(a, cfg)
    trace_dump(a, cfg, w) if not last else None
    for i in range(np2 - 1):
        delay(a, cfg.get('g2', 0))
        a(hop2_loads(w))

def emit_wave(a, cfg, w):
    ool = []
    emit_setup(a, cfg, w)
    emit_init(a, cfg, w)
    a('    s_barrier')
    if w == 0:
        a(f"""
    s_mov_b64 exec, 1
    v_mov_b32 {vr(R_S)}, 64
    v_mov_b32 {vr(R_S+1)}, 1
    global_atomic_add {vr(R_S)}, {vr(R_S+1)}, s[{S_DBG}:{S_DBG+1}]
    s_mov_b64 exec, -1
    s_waitcnt vmcnt(0)
""")
    emit_weight_prologue(a, cfg, w)
    a(f"""
    s_lshl_b32 s{S_T0}, s{S_H}, 13
    s_add_u32 s{S_T0}, s{S_T0}, {w * 2048}
    s_add_u32 s{S_KSRC}, s{S_T0}, {WS_K}
    s_mov_b32 s{S_KDST}, {LDS_KB + w * 2048}
    s_mov_b32 m0, s{S_KDST}
    s_add_u32 s{S_VSRC}, s{S_T0}, {WS_V}
    buffer_load_dwordx4 {vr(V_LIN16)}, {WS}, s{S_KSRC} offen lds
    buffer_load_dwordx4 {vr(V_LIN16)}, {WS}, s{S_KSRC} offen offset:1024 lds
    buffer_load_dwordx4 {vr(V_VX,4)}, {vr(V_VLD)}, {WS}, s{S_VSRC} offen
    buffer_load_dwordx4 {vr(V_VX+4,4)}, {vr(V_VLD)}, {WS}, s{S_VSRC} offen offset:256
    s_add_u32 s{S_KSRC}, s{S_KSRC}, 0x40000
    s_xor_b32 s{S_KDST}, s{S_KDST}, 8192
    s_add_u32 s{S_VSRC}, s{S_VSRC}, 0x40000
    s_mov_b32 s{S_STEP}, 0
    s_mov_b32 s{S_MCUR}, {WS_M}
    s_mov_b32 s{S_MNXT}, {WS_M + 8192}
    s_mov_b32 s{S_MOTH}, {WS_M + 16384}
    s_lshl_b32 s{S_T0}, s{S_H}, 13
    s_add_u32 s{S_PST}, s{S_T0}, {WS_P + w * 2048}
    s_mov_b32 s{S_PL0}, {WS_P}
    s_mov_b32 s{S_PL1}, {WS_P + 131072}
    s_mov_b32 s{S_PR0}, {WS_P + 262144}
    s_mov_b32 s{S_PR1}, {WS_P + 262144 + 131072}
    s_lshl_b32 s{S_T0}, s{S_H}, 11
    s_add_u32 s{S_KMO}, s{S_T0}, {WS_KM}
    s_lshl_b32 s{S_T0}, s{S_H}, 12
    s_add_u32 s{S_VMO}, s{S_T0}, {WS_VM}
    s_mov_b32 s{S_DBGM}, {WS_DBGM}
    s_mov_b32 s{S_KMP}, 0x0F000000
    s_mov_b32 s{S_VMP}, 0x0F000000
    s_mov_b32 s96, {f2u(SOFT_C):#x}
    s_mov_b32 s97, {f2u(SOFT_C):#x}
    s_mov_b32 s98, 0x3f803f80
    s_mov_b32 s99, 0x3f803f80
    s_mov_b32 s{S_MASK_ODDL}, 0xaaaaaaaa
    s_mov_b32 s{S_MASK_ODDL+1}, 0xaaaaaaaa
    v_mov_b32 {vr(R_S)}, 64
    s_mov_b32 s{S_CNT}, 0
L_cb{w}:
    global_load_dword {vr(R_S+1)}, {vr(R_S)}, s[{S_DBG}:{S_DBG+1}] sc1
    s_waitcnt vmcnt(0)
    v_readfirstlane_b32 s{S_T0}, {vr(R_S+1)}
    s_cmp_ge_u32 s{S_T0}, 32
    s_cbranch_scc1 L_cbd{w}
    s_add_u32 s{S_CNT}, s{S_CNT}, 1
    s_cmp_lt_u32 s{S_CNT}, s{S_ERR}
    s_cbranch_scc1 L_cb{w}
    s_mov_b32 s{S_ERR}, 0
L_cbd{w}:
""")
    for k in range(10):
        a(f'    s_mov_b32 s{STAMP_ACC+k}, 0')
    a('    s_barrier')
    lg = LG(a)
    idle_prep(a, lg)
    a(mov64(R_X + 2, '-1')); a(mov64(R_X + 4, '-1'))
    a(f"""
    s_add_u32 s{S_MPOLL}, s{S_MCUR}, {w * 2048}
    s_mov_b32 s{S_CNT}, 0
""")
    a(hop2_loads(w))
    a(f"""
    s_memtime s[{S_TM0}:{S_TM0+1}]
    s_waitcnt vmcnt(0) lgkmcnt(0)
    s_mov_b32 s94, s{S_TM0}
L_step{w}:
""")
    emit_step(a, cfg, w, False, ool)
    a(f"""
    s_cmp_lt_u32 s{S_STEP}, {cfg.get('nsteps', 63)}
    s_cbranch_scc1 L_step{w}
""")
    emit_step(a, cfg, w, True, ool)
    a(f"""
    s_waitcnt vmcnt(0)
    s_barrier
    s_memtime s[{S_TM1}:{S_TM1+1}]
    s_waitcnt lgkmcnt(0)
""")
    if cfg.get('progress') and w == 0:
        a(f"""
    s_mov_b64 exec, 1
    v_mov_b32 {vr(R_X)}, 64
    s_lshl_b32 s{S_T0}, s{S_H}, 2
    v_mov_b32 {vr(R_X+1)}, s{S_T0}
    global_store_dword {vr(R_X+1)}, {vr(R_X)}, s[{S_DBG}:{S_DBG+1}] offset:128 sc1
    s_mov_b64 exec, -1
""")
    if cfg.get('timing'):
        a(f"""
    s_sub_u32 s{S_TM1}, s{S_TM1}, s{S_TM0}
    s_lshl_b32 s{S_T0}, s{S_H}, 2
    s_add_u32 s{S_T0}, s{S_T0}, {w}
    s_lshl_b32 s{S_T0}, s{S_T0}, 7
    s_add_u32 s{S_T0}, s{S_T0}, 0x1000
    s_mov_b64 exec, 1
    v_mov_b32 {vr(R_X)}, 0
    v_mov_b32 {vr(R_X+1)}, s{S_TM1}
    buffer_store_dword {vr(R_X+1)}, {vr(R_X)}, {WS}, s{S_T0} offen
    v_mov_b32 {vr(R_X+1)}, s{S_ERR}
    buffer_store_dword {vr(R_X+1)}, {vr(R_X)}, {WS}, s{S_T0} offen offset:4
""")
        for k in range(12):
            a(f'    v_mov_b32 {vr(R_X+1)}, s{STAMP_ACC+min(k,9)}')
            a(f'    buffer_store_dword {vr(R_X+1)}, {vr(R_X)}, {WS}, s{S_T0} offen offset:{8+4*k}')
        a('    s_mov_b64 exec, -1')
    a('    s_branch L_chain_end')
    for f in ool: f()

class Filt:
    def __init__(self, a, cfg): self.a = a; self.cfg = cfg; self.lines = a.lines
    def __call__(self, text):
        out = []
        for ln in text.split('\n'):
            if self.cfg.get('nopub') and ('sc1' in ln and 'store_dwordx4' in ln): continue
            if self.cfg.get('nokv') and (' lds' in ln and f's{S_KSRC}' in ln): continue
            if self.cfg.get('nokv') and (f's{S_VSRC} offen' in ln): continue
            if self.cfg.get('noreset') and (f's{S_PR0} offen' in ln or f's{S_PR1} offen' in ln):
                continue
            out.append(ln)
        self.a('\n'.join(out))
    def label(self, n): self.a.label(n)

def emit_chain(a, cfg):
    a = Filt(a, cfg)
    a(f"""
    s_load_dwordx2 s[{S_WSP}:{S_WSP+1}], s[0:1], {KA_WS}
    s_load_dwordx2 s[{S_DBG}:{S_DBG+1}], s[0:1], {KA_DBG}
    s_load_dwordx2 s[{SRD_Q}:{SRD_Q+1}], s[0:1], {KA_WQ}
    s_load_dwordx2 s[{SRD_K}:{SRD_K+1}], s[0:1], {KA_WK}
    s_load_dwordx2 s[{SRD_V}:{SRD_V+1}], s[0:1], {KA_WV}
    s_load_dwordx2 s[{SRD_O}:{SRD_O+1}], s[0:1], {KA_WO}
    s_load_dwordx2 s[{SRD_A}:{SRD_A+1}], s[0:1], {KA_MEM0}
    s_waitcnt lgkmcnt(0)
    s_mov_b32 s{SRD_WS}, s{S_WSP}
    s_mov_b32 s{SRD_WS+1}, s{S_WSP+1}
    s_mov_b32 s{SRD_WS+2}, {WS_SIZE}
    s_mov_b32 s{SRD_WS+3}, 0x20000
    s_mov_b32 s{SRD_A+2}, 8192
    s_mov_b32 s{SRD_A+3}, 0x20000
""")
    for S in (SRD_Q, SRD_K, SRD_V, SRD_O):
        a(f'    s_mov_b32 s{S+2}, 0x400000\n    s_mov_b32 s{S+3}, 0x20000')
    a(f'    s_mov_b32 s{S_ERR}, {cfg.get("maxpoll", 20000)}')
    for w in range(1, 4):
        a(f'    s_cmp_eq_u32 s{S_W}, {w}\n    s_cbranch_scc1 L_wave{w}')
    for w in range(4):
        a(f'L_wave{w}:')
        emit_wave(a, cfg, w)
    a('L_chain_end:')
```

```python
from asmlib import *
from layout import *

S_W = 4
SRD_WS, SRD_WO, SRD_W2, SRD_OUT = 8, 12, 16, 20
S_SL, S_SEG, S_NSEG = 5, 6, 7
S_OA, S_HA, S_OAN, S_HAN = 24, 25, 26, 27
S_T0, S_T1, S_T2 = 28, 29, 30
S_STEP, S_END = 31, 32
WS = f's[{SRD_WS}:{SRD_WS+3}]'
V_LIN16, V_L, V_TR, V_DM, V_RW, V_RR, V_GA, V_OUT, V_TMP = 0, 1, 2, 3, 4, 5, 6, 7, 8
ACC_A, ACC_B = 12, 28 + 0
ACC_A, ACC_B = 16, 32
V_BUF = 48
NB = 24
V_W2 = 144
LDS_RED = 0

def wo(hh, jj): return ar((hh * 8 + jj) * 4, 4)
def w2(j): return vr(V_W2 + 4 * j, 4)

def emit_setup(a):
    L = V_L; t0, t1, t2 = 16, 17, 18
    a(f'''
    v_and_b32 {vr(L)}, 63, v0
    v_lshlrev_b32 {vr(V_LIN16)}, 4, {vr(L)}
    v_lshrrev_b32 {vr(t0)}, 2, {vr(L)}
    v_lshlrev_b32 {vr(t0)}, 10, {vr(t0)}
    v_and_b32 {vr(t1)}, 3, {vr(L)}
    v_lshlrev_b32 {vr(t1)}, 4, {vr(t1)}
    v_add_u32 {vr(V_DM)}, {vr(t0)}, {vr(t1)}
    v_lshrrev_b32 {vr(t0)}, 5, {vr(L)}
    v_lshlrev_b32 {vr(t0)}, 8, {vr(t0)}
    v_bfe_u32 {vr(t1)}, {vr(L)}, 2, 2
    v_lshlrev_b32 {vr(t1)}, 6, {vr(t1)}
    v_add_u32 {vr(t0)}, {vr(t0)}, {vr(t1)}
    v_bfe_u32 {vr(t1)}, {vr(L)}, 4, 1
    v_lshlrev_b32 {vr(t1)}, 5, {vr(t1)}
    v_and_b32 {vr(t2)}, 3, {vr(L)}
    v_lshlrev_b32 {vr(t2)}, 3, {vr(t2)}
    v_add3_u32 {vr(t0)}, {vr(t0)}, {vr(t1)}, {vr(t2)}
    s_lshl_b32 s{S_T0}, s{S_W}, 15
    v_add_u32 {vr(V_TR)}, s{S_T0}, {vr(t0)}
    v_and_b32 {vr(t0)}, 31, {vr(L)}
    v_lshlrev_b32 {vr(t1)}, 7, {vr(t0)}
    v_and_b32 {vr(t0)}, 7, {vr(t0)}
    v_lshrrev_b32 {vr(t2)}, 5, {vr(L)}
    v_xor_b32 {vr(t0)}, {vr(t0)}, {vr(t2)}
    v_lshlrev_b32 {vr(t0)}, 4, {vr(t0)}
    v_add_u32 {vr(t0)}, {vr(t0)}, {vr(t1)}
    s_lshl_b32 s{S_T0}, s{S_W}, 13
    v_add_u32 {vr(V_RW)}, s{S_T0}, {vr(t0)}
    v_lshrrev_b32 {vr(t0)}, 3, {vr(L)}
    v_and_b32 {vr(t1)}, 7, {vr(L)}
    v_xor_b32 {vr(t2)}, {vr(t0)}, {vr(t1)}
    v_lshlrev_b32 {vr(t2)}, 4, {vr(t2)}
    v_lshlrev_b32 {vr(t0)}, 7, {vr(t0)}
    v_add_u32 {vr(t2)}, {vr(t2)}, {vr(t0)}
    s_lshl_b32 s{S_T0}, s{S_W}, 10
    v_add_u32 {vr(V_RR)}, s{S_T0}, {vr(t2)}
    v_lshrrev_b32 {vr(t0)}, 3, {vr(L)}
    s_lshl_b32 s{S_T0}, s{S_W}, 3
    v_add_u32 {vr(t0)}, s{S_T0}, {vr(t0)}
    v_lshlrev_b32 {vr(V_GA)}, 2, {vr(t0)}
    v_lshlrev_b32 {vr(t0)}, 10, {vr(t0)}
    v_lshlrev_b32 {vr(t1)}, 3, {vr(t1)}
    v_add_u32 {vr(V_OUT)}, {vr(t0)}, {vr(t1)}
''')

def emit_weights(a):
    def batch(srd, row0_sgpr_expr, nrows, frags):
        a(f'    s_lshl_b32 s{S_T1}, s{S_W}, 15')
        for i in range(nrows // 16):
            a(f'    s_mov_b32 m0, s{S_T1}')
            a(f'    buffer_load_dwordx4 {vr(V_DM)}, s[{srd}:{srd+3}], s{S_T0} offen lds')
            a(f'    s_add_u32 s{S_T0}, s{S_T0}, 16384')
            a(f'    s_add_u32 s{S_T1}, s{S_T1}, 1024')
        a('    s_waitcnt vmcnt(0)')
        for n, (cls, reg, blk) in enumerate(frags):
            for rr in range(2):
                d = (ar if cls == 'a' else vr)(reg + 2 * rr, 2)
                a(f'    ds_read_b64_tr_b16 {d}, {vr(V_TR)} offset:{blk * 1024 + rr * 512}')
            if n % 6 == 5: a('    s_waitcnt lgkmcnt(0)')
        a('    s_waitcnt lgkmcnt(0)')
    a(f'''
    s_lshl_b32 s{S_T0}, s{S_W}, 20
    s_lshl_b32 s{S_T2}, s{S_SL}, 6
    s_add_u32 s{S_T0}, s{S_T0}, s{S_T2}
''')
    for half in range(2):
        frags = [('a', ((half * 4 + hh) * 8 + jj) * 4, hh * 8 + jj) for hh in range(4) for jj in range(8)]
        batch(SRD_WO, None, 512, frags)
    a(f'''
    s_mul_i32 s{S_T0}, s{S_W}, {448 * 1024}
    s_add_u32 s{S_T0}, s{S_T0}, s{S_T2}
''')
    batch(SRD_W2, None, 448, [('v', V_W2 + 4 * j, j) for j in range(28)])

def seg_offsets(a, seg, so, sh):
    a(f'''
    s_lshl_b32 s{so}, s{seg}, 18                 ; seg*32*8192
    s_lshl_b32 s{S_T0}, s{S_W}, 16               ; 8 heads * 8192
    s_add_u32 s{so}, s{so}, s{S_T0}
    s_add_u32 s{so}, s{so}, {WS_O}
    s_mul_i32 s{sh}, s{seg}, {H_SEG}
    s_mul_i32 s{S_T0}, s{S_W}, {28 * 1024}
    s_add_u32 s{sh}, s{sh}, s{S_T0}
    s_add_u32 s{sh}, s{sh}, {WS_H}
''')

NL = 92
def load_i(a, i, nxt, fl):
    buf = V_BUF + 4 * (i % NB)
    if i < 28: base, off = (S_HAN if nxt else S_HA), i * 1024
    else: base, off = (S_OAN if nxt else S_OA), (i - 28) * 1024
    if off >= 4096:
        a(f'    s_add_u32 s{S_T1}, s{base}, {off & ~4095}')
        a(f'    buffer_load_dwordx4 {vr(buf,4)}, {vr(V_LIN16)}, {WS}, s{S_T1} offen offset:{off & 4095} {fl}')
    else:
        a(f'    buffer_load_dwordx4 {vr(buf,4)}, {vr(V_LIN16)}, {WS}, s{base} offen offset:{off} {fl}')

def emit_epilogue(a):
    T = V_TMP
    for ab, A in ((0, ACC_A), (1, ACC_B)):
        for q in range(4):
            a(f'    v_xor_b32 {vr(T)}, {(2 * q) << 4}, {vr(V_RW)}')
            a(f'    ds_write_b128 {vr(T)}, {vr(A + 4*q, 4)} offset:{LDS_RED + ab * 4096}')
    a('    s_waitcnt lgkmcnt(0)')
    a('    s_barrier')
    for ab, A in ((0, ACC_A), (1, ACC_B)):
        for w in range(4):
            a(f'    ds_read_b128 {vr(A + 4*w, 4)}, {vr(V_RR)} offset:{LDS_RED + w * 8192 + ab * 4096}')
    a('    s_waitcnt lgkmcnt(0)')
    a('    s_barrier')
    for A in (ACC_A, ACC_B):
        for i in (0, 2):
            a(f'    v_pk_add_f32 {vr(A+i,2)}, {vr(A+i,2)}, {vr(A+4+i,2)}')
            a(f'    v_pk_add_f32 {vr(A+8+i,2)}, {vr(A+8+i,2)}, {vr(A+12+i,2)}')
        for i in (0, 2):
            a(f'    v_pk_add_f32 {vr(A+i,2)}, {vr(A+i,2)}, {vr(A+8+i,2)}')
    G, OMG = 9, 10
    def rnd(r):
        a(f'    v_cvt_pk_bf16_f32 {vr(T)}, {vr(r)}, {vr(r+1)}')
        a(f'    v_lshlrev_b32 {vr(r)}, 16, {vr(T)}')
        a(f'    v_and_b32 {vr(r+1)}, 0xffff0000, {vr(T)}')
    a(f'    v_sub_f32 {vr(OMG)}, 1.0, {vr(G)}')
    a(f'    v_cvt_pk_bf16_f32 {vr(OMG)}, {vr(OMG)}, {vr(OMG)}')
    a(f'    v_and_b32 {vr(OMG)}, 0xffff0000, {vr(OMG)}')
    for i in (0, 2):
        rnd(ACC_A + i); rnd(ACC_B + i)
    for i in range(4):
        a(f'    v_mul_f32 {vr(ACC_A+i)}, {vr(ACC_A+i)}, {vr(G)}')
        a(f'    v_mul_f32 {vr(ACC_B+i)}, {vr(ACC_B+i)}, {vr(OMG)}')
    for i in (0, 2):
        rnd(ACC_A + i); rnd(ACC_B + i)
    for i in (0, 2):
        a(f'    v_pk_add_f32 {vr(ACC_A+i,2)}, {vr(ACC_A+i,2)}, {vr(ACC_B+i,2)}')
    a(f'    v_cvt_pk_bf16_f32 {vr(ACC_A+4)}, {vr(ACC_A)}, {vr(ACC_A+1)}')
    a(f'    v_cvt_pk_bf16_f32 {vr(ACC_A+5)}, {vr(ACC_A+2)}, {vr(ACC_A+3)}')
    a(f'''
    s_lshl_b32 s{S_T0}, s{S_SEG}, 15            ; seg*32*1024
    s_lshl_b32 s{S_T1}, s{S_SL}, 6
    s_add_u32 s{S_T0}, s{S_T0}, s{S_T1}
    buffer_store_dwordx2 {vr(ACC_A+4,2)}, {vr(V_OUT)}, s[{SRD_OUT}:{SRD_OUT+3}], s{S_T0} offen
''')

def emit_seg(a, fl=''):
    a(f'''
    s_lshl_b32 s{S_T0}, s{S_SEG}, 7
    s_add_u32 s{S_T0}, s{S_T0}, {WS_G}
    buffer_load_dword v9, {vr(V_GA)}, {WS}, s{S_T0} offen
''')
    for i in range(NL):
        extra = 2 if i < NB else 0
        a(f'    s_waitcnt vmcnt({NB - 1 + extra})')
        buf = vr(V_BUF + 4 * (i % NB), 4)
        if i < 28:
            a(f'    v_mfma_f32_32x32x16_bf16 {vr(ACC_B,16)}, {w2(i)}, {buf}, {"0" if i == 0 else vr(ACC_B,16)}')
        else:
            k = i - 28
            a(f'    v_mfma_f32_32x32x16_bf16 {vr(ACC_A,16)}, {wo(k // 8, k % 8)}, {buf}, {"0" if k == 0 else vr(ACC_A,16)}')
        j = i + NB
        if j < NL: load_i(a, j, False, fl)
        else: load_i(a, j - NL, True, fl)
    emit_epilogue(a)

def emit_fin_kernel(a, cfg):
    a(f"""
    s_load_dwordx2 s[{SRD_WS}:{SRD_WS+1}], s[0:1], {KA_WS}
    s_load_dwordx2 s[{SRD_WO}:{SRD_WO+1}], s[0:1], {KA_WO}
    s_load_dwordx2 s[{SRD_W2}:{SRD_W2+1}], s[0:1], {KA_W2}
    s_load_dwordx2 s[{SRD_OUT}:{SRD_OUT+1}], s[0:1], {KA_OUT}
    v_lshrrev_b32 v1, 6, v0
    s_nop 1
    v_readfirstlane_b32 s{S_W}, v1
    s_waitcnt lgkmcnt(0)
    s_mov_b32 s{SRD_WS+2}, {WS_SIZE}
    s_mov_b32 s{SRD_WS+3}, 0x20000
    s_mov_b32 s{SRD_WO+2}, 0x400000
    s_mov_b32 s{SRD_WO+3}, 0x20000
    s_mov_b32 s{SRD_W2+2}, {1792 * 1024}
    s_mov_b32 s{SRD_W2+3}, 0x20000
    s_mov_b32 s{SRD_OUT+2}, {2048 * 1024}
    s_mov_b32 s{SRD_OUT+3}, 0x20000
    s_lshr_b32 s{S_SL}, s2, 3
    s_and_b32 s{S_SL}, s{S_SL}, 15
    s_and_b32 s{S_SEG}, s2, 7
    s_lshl_b32 s{S_SEG}, s{S_SEG}, 1
    s_lshr_b32 s{S_T0}, s2, 7
    s_add_u32 s{S_SEG}, s{S_SEG}, s{S_T0}
""")
    emit_setup(a)
    emit_weights(a)
    a('    s_barrier')
    seg_offsets(a, S_SEG, S_OA, S_HA)
    for i in range(NB): load_i(a, i, False, '')
    a(f'    buffer_load_dword v10, {vr(V_LIN16)}, {WS}, 0 offen')
    a('L_fin_loop:')
    a(f"""
    s_add_u32 s{S_NSEG}, s{S_SEG}, 16
    s_cmp_ge_u32 s{S_NSEG}, 64
    s_cselect_b32 s{S_NSEG}, s{S_SEG}, s{S_NSEG}
""")
    seg_offsets(a, S_NSEG, S_OAN, S_HAN)
    emit_seg(a)
    a(f"""
    s_mov_b32 s{S_OA}, s{S_OAN}
    s_mov_b32 s{S_HA}, s{S_HAN}
    s_add_u32 s{S_SEG}, s{S_SEG}, 16
    s_cmp_lt_u32 s{S_SEG}, 64
    s_cbranch_scc1 L_fin_loop
    s_waitcnt vmcnt(0)
""")
```

```python
from asmlib import *
from layout import *
import struct
def f2u(x): return struct.unpack('<I', struct.pack('<f', x))[0]

S_W = 4
SRD_WS, SRD_X = 8, 12
S_TB, S_CU, S_NU = 5, 6, 7
SRD_TA, SRD_TB = 16, 20
SRD_WQ, SRD_WK, SRD_WV, SRD_W1, SRD_W3 = 24, 28, 32, 36, 40
S_COL, S_STR8 = 44, 45
S_T0, S_T1, S_T2 = 46, 47, 48
S_TYPE, S_OUT = 49, 50
S_NTYPE, S_NOUT = 51, 52
S_ROW = 53
S_NLOG = 54
S_ISF = 56
S_ONE = 58
S_O0, S_O1, S_FIRST = 64, 65, 66
V_LIN16, V_DQ, V_DF, V_DCUR, V_T0, V_T1, V_STK, V_XA, V_L, V_TMP = 0, 1, 2, 3, 4, 5, 6, 7, 8, 9
V_T2, V_T3, V_JUNK = 12, 13, 14
V_WF = 64
V_E = 16
V_ACC = 128
LDS_RING = 0
WS = f's[{SRD_WS}:{SRD_WS+3}]'
NSLOT = 8
PD = 6

def acc(ct, tt): return V_ACC + (ct * 2 + tt) * 16
def xf(tt, ks): return ar((tt * 32 + ks) * 4, 4)

def emit_gate(a, wg_sgpr):
    t = V_E
    a(f'''
    s_lshl_b32 s{S_T0}, s{wg_sgpr}, 3
    s_lshl_b32 s{S_T1}, s{S_W}, 1
    s_add_u32 s{S_T0}, s{S_T0}, s{S_T1}           ; token0
    s_lshl_b32 s{S_T1}, s{S_T0}, 10
    buffer_load_dwordx4 {vr(t,4)}, {vr(V_LIN16)}, s[60:63], 0 offen
    buffer_load_dwordx4 {vr(t+4,4)}, {vr(V_LIN16)}, s[{SRD_X}:{SRD_X+3}], s{S_T1} offen
    buffer_load_dwordx4 {vr(t+8,4)}, {vr(V_LIN16)}, s[{SRD_X}:{SRD_X+3}], s{S_T1} offen offset:1024
    s_waitcnt vmcnt(0)
''')
    G = t + 12
    for i in range(4):
        a(f'    v_lshlrev_b32 {vr(G+2*i)}, 16, {vr(t+i)}')
        a(f'    v_and_b32 {vr(G+2*i+1)}, 0xffff0000, {vr(t+i)}')
    for tk in range(2):
        x = t + 4 + 4 * tk
        A = t + 20 + tk
        u = t + 24
        for i in range(4):
            a(f'    v_lshlrev_b32 {vr(u)}, 16, {vr(x+i)}')
            a(f'    v_and_b32 {vr(u+1)}, 0xffff0000, {vr(x+i)}')
            if i == 0:
                a(f'    v_mul_f32 {vr(A)}, {vr(u)}, {vr(G)}')
            else:
                a(f'    v_fmac_f32 {vr(A)}, {vr(u)}, {vr(G+2*i)}')
            a(f'    v_fmac_f32 {vr(A)}, {vr(u+1)}, {vr(G+2*i+1)}')
        for sh in (1, 2, 4, 8):
            a(f'    v_add_f32_dpp {vr(A)}, {vr(A)}, {vr(A)} row_ror:{sh} row_mask:0xf bank_mask:0xf')
        a(f'    v_mov_b32 {vr(u)}, {vr(A)}')
        a(f'    v_permlane16_swap_b32 {vr(A)}, {vr(u)}')
        a(f'    v_add_f32 {vr(A)}, {vr(A)}, {vr(u)}')
        a(f'    v_mov_b32 {vr(u)}, {vr(A)}')
        a(f'    v_permlane32_swap_b32 {vr(A)}, {vr(u)}')
        a(f'    v_add_f32 {vr(A)}, {vr(A)}, {vr(u)}')
        a(f'    v_cvt_pk_bf16_f32 {vr(A)}, {vr(A)}, {vr(A)}')
        a(f'    v_and_b32 {vr(A)}, 0xffff0000, {vr(A)}')
        a(f'    v_mul_f32 {vr(A)}, s{S_NLOG}, {vr(A)}')
        a(f'    v_exp_f32 {vr(A)}, {vr(A)}')
        a(f'    v_add_f32 {vr(A)}, 1.0, {vr(A)}')
        a(f'    v_rcp_f32 {vr(A)}, {vr(A)}')
        a(f'    v_cvt_pk_bf16_f32 {vr(A)}, {vr(A)}, {vr(A)}')
        a(f'    v_and_b32 {vr(A)}, 0xffff0000, {vr(A)}')
    a(f'''
    s_lshl_b32 s{S_T0}, s{S_T0}, 2
    s_add_u32 s{S_T0}, s{S_T0}, {WS_G}
    v_mov_b32 {vr(t)}, 0
    s_mov_b64 exec, 1
    buffer_store_dword {vr(t+20)}, {vr(t)}, {WS}, s{S_T0} offen
    buffer_store_dword {vr(t+21)}, {vr(t)}, {WS}, s{S_T0} offen offset:4
    s_mov_b64 exec, -1
''')

def emit_setup(a):
    L = V_L
    t0, t1, t2 = V_E, V_E + 1, V_E + 2
    a(f'''
    v_and_b32 {vr(L)}, 63, v0
    v_lshlrev_b32 {vr(V_LIN16)}, 4, {vr(L)}
    v_lshrrev_b32 {vr(t0)}, 3, {vr(L)}
    v_bfe_u32 {vr(t1)}, {vr(L)}, 1, 2
    v_and_b32 {vr(t2)}, 2, {vr(t0)}
    v_xor_b32 {vr(t1)}, {vr(t1)}, {vr(t2)}
    v_lshlrev_b32 {vr(t1)}, 5, {vr(t1)}
    v_and_b32 {vr(t2)}, 1, {vr(L)}
    v_lshlrev_b32 {vr(t2)}, 4, {vr(t2)}
    v_add_u32 {vr(t1)}, {vr(t1)}, {vr(t2)}
    v_lshlrev_b32 {vr(t2)}, 13, {vr(t0)}
    v_add_u32 {vr(V_DQ)}, {vr(t1)}, {vr(t2)}
    v_mul_u32_u24 {vr(t2)}, 3584, {vr(t0)}
    v_add_u32 {vr(V_DF)}, {vr(t1)}, {vr(t2)}
    v_lshrrev_b32 {vr(t0)}, 5, {vr(L)}
    v_lshlrev_b32 {vr(t0)}, 10, {vr(t0)}
    v_bfe_u32 {vr(t1)}, {vr(L)}, 2, 2
    v_lshlrev_b32 {vr(t2)}, 7, {vr(t1)}
    v_add_u32 {vr(t0)}, {vr(t0)}, {vr(t2)}
    v_and_b32 {vr(t1)}, 2, {vr(t1)}
    v_bfe_u32 {vr(t2)}, {vr(L)}, 4, 1
    v_add_u32 {vr(t1)}, {vr(t1)}, {vr(t2)}
    v_lshlrev_b32 {vr(t1)}, 5, {vr(t1)}
    v_add_u32 {vr(t0)}, {vr(t0)}, {vr(t1)}
    v_and_b32 {vr(t1)}, 3, {vr(L)}
    v_lshlrev_b32 {vr(t1)}, 3, {vr(t1)}
    v_add_u32 {vr(V_T0)}, {vr(t0)}, {vr(t1)}
    v_xor_b32 {vr(V_T1)}, 64, {vr(V_T0)}
    v_add_u32 {vr(V_T2)}, 0x10000, {vr(V_T0)}
    v_add_u32 {vr(V_T3)}, 0x10000, {vr(V_T1)}
    v_and_b32 {vr(t0)}, 31, {vr(L)}
    v_bfe_u32 {vr(t1)}, {vr(L)}, 4, 1
    v_lshlrev_b32 {vr(t1)}, 3, {vr(t1)}
    v_xor_b32 {vr(t0)}, {vr(t0)}, {vr(t1)}
    v_lshlrev_b32 {vr(t0)}, 4, {vr(t0)}
    v_lshrrev_b32 {vr(t1)}, 5, {vr(L)}
    v_lshlrev_b32 {vr(t1)}, 9, {vr(t1)}
    v_add_u32 {vr(V_STK)}, {vr(t0)}, {vr(t1)}
    v_and_b32 {vr(t0)}, 31, {vr(L)}
    v_lshlrev_b32 {vr(t1)}, 10, {vr(t0)}
    v_and_b32 {vr(t0)}, 15, {vr(t0)}
    v_lshrrev_b32 {vr(t2)}, 5, {vr(L)}
    v_xor_b32 {vr(t0)}, {vr(t0)}, {vr(t2)}
    v_lshlrev_b32 {vr(t0)}, 4, {vr(t0)}
    v_add_u32 {vr(t0)}, {vr(t0)}, {vr(t1)}
    s_lshl_b32 s{S_T0}, s{S_W}, 15
    v_add_u32 {vr(V_XA)}, s{S_T0}, {vr(t0)}
''')

def emit_load_x(a):
    for tt in range(2):
        a(f'''
    s_lshl_b32 s{S_T0}, s{S_TB}, 8
    s_lshl_b32 s{S_T1}, s{S_W}, 6
    s_add_u32 s{S_T0}, s{S_T0}, s{S_T1}
    s_add_u32 s{S_T0}, s{S_T0}, {tt * 32}
    s_lshl_b32 s{S_T0}, s{S_T0}, 10
    s_lshl_b32 s{S_T1}, s{S_W}, 15
''')
        for t in range(32):
            a(f'''
    v_xor_b32 {vr(V_TMP)}, {(t & 15) << 4}, {vr(V_LIN16)}
    s_mov_b32 m0, s{S_T1}
    buffer_load_dwordx4 {vr(V_TMP)}, s[{SRD_X}:{SRD_X+3}], s{S_T0} offen lds
    s_add_u32 s{S_T0}, s{S_T0}, 1024
    s_add_u32 s{S_T1}, s{S_T1}, 1024
''')
        a('    s_waitcnt vmcnt(0)')
        for ks in range(32):
            a(f'    v_xor_b32 {vr(V_TMP + (ks & 1))}, {ks << 5}, {vr(V_XA)}')
            a(f'    ds_read_b128 {xf(tt, ks)}, {vr(V_TMP + (ks & 1))}')
        a('    s_waitcnt lgkmcnt(0)')

def emit_decode(a, cu, typ, out):
    a(f'''
    s_lshr_b32 s{S_T0}, s{cu}, 5            ; 0 K, 1 V, 2 Q, 3 F
    s_and_b32 s{S_T1}, s{cu}, 31            ; head / fb
    s_mov_b32 s{typ}, s{S_T0}
    s_cmp_eq_u32 s{S_T0}, 3
    s_cbranch_scc1 L_decF_%(id)s
    s_lshl_b32 s{S_COL}, s{S_T1}, 8
    s_mov_b32 s{S_STR8}, 65536
    v_mov_b32 {vr(V_DCUR)}, {vr(V_DQ)}
    ; select matrix
    s_cmp_eq_u32 s{S_T0}, 0
    s_cselect_b32 s{SRD_TA}, s{SRD_WK}, s{SRD_WV}
    s_cselect_b32 s{SRD_TA+1}, s{SRD_WK+1}, s{SRD_WV+1}
    s_mov_b32 s{S_T2}, {WS_V}
    s_cselect_b32 s{S_T2}, {WS_K}, s{S_T2}
    s_cmp_eq_u32 s{S_T0}, 2
    s_cselect_b32 s{SRD_TA}, s{SRD_WQ}, s{SRD_TA}
    s_cselect_b32 s{SRD_TA+1}, s{SRD_WQ+1}, s{SRD_TA+1}
    s_cselect_b32 s{S_T2}, {WS_Q}, s{S_T2}
    s_mov_b32 s{SRD_TA+2}, 0x400000
    s_mov_b32 s{SRD_TA+3}, 0x20000
    s_add_u32 s{SRD_TB}, s{SRD_TA}, 128
    s_addc_u32 s{SRD_TB+1}, s{SRD_TA+1}, 0
    s_mov_b32 s{SRD_TB+2}, {0x400000 - 128}
    s_mov_b32 s{SRD_TB+3}, 0x20000
    ; out = base + ((tb*8 + w*2)*32 + h)*8192
    s_lshl_b32 s{out}, s{S_TB}, 3
    s_lshl_b32 s{S_T0}, s{S_W}, 1
    s_add_u32 s{out}, s{out}, s{S_T0}
    s_lshl_b32 s{out}, s{out}, 5
    s_add_u32 s{out}, s{out}, s{S_T1}
    s_lshl_b32 s{out}, s{out}, 13
    s_add_u32 s{out}, s{out}, s{S_T2}
    s_branch L_decD_%(id)s
L_decF_%(id)s:
    s_lshl_b32 s{S_COL}, s{S_T1}, 7
    s_mov_b32 s{S_STR8}, {3584 * 8}
    v_mov_b32 {vr(V_DCUR)}, {vr(V_DF)}
    s_mov_b32 s{SRD_TA}, s{SRD_W1}
    s_mov_b32 s{SRD_TA+1}, s{SRD_W1+1}
    s_mov_b32 s{SRD_TA+2}, {512 * 3584}
    s_mov_b32 s{SRD_TA+3}, 0x20000
    s_mov_b32 s{SRD_TB}, s{SRD_W3}
    s_mov_b32 s{SRD_TB+1}, s{SRD_W3+1}
    s_mov_b32 s{SRD_TB+2}, {512 * 3584}
    s_mov_b32 s{SRD_TB+3}, 0x20000
    ; out = WS_H + (tb*8 + w*2)*H_SEG + fb*4096
    s_lshl_b32 s{out}, s{S_TB}, 3
    s_lshl_b32 s{S_T0}, s{S_W}, 1
    s_add_u32 s{out}, s{out}, s{S_T0}
    s_mul_i32 s{out}, s{out}, {H_SEG}
    s_lshl_b32 s{S_T1}, s{S_T1}, 12
    s_add_u32 s{out}, s{out}, s{S_T1}
    s_add_u32 s{out}, s{out}, {WS_H}
L_decD_%(id)s:
    ; running row offset for this wave: col + (2w)*8*stride
    s_mul_i32 s{S_ROW}, s{S_STR8}, s{S_W}
    s_lshl_b32 s{S_ROW}, s{S_ROW}, 1
    s_add_u32 s{S_ROW}, s{S_ROW}, s{S_COL}
''' % dict(id='u%d' % len(a.lines)))

def dma_chunk(a, slot):
    for hb, S in ((0, SRD_TA), (1, SRD_TB)):
        for j in range(2):
            a(f'''
    s_lshl_b32 s{S_T0}, s{S_W}, 11
    s_add_u32 m0, s{S_T0}, {LDS_RING + slot * 16384 + hb * 8192 + j * 1024}
''')
            if j == 0:
                a(f'    buffer_load_dwordx4 {vr(V_DCUR)}, s[{S}:{S+3}], s{S_ROW} offen lds')
            else:
                a(f'    s_add_u32 s{S_T1}, s{S_ROW}, s{S_STR8}')
                a(f'    buffer_load_dwordx4 {vr(V_DCUR)}, s[{S}:{S+3}], s{S_T1} offen lds')
    a(f'    s_lshl_b32 s{S_T0}, s{S_STR8}, 3')
    a(f'    s_add_u32 s{S_ROW}, s{S_ROW}, s{S_T0}')

def wreads(buf, slot, kk):
    out = []
    for ct in range(4):
        for rr in range(2):
            if slot < 4: addr = V_T1 if ct & 1 else V_T0
            else: addr = V_T3 if ct & 1 else V_T2
            off = LDS_RING + (slot % 4) * 16384 + (ct >> 1) * 8192 + kk * 2048 + rr * 512
            out.append(f'    ds_read_b64_tr_b16 {vr(V_WF + buf * 16 + ct * 4 + 2 * rr, 2)}, {vr(addr)} offset:{off}')
    return out


def dummies(a, n):
    for i in range(n):
        a(f'    buffer_load_dword {vr(V_JUNK)}, {vr(V_LIN16)}, s[{SRD_X}:{SRD_X+3}], 0 offen')

def emit_mainloop(a, vtype, tag, next_decode):
    a('    s_waitcnt vmcnt(36)')
    a('    s_barrier')
    for x in wreads(0, 0, 0): a(x)
    for c in range(8):
        slot = c % NSLOT
        for kk in range(4):
            ks = c * 4 + kk
            buf = ks & 1
            if kk < 3: nxt = wreads(buf ^ 1, slot, kk + 1)
            elif c < 7: nxt = wreads(buf ^ 1, (c + 1) % NSLOT, 0)
            else: nxt = []
            a('    s_waitcnt lgkmcnt(0)')
            if kk == 3 and c < 7:
                a(f'    s_waitcnt vmcnt({36 if c <= 4 else 20})')
                a('    s_barrier')
            i = 0
            for ct in range(4):
                for tt in range(2):
                    C = '0' if ks == 0 else vr(acc(ct, tt), 16)
                    wf = vr(V_WF + buf * 16 + ct * 4, 4)
                    if vtype:
                        a(f'    v_mfma_f32_32x32x16_bf16 {vr(acc(ct,tt),16)}, {xf(tt, ks)}, {wf}, {C}')
                    else:
                        a(f'    v_mfma_f32_32x32x16_bf16 {vr(acc(ct,tt),16)}, {wf}, {xf(tt, ks)}, {C}')
                    for x in nxt[2*i:2*i+2]: a(x)
                    i += 1
                    if kk == 0 and i == 5:
                        if c == 2: next_decode()
                        dma_chunk(a, (c + PD) % NSLOT)

def epi_pack(a, lanereg, segstride, ST):
    k = 0
    for tt in range(2):
        a(f'    s_add_u32 s{S_O0}, s{S_OUT}, {tt * segstride}')
        a(f'    s_add_u32 s{S_O1}, s{S_O0}, 4096')
        for ct in range(4):
            A = acc(ct, tt)
            for cb in range(2):
                E = V_E + (k % 4) * 4; k += 1
                for i in range(4):
                    a(f'    v_cvt_pk_bf16_f32 {vr(E+i)}, {vr(A + 8*cb + 2*i)}, {vr(A + 8*cb + 2*i + 1)}')
                off = (4 * ct + 2 * cb) * 512
                so = S_O0 if off < 4096 else S_O1
                a(f'    buffer_store_dwordx4 {vr(E,4)}, {vr(lanereg)}, {WS}, s{so} offen offset:{off % 4096} {ST}')

def epi_ffn(a, ST):
    k = 0
    T = V_E + 16
    for tt in range(2):
        a(f'    s_add_u32 s{S_O0}, s{S_OUT}, {tt * H_SEG}')
        for ct in range(2):
            G, U = acc(ct, tt), acc(ct + 2, tt)
            for cb in range(2):
                E = V_E + (k % 4) * 4; k += 1
                for i in range(4):
                    g, u = G + 8 * cb + 2 * i, U + 8 * cb + 2 * i
                    t = T + 2 * i
                    a(f'    v_pk_mul_f32 {vr(t,2)}, {vr(g,2)}, s[{S_NLOG}:{S_NLOG+1}]')
                    a(f'    v_pk_mul_f32 {vr(g,2)}, {vr(g,2)}, {vr(u,2)}')
                    a(f'    v_exp_f32 {vr(t)}, {vr(t)}')
                    a(f'    v_exp_f32 {vr(t+1)}, {vr(t+1)}')
                for i in range(4):
                    t = T + 2 * i
                    a(f'    v_pk_add_f32 {vr(t,2)}, {vr(t,2)}, s[{S_ONE}:{S_ONE+1}]')
                for i in range(4):
                    t = T + 2 * i
                    a(f'    v_rcp_f32 {vr(t)}, {vr(t)}')
                    a(f'    v_rcp_f32 {vr(t+1)}, {vr(t+1)}')
                for i in range(4):
                    g = G + 8 * cb + 2 * i; t = T + 2 * i
                    a(f'    v_pk_mul_f32 {vr(g,2)}, {vr(g,2)}, {vr(t,2)}')
                    a(f'    v_cvt_pk_bf16_f32 {vr(E+i)}, {vr(g)}, {vr(g+1)}')
                off = (4 * ct + 2 * cb) * 512
                a(f'    buffer_store_dwordx4 {vr(E,4)}, {vr(V_LIN16)}, {WS}, s{S_O0} offen offset:{off} {ST}')

def emit_g1_kernel(a, cfg):
    ST = cfg.get('st_pub', '')
    a(f"""
    s_load_dwordx2 s[{SRD_WS}:{SRD_WS+1}], s[0:1], {KA_WS}
    s_load_dwordx2 s[{SRD_X}:{SRD_X+1}], s[0:1], {KA_X}
    s_load_dwordx2 s[{SRD_WQ}:{SRD_WQ+1}], s[0:1], {KA_WQ}
    s_load_dwordx2 s[{SRD_WK}:{SRD_WK+1}], s[0:1], {KA_WK}
    s_load_dwordx2 s[{SRD_WV}:{SRD_WV+1}], s[0:1], {KA_WV}
    s_load_dwordx2 s[{SRD_W1}:{SRD_W1+1}], s[0:1], {KA_W1}
    s_load_dwordx2 s[{SRD_W3}:{SRD_W3+1}], s[0:1], {KA_W3}
    s_load_dwordx2 s[60:61], s[0:1], {KA_GW}
    v_lshrrev_b32 v1, 6, v0
    s_nop 1
    v_readfirstlane_b32 s{S_W}, v1
    s_waitcnt lgkmcnt(0)
    s_mov_b32 s{SRD_WS+2}, {WS_SIZE}
    s_mov_b32 s{SRD_WS+3}, 0x20000
    s_mov_b32 s{SRD_X+2}, {2048 * 1024}
    s_mov_b32 s{SRD_X+3}, 0x20000
    s_mov_b32 s62, 1024
    s_mov_b32 s63, 0x20000
    s_mov_b32 s{S_NLOG}, {f2u(-1.4426950408889634):#x}
    s_mov_b32 s{S_NLOG+1}, {f2u(-1.4426950408889634):#x}
    s_mov_b32 s{S_ONE}, 1.0
    s_mov_b32 s{S_ONE+1}, 1.0
    s_lshr_b32 s{S_TB}, s2, 3
    s_and_b32 s{S_TB}, s{S_TB}, 7
    s_lshr_b32 s{S_CU}, s2, 6
    s_lshl_b32 s{S_CU}, s{S_CU}, 3
    s_and_b32 s{S_T0}, s2, 7
    s_add_u32 s{S_CU}, s{S_CU}, s{S_T0}
""")
    tm = cfg.get('timing')
    def TS(k):
        if tm: a(f'    s_memrealtime s[{70+2*k}:{70+2*k+1}]')
    TS(0)
    emit_setup(a)
    emit_gate(a, 2)
    TS(1)
    emit_load_x(a)
    a('    s_barrier')
    TS(2)
    if tm: a('    s_memtime s[82:83]')
    emit_decode(a, S_CU, S_TYPE, S_OUT)
    for c in range(PD): dma_chunk(a, c)
    dummies(a, 16)
    def next_decode():
        a(f"""
    s_add_u32 s{S_FIRST}, s{S_CU}, 32
    s_cmp_ge_u32 s{S_FIRST}, 124
    s_cselect_b32 s{S_FIRST+1}, s{S_CU}, s{S_FIRST}
""")
        emit_decode(a, S_FIRST + 1, S_NTYPE, S_NOUT)
    a('L_g1_unit:')
    a(f"""
    s_cmp_eq_u32 s{S_TYPE}, 1
    s_cbranch_scc1 L_g1_v
""")
    emit_mainloop(a, False, 'k', next_decode)
    a('    s_branch L_g1_next')
    a('L_g1_v:')
    emit_mainloop(a, True, 'v', next_decode)
    a('L_g1_next:')
    if tm:
        a(f"""
    s_lshr_b32 s{S_T0}, s{S_CU}, 5
    s_cmp_eq_u32 s{S_T0}, 0
    s_cbranch_scc0 L_ts1
    s_memrealtime s[76:77]
L_ts1:
    s_cmp_eq_u32 s{S_T0}, 2
    s_cbranch_scc0 L_ts2
    s_memrealtime s[78:79]
L_ts2:
""")
    a(f"""
    s_cmp_eq_u32 s{S_TYPE}, 3
    s_cbranch_scc1 L_g1_ef
    s_cmp_eq_u32 s{S_TYPE}, 1
    s_cbranch_scc1 L_g1_ev
""")
    epi_pack(a, V_STK, 262144, ST)
    a('    s_branch L_g1_ed')
    a('L_g1_ev:')
    epi_pack(a, V_LIN16, 262144, ST)
    a('    s_branch L_g1_ed')
    a('L_g1_ef:')
    epi_ffn(a, ST)
    dummies(a, 8)
    a('L_g1_ed:')
    a(f"""
    s_mov_b32 s{S_TYPE}, s{S_NTYPE}
    s_mov_b32 s{S_OUT}, s{S_NOUT}
    s_add_u32 s{S_CU}, s{S_CU}, 32
    s_cmp_lt_u32 s{S_CU}, 124
    s_cbranch_scc1 L_g1_unit
    s_waitcnt vmcnt(0)
""")
    if tm:
        a(f'''
    s_waitcnt vmcnt(0)
    s_memrealtime s[80:81]
    s_memtime s[84:85]
    s_waitcnt lgkmcnt(0)
    s_lshl_b32 s{S_T0}, s2, 2
    s_add_u32 s{S_T0}, s{S_T0}, s{S_W}
    s_lshl_b32 s{S_T0}, s{S_T0}, 5
    s_add_u32 s{S_T0}, s{S_T0}, 0x10000
    s_mov_b64 exec, 1
    v_mov_b32 v20, 0
''')
        for k in range(8):
            a(f'    v_mov_b32 v21, s{70+2*k}')
            a(f'    buffer_store_dword v21, v20, {WS}, s{S_T0} offen offset:{4*k}')
```

```python
import sys
sys.path.insert(0, 'gen')
from asmlib import *
from layout import *

def kd(name):
    return """
.section .rodata,"a"
.p2align 6
.amdhsa_kernel %s
  .amdhsa_next_free_vgpr 512
  .amdhsa_next_free_sgpr 102
  .amdhsa_accum_offset 256
  .amdhsa_group_segment_fixed_size 0
  .amdhsa_kernarg_size 120
  .amdhsa_user_sgpr_count 2
  .amdhsa_user_sgpr_kernarg_segment_ptr 1
  .amdhsa_system_sgpr_workgroup_id_x 1
.end_amdhsa_kernel
.text
""" % name

def simple_kernel(name, grid, body, cfg, lds=163840):
    a = Asm()
    a(""".globl %s
.p2align 8
.type %s,@function
%s:
    s_cmp_ge_u32 s2, %d
    s_cbranch_scc1 L_exit_%s""" % (name, name, name, grid, name))
    body(a, cfg)
    a("L_exit_%s:\n    s_endpgm" % name)
    return a.finalize() + kd(name)

HEAD = """; @launch grid=(%d,1,1) block=(256,1,1) lds=%d
.amdgcn_target "amdgcn-amd-amdhsa--gfx950"
.text
"""
```

```python
import numpy as np

KA_X, KA_MEM0, KA_WQ, KA_WK, KA_WV, KA_WO, KA_SEG, KA_BX, KA_W1, KA_W3, KA_W2, KA_GW, KA_OUT, KA_DBG, KA_WS = [8 * i for i in range(15)]

WS_P    = 0x0010_0000
WS_M    = 0x0018_0000
WS_DBGM = 0x0020_0000
WS_K    = 0x0100_0000
WS_V    = 0x0200_0000
WS_Q    = 0x0300_0000
WS_O    = 0x0400_0000
WS_KM   = 0x0500_0000
WS_VM   = 0x0580_0000
WS_H    = 0x0680_0000
WS_B    = 0x0780_0000
WS_G    = 0x0030_0000
H_SEG   = 224 * 512
WS_SIZE = 0x1000_0000

def feat_of_chunk(c, i):
    ft, cb, hf = c >> 2, (c >> 1) & 1, c & 1
    return 32 * ft + 16 * cb + 4 * hf + 8 * (i >> 2) + (i & 3)

def tokpos(t):
    return t ^ ((t >> 4) << 3)

def vkey(j, hk, i):
    return 16 * j + 8 * (i >> 2) + 4 * hk + (i & 3)

def pack_K(K):
    K = K.reshape(64, 32, 32, 128)
    out = np.zeros((64, 32, 16, 32, 8), dtype=K.dtype)
    for c in range(16):
        f = [feat_of_chunk(c, i) for i in range(8)]
        for t in range(32):
            out[:, :, c, tokpos(t), :] = K[:, t][:, :, f]
    return out

def pack_V(V):
    V = V.reshape(64, 32, 32, 128)
    out = np.zeros((64, 32, 4, 2, 2, 32, 8), dtype=V.dtype)
    for j in range(2):
        for hk in range(2):
            keys = [vkey(j, hk, i) for i in range(8)]
            x = V[:, keys]
            x = x.transpose(0, 2, 3, 1).reshape(64, 32, 4, 32, 8)
            out[:, :, :, j, hk, :, :] = x
    return out

def m_dim(ks, ga, half, s):
    jj, e = s >> 1, s & 1
    return 64 * ks + 32 * half + 16 * e + 4 * ga + jj

def row_token(rho): return 2 * (rho >> 2) + (rho & 1)
def row_half(rho): return (rho >> 1) & 1

def unpack_M(buf):
    m = np.zeros((8, 512), dtype=buf.dtype)
    for ks in range(8):
        for lane in range(64):
            ga, row = lane >> 4, lane & 15
            tok, half = row_token(row), row_half(row)
            for s in range(8):
                m[tok, m_dim(ks, ga, half, s)] = buf[ks, lane, s]
    return m

def unpack_KM(buf):
    out = np.zeros((8, 128), dtype=buf.dtype)
    for c in range(16):
        for i in range(8):
            out[:, feat_of_chunk(c, i)] = buf[c, :, i]
    return out

def unpack_VM(buf):
    out = np.zeros((8, 128), dtype=buf.dtype)
    for w in range(4):
        for l in range(64):
            n, g = l & 15, l >> 4
            for phi in range(2):
                for e in range(2):
                    out[2 * g + e, 32 * w + 16 * phi + n] = buf[w, l, 4 * phi + e]
    return out


def unpack_QK(buf):
    out = np.zeros((64, 32, 32, 128), dtype=buf.dtype)
    for c in range(16):
        f = [feat_of_chunk(c, i) for i in range(8)]
        for t in range(32):
            out[:, t][:, :, f] = buf[:, :, c, tokpos(t), :]
    return out.reshape(2048, 32, 128)

def unpack_V(buf):
    out = np.zeros((64, 32, 32, 128), dtype=buf.dtype)
    for j in range(2):
        for hk in range(2):
            keys = [vkey(j, hk, i) for i in range(8)]
            x = buf[:, :, :, j, hk, :, :].reshape(64, 32, 128, 8)
            for i, k in enumerate(keys):
                out[:, k] = x[:, :, :, i]
    return out.reshape(2048, 32, 128)

def h_col_of_chunk(c, i):
    fb, r = c >> 3, c & 7
    ct, cb, hf = r >> 2, (r >> 1) & 1, r & 1
    return 64 * fb + 32 * ct + 16 * cb + 4 * hf + 8 * (i >> 2) + (i & 3)

def unpack_H(buf):
    out = np.zeros((64, 32, 1792), dtype=buf.dtype)
    for c in range(224):
        f = [h_col_of_chunk(c, i) for i in range(8)]
        out[:, :, f] = buf[:, c, :, :]
    return out.reshape(2048, 1792)

def unpack_O(buf):
    out = np.zeros((64, 32, 32, 128), dtype=buf.dtype)
    for c in range(16):
        f = [feat_of_chunk(c, i) for i in range(8)]
        out[:, :, :, f] = buf[:, :, c, :, :].transpose(0, 2, 1, 3)
    return out.reshape(2048, 32, 128)
```

```python
import sys
sys.path.insert(0, 'gen')
from asmlib import *
from layout import *
import kern, g1, attn, fin, chain2 as chain

NAME = 'gated_mix__memory_aug_recurrent_mem_tr__glu_gated_swiglu__prompt'

def chain_body(a, cfg):
    a("""
    s_load_dwordx2 s[16:17], s[0:1], %d
    s_getreg_b32 s33, hwreg(HW_REG_XCC_ID)
    s_and_b32 s33, s33, 0xf
    v_lshrrev_b32 v1, 6, v0
    s_nop 1
    v_readfirstlane_b32 s4, v1
    s_waitcnt lgkmcnt(0)
    v_cmp_eq_u32 vcc, 0, v0
    s_and_saveexec_b64 s[44:45], vcc
    s_cbranch_execz L_t1
    v_mov_b32 v1, s33
    v_lshlrev_b32 v1, 2, v1
    v_mov_b32 v2, 1
    global_atomic_add v3, v1, v2, s[16:17] sc0
    s_waitcnt vmcnt(0)
    v_mov_b32 v4, %d
    ds_write_b32 v4, v3
    s_waitcnt lgkmcnt(0)
L_t1:
    s_mov_b64 exec, s[44:45]
    s_barrier
    v_mov_b32 v4, %d
    ds_read_b32 v3, v4
    s_waitcnt lgkmcnt(0)
    v_readfirstlane_b32 s3, v3
    s_cmp_lg_u32 s33, 0
    s_cbranch_scc1 L_chain_end
    s_cmp_ge_u32 s3, 32
    s_cbranch_scc1 L_chain_end
""" % (KA_DBG, chain.LDS_MISC, chain.LDS_MISC))
    chain.emit_chain(a, cfg)

def gen(ccfg):
    head = """; gated mix of recurrent-memory attention and SwiGLU FFN
; @launch kernel=g1_kernel grid=(256,1,1) block=(256,1,1) lds=163840
; @launch kernel=chain_kernel grid=(256,1,1) block=(256,1,1) lds=163840
; @launch kernel=at_kernel grid=(256,1,1) block=(256,1,1) lds=0
; @launch kernel=fin_kernel grid=(256,1,1) block=(256,1,1) lds=163840
.amdgcn_target "amdgcn-amd-amdhsa--gfx950"
.text
"""
    t = head
    t += kern.simple_kernel('g1_kernel', 256, g1.emit_g1_kernel, {})
    t += kern.simple_kernel('chain_kernel', 256, chain_body, ccfg)
    t += kern.simple_kernel('at_kernel', 256, attn.emit_attn_kernel, {})
    t += kern.simple_kernel('fin_kernel', 256, fin.emit_fin_kernel, {})
    return t

if __name__ == '__main__':
    cfg = dict(st='', d1=128, np2=2, g2=128, maxpoll=20000)
    t = gen(cfg)
    open('cdna_kernels/%s.s' % NAME, 'w').write(t)
    print(len(t), 'bytes', len(t.splitlines()), 'lines')
```

```python
from asmlib import *
from layout import *
import struct
def f2u(x): return struct.unpack('<I', struct.pack('<f', x))[0]
SOFT_C = (128 ** -0.5) * 1.4426950408889634

S_W = 4
SRD_WS = 8
S_U, S_S, S_HH = 5, 6, 7
S_QO, S_KO, S_VO, S_KMO, S_VMO, S_OO = 12, 13, 14, 15, 16, 17
S_T0, S_T1 = 18, 19
S_CC = 20
WS = f's[{SRD_WS}:{SRD_WS+3}]'
V_LIN16, V_STK, V_KM, V_L = 0, 1, 2, 3
V_MASK = 16
B_Q, B_K, B_V, B_KM, B_VM = 32, 64, 96, 128, 160
SX, SM, PX, PM, T = 176, 192, 208, 216, 220
OA = 224 - 0
O0 = 32

def emit_setup(a):
    L = V_L; t0, t1 = 4, 5
    a(f'''
    v_and_b32 {vr(L)}, 63, v0
    v_lshlrev_b32 {vr(V_LIN16)}, 4, {vr(L)}
    v_and_b32 {vr(t0)}, 31, {vr(L)}
    v_bfe_u32 {vr(t1)}, {vr(L)}, 4, 1
    v_lshlrev_b32 {vr(t1)}, 3, {vr(t1)}
    v_xor_b32 {vr(t0)}, {vr(t0)}, {vr(t1)}
    v_lshlrev_b32 {vr(t0)}, 4, {vr(t0)}
    v_lshrrev_b32 {vr(t1)}, 5, {vr(L)}
    v_lshlrev_b32 {vr(t1)}, 9, {vr(t1)}
    v_add_u32 {vr(V_STK)}, {vr(t0)}, {vr(t1)}
    v_lshrrev_b32 {vr(t0)}, 5, {vr(L)}
    v_lshlrev_b32 {vr(t0)}, 7, {vr(t0)}
    v_and_b32 {vr(t1)}, 7, {vr(L)}
    v_lshlrev_b32 {vr(t1)}, 4, {vr(t1)}
    v_add_u32 {vr(V_KM)}, {vr(t0)}, {vr(t1)}
    v_and_b32 {vr(t0)}, 31, {vr(L)}
    v_lshrrev_b32 {vr(t1)}, 5, {vr(L)}
    v_lshlrev_b32 {vr(t1)}, 2, {vr(t1)}
    v_sub_u32 {vr(t0)}, {vr(t0)}, {vr(t1)}
    v_mov_b32 {vr(t1)}, {f2u(-1e30):#x}
''')
    for r in range(16):
        k = 8 * (r >> 2) + (r & 3)
        a(f'    v_cmp_le_i32 vcc, {k}, {vr(t0)}')
        a(f'    v_cndmask_b32 {vr(V_MASK + r)}, {vr(t1)}, 0, vcc' if False else f'    v_cndmask_b32_e64 {vr(V_MASK + r)}, {vr(t1)}, 0, vcc')
    a(f'    s_mov_b32 s{S_CC}, {f2u(SOFT_C):#x}\n    s_mov_b32 s{S_CC+1}, {f2u(SOFT_C):#x}')

def emit_offsets(a):
    a(f'''
    s_lshl_b32 s{S_T0}, s{S_S}, 5
    s_add_u32 s{S_T0}, s{S_T0}, s{S_HH}          ; s*32+h
    s_lshl_b32 s{S_T1}, s{S_T0}, 13
    s_add_u32 s{S_QO}, s{S_T1}, {WS_Q}
    s_add_u32 s{S_KO}, s{S_T1}, {WS_K}
    s_add_u32 s{S_VO}, s{S_T1}, {WS_V}
    s_add_u32 s{S_OO}, s{S_T1}, {WS_O}
    s_lshl_b32 s{S_T1}, s{S_T0}, 11
    s_add_u32 s{S_KMO}, s{S_T1}, {WS_KM}
    s_lshl_b32 s{S_T1}, s{S_T0}, 12
    s_add_u32 s{S_VMO}, s{S_T1}, {WS_VM}
''')

def ld(a, dst, vaddr, so, off, fl):
    if off >= 4096:
        a(f'    s_add_u32 s{S_T0}, s{so}, {off & ~4095}')
        a(f'    buffer_load_dwordx4 {vr(dst,4)}, {vr(vaddr)}, {WS}, s{S_T0} offen offset:{off & 4095} {fl}')
    else:
        a(f'    buffer_load_dwordx4 {vr(dst,4)}, {vr(vaddr)}, {WS}, s{so} offen offset:{off} {fl}')

def emit_loads_x(a, fl=''):
    for j in range(8): ld(a, B_Q + 4 * j, V_STK, S_QO, j * 1024, fl)
    for j in range(8): ld(a, B_K + 4 * j, V_STK, S_KO, j * 1024, fl)
    for j in range(8): ld(a, B_V + 4 * j, V_LIN16, S_VO, j * 1024, fl)
def emit_loads_m(a, fl=''):
    for j in range(8): ld(a, B_KM + 4 * j, V_KM, S_KMO, j * 256, fl)
    for j in range(4): ld(a, B_VM + 4 * j, V_LIN16, S_VMO, j * 1024, fl)

def emit_compute(a, ST='', fused=False):
    for j in range(8):
        if not fused: a(f'    s_waitcnt vmcnt({36 - 9 - j})')
        C = vr(V_MASK, 16) if j == 0 else vr(SX, 16)
        a(f'    v_mfma_f32_32x32x16_bf16 {vr(SX,16)}, {vr(B_K + 4*j,4)}, {vr(B_Q + 4*j,4)}, {C}')
    for j in range(8):
        a(f'    s_waitcnt vmcnt({36 - 25 - j})')
        C = '0' if j == 0 else vr(SM, 16)
        a(f'    v_mfma_f32_32x32x16_bf16 {vr(SM,16)}, {vr(B_KM + 4*j,4)}, {vr(B_Q + 4*j,4)}, {C}')
    M, T1, NEG = T, T + 1, T + 2
    a(f'    v_max3_f32 {vr(M)}, {vr(SX)}, {vr(SX+1)}, {vr(SX+2)}')
    for r in range(3, 15, 2):
        a(f'    v_max3_f32 {vr(M)}, {vr(M)}, {vr(SX+r)}, {vr(SX+r+1)}')
    a(f'    v_max_f32 {vr(M)}, {vr(M)}, {vr(SX+15)}')
    a(f'    v_max3_f32 {vr(M)}, {vr(M)}, {vr(SM)}, {vr(SM+1)}')
    a(f'    v_max3_f32 {vr(M)}, {vr(M)}, {vr(SM+2)}, {vr(SM+3)}')
    a(f'''
    v_mov_b32 {vr(T1)}, {vr(M)}
    v_permlane32_swap_b32 {vr(M)}, {vr(T1)}
    v_max_f32 {vr(M)}, {vr(M)}, {vr(T1)}
    v_mul_f32 {vr(NEG)}, s{S_CC}, {vr(M)}
''')
    regs = [SX + 2 * i for i in range(8)] + [SM, SM + 2]
    for r in regs:
        a(f'    v_pk_fma_f32 {vr(r,2)}, {vr(r,2)}, s[{S_CC}:{S_CC+1}], {vr(NEG,2)} op_sel_hi:[1,1,0] neg_lo:[0,0,1] neg_hi:[0,0,1]')
    for r in regs:
        a(f'    v_exp_f32 {vr(r)}, {vr(r)}'); a(f'    v_exp_f32 {vr(r+1)}, {vr(r+1)}')
    for i in range(8):
        a(f'    v_cvt_pk_bf16_f32 {vr(PX+i)}, {vr(SX+2*i)}, {vr(SX+2*i+1)}')
    a(f'''
    v_cvt_pk_bf16_f32 {vr(PM)}, {vr(SM)}, {vr(SM+1)}
    v_mov_b32 {vr(PM+1)}, 0
    v_cvt_pk_bf16_f32 {vr(PM+2)}, {vr(SM+2)}, {vr(SM+3)}
    v_mov_b32 {vr(PM+3)}, 0
''')
    for i in range(1, 8):
        a(f'    v_pk_add_f32 {vr(SX,2)}, {vr(SX,2)}, {vr(SX+2*i,2)}')
    a(f'    v_pk_add_f32 {vr(SX,2)}, {vr(SX,2)}, {vr(SM,2)}')
    a(f'    v_pk_add_f32 {vr(SX,2)}, {vr(SX,2)}, {vr(SM+2,2)}')
    a(f'''
    v_add_f32 {vr(M)}, {vr(SX)}, {vr(SX+1)}
    v_mov_b32 {vr(T1)}, {vr(M)}
    v_permlane32_swap_b32 {vr(M)}, {vr(T1)}
    v_add_f32 {vr(M)}, {vr(M)}, {vr(T1)}
    v_rcp_f32 {vr(NEG)}, {vr(M)}
    s_waitcnt vmcnt(0)
''')
    for ft in range(4):
        a(f'    v_permlane16_swap_b32 {vr(B_VM + 4*ft)}, {vr(B_VM + 4*ft + 2)}')
    for ft in range(4):
        D = O0 + 16 * ft
        a(f'    v_mfma_f32_32x32x16_bf16 {vr(D,16)}, {vr(B_V + 8*ft,4)}, {vr(PX,4)}, 0')
        a(f'    v_mfma_f32_32x32x16_bf16 {vr(D,16)}, {vr(B_V + 8*ft + 4,4)}, {vr(PX+4,4)}, {vr(D,16)}')
        a(f'    v_mfma_f32_32x32x16_bf16 {vr(D,16)}, {vr(B_VM + 4*ft,4)}, {vr(PM,4)}, {vr(D,16)}')
    a(f'    s_add_u32 s{S_T1}, s{S_OO}, 4096')
    k = 0
    for ft in range(4):
        D = O0 + 16 * ft
        for cb in range(2):
            E = SX + (k % 4) * 4; k += 1
            for i in range(4):
                r = D + 8 * cb + 2 * i
                a(f'    v_pk_mul_f32 {vr(r,2)}, {vr(r,2)}, {vr(NEG,2)} op_sel_hi:[1,0]')
                a(f'    v_cvt_pk_bf16_f32 {vr(E+i)}, {vr(r)}, {vr(r+1)}')
            off = (4 * ft + 2 * cb) * 512
            so = S_OO if off < 4096 else S_T1
            a(f'    buffer_store_dwordx4 {vr(E,4)}, {vr(V_LIN16)}, {WS}, s{so} offen offset:{off % 4096} {ST}')

def emit_attn_kernel(a, cfg):
    a(f"""
    s_load_dwordx2 s[{SRD_WS}:{SRD_WS+1}], s[0:1], {KA_WS}
    v_lshrrev_b32 v1, 6, v0
    s_nop 1
    v_readfirstlane_b32 s{S_W}, v1
    s_waitcnt lgkmcnt(0)
    s_mov_b32 s{SRD_WS+2}, {WS_SIZE}
    s_mov_b32 s{SRD_WS+3}, 0x20000
    s_lshl_b32 s{S_U}, s2, 2
    s_add_u32 s{S_U}, s{S_U}, s{S_W}
""")
    emit_setup(a)
    a('L_at_loop:')
    a(f"""
    s_lshr_b32 s{S_S}, s{S_U}, 5
    s_and_b32 s{S_HH}, s{S_U}, 31
""")
    emit_offsets(a)
    emit_loads_x(a); emit_loads_m(a)
    emit_compute(a)
    a(f"""
    s_add_u32 s{S_U}, s{S_U}, 1024
    s_cmp_lt_u32 s{S_U}, 2048
    s_waitcnt vmcnt(0)
    s_cbranch_scc1 L_at_loop
""")


S_DBG2, S_CNT, S_ERR, S_WID = 22, 24, 25, 90
def poll(a, lab, voff_reg, check, maxn=200000, sleep=16):
    a(f"""
    s_mov_b32 s{S_CNT}, 0
{lab}:
    buffer_load_dword v6, {vr(voff_reg)}, {WS}, 0 offen sc1
    s_waitcnt vmcnt(0)
    v_readfirstlane_b32 s{S_T0}, v6
{check}
    s_cbranch_scc1 {lab}_d
    s_sleep {sleep}
    s_add_u32 s{S_CNT}, s{S_CNT}, 1
    s_cmp_lt_u32 s{S_CNT}, s{S_ERR}
    s_cbranch_scc1 {lab}
    s_mov_b32 s{S_ERR}, 0
{lab}_d:
""")

def emit_attn_worker(a, cfg):
    a(f"""
    s_load_dwordx2 s[{SRD_WS}:{SRD_WS+1}], s[0:1], {KA_WS}
    s_load_dwordx2 s[{S_DBG2}:{S_DBG2+1}], s[0:1], {KA_DBG}
    s_waitcnt lgkmcnt(0)
    s_mov_b32 s{SRD_WS+2}, {WS_SIZE}
    s_mov_b32 s{SRD_WS+3}, 0x20000
    s_mov_b32 s{S_ERR}, {cfg.get('maxpoll_w', 400000)}
    s_lshr_b32 s{S_S}, s{S_WID}, 3
    s_and_b32 s{S_HH}, s{S_WID}, 7
    s_lshl_b32 s{S_HH}, s{S_HH}, 2
    s_add_u32 s{S_HH}, s{S_HH}, s{S_W}
""")
    emit_setup(a)
    a('L_atw_loop:')
    a(f"""
    s_lshr_b32 s{S_T1}, s{S_S}, 3
    s_lshl_b32 s{S_T1}, s{S_T1}, 7
    s_add_u32 s{S_T1}, s{S_T1}, {FL_G1}
    v_mov_b32 v7, s{S_T1}
""")
    poll(a, 'L_atw_p1', 7, f'    s_and_b32 s{S_T0}, s{S_T0}, 0xffff\n    s_cmp_eq_u32 s{S_T0}, {128 + (32 << 8)}')
    emit_offsets(a)
    emit_loads_x(a)
    a(f"""
    s_lshl_b32 s{S_T1}, s{S_HH}, 7
    s_add_u32 s{S_T1}, s{S_T1}, {FL_P}
    v_mov_b32 v7, s{S_T1}
""")
    poll(a, 'L_atw_p2', 7, f'    s_cmp_gt_u32 s{S_T0}, s{S_S}', sleep=4)
    emit_loads_m(a)
    emit_compute(a, 'sc1', fused=True)
    a(f"""
    s_waitcnt vmcnt(0)
    s_lshl_b32 s{S_T0}, s{S_S}, 7
    s_add_u32 s{S_T0}, s{S_T0}, {FL_O}
    v_mov_b32 v6, 0
    v_mov_b32 v7, 1
    s_mov_b64 exec, 1
    buffer_atomic_add v7, v6, {WS}, s{S_T0} offen sc1
    s_mov_b64 exec, -1
    s_add_u32 s{S_S}, s{S_S}, {cfg.get('ngq', 4)}
    s_cmp_lt_u32 s{S_S}, 64
    s_cbranch_scc1 L_atw_loop
    s_waitcnt vmcnt(0)
""")
```

```python
from asmlib import *
from layout import *
import struct

LDS_M, LDS_QK, LDS_OX, LDS_MISC, LDS_KB, LDS_W = 0, 8192, 12288, 14336, 16384, 32768

S_H, S_W, S_STEP, S_ERR, S_CNT = 3, 4, 5, 6, 7
SRD_WS, SRD_A = 8, 12
S_DBG, S_WSP = 16, 18
S_MCUR, S_MNXT, S_MOTH, S_MPOLL = 20, 21, 22, 47
S_PST, S_PL0, S_PL1, S_PR0, S_PR1 = 23, 24, 25, 26, 27
S_KSRC, S_KDST, S_VSRC, S_KMO, S_VMO = 28, 29, 30, 31, 32
S_T0, S_T1, S_T2 = 33, 34, 35
S_KMP, S_VMP = 62, 63
S_MASK_T = 36
S_MASK_ODD = 38
S_MASK_M = 40
S_MASK_PB = 42
S_EXEC = 44
S_C = 46
S_SEL = 48
S_TM0, S_TM1 = 56, 58
S_WBASE, S_WBASE_O, S_DBGM = 60, 61, 45
S_MASK_ODDL = 100
S_ST = 64
S_TS = 80
SRD_Q, SRD_K, SRD_V, SRD_O = 84, 88, 92, 96

V_LIN16, V_PLD, V_MST, V_QW, V_QR, V_K0, V_K1, V_OW, V_OR, V_VLD, V_IDX, V_WL = range(12)
V_VB = 12
V_VX = 16
V_ON16 = 24
R_X = 26
R_M, R_S, R_Q, R_K = 32, 64, 96, 112
V_WV = 128

def wq(ks, sel): return ar(0 + (ks * 2 + sel) * 8, 8)
def wk(ks, sel): return ar(96 + (ks * 2 + sel) * 8, 8)
def wo0(tau): return ar(192 + tau * 8, 8)
def wv(ks, sel): return vr(V_WV + (ks * 2 + sel) * 8, 8)

SOFT_C = (128 ** -0.5) * 1.4426950408889634
def f2u(x): return struct.unpack('<I', struct.pack('<f', x))[0]
WS = f's[{SRD_WS}:{SRD_WS+3}]'

class LG:
    def __init__(self, a):
        self.a = a; self.n = 0; self.tags = {}; self.done = 0
    def issue(self, text, tag=None):
        self.a(text); self.n += 1
        if tag is not None: self.tags[tag] = self.n
    def wait(self, tag):
        pos = self.tags[tag]
        if pos <= self.done: return
        k = self.n - pos
        self.a('    s_waitcnt lgkmcnt(%d)' % min(k, 15))
        self.done = self.n - min(k, 15)
    def wait_all(self):
        self.a('    s_waitcnt lgkmcnt(0)'); self.done = self.n

STAMP_RAW = 64
STAMP_ACC = 84
def stamp(a, cfg, k):
    if not cfg.get('stamp'): return
    a(f'    s_memtime s[{STAMP_RAW+2*k}:{STAMP_RAW+2*k+1}]')

def T(a, cfg, k):
    if 'trace' not in cfg: return
    if k in cfg.get('tset', range(16)):
        a(f'    s_memtime s[{64+2*k}:{64+2*k+1}]')

def trace_dump(a, cfg, w):
    if 'trace' not in cfg: return
    lab = f'L_trd{w}'
    a(f"""
    s_cmp_lg_u32 s{S_STEP}, {cfg['trace']}
    s_cbranch_scc1 {lab}
    s_waitcnt lgkmcnt(0)
    s_lshl_b32 s{S_T0}, s{S_H}, 2
    s_add_u32 s{S_T0}, s{S_T0}, {w}
    s_lshl_b32 s{S_T0}, s{S_T0}, 7
    s_add_u32 s{S_T0}, s{S_T0}, 0x8000
    s_mov_b64 exec, 1
    v_mov_b32 {vr(R_X)}, 0
""")
    for k in range(16):
        a(f'    v_mov_b32 {vr(R_X+1)}, s{64+2*k}')
        a(f'    buffer_store_dword {vr(R_X+1)}, {vr(R_X)}, {WS}, s{S_T0} offen offset:{4*k}')
    a(f'    s_mov_b64 exec, -1\n{lab}:')

def stamp_accum(a, cfg):
    if not cfg.get('stamp'): return
    a('    s_waitcnt lgkmcnt(0)')
    order = [9, 0, 1, 2, 3, 4, 5, 6, 7, 8]
    prev = 94
    for k in order:
        a(f'    s_sub_u32 s{S_T0}, s{STAMP_RAW+2*k}, s{prev}')
        a(f'    s_add_u32 s{STAMP_ACC+k}, s{STAMP_ACC+k}, s{S_T0}')
        prev = STAMP_RAW + 2 * k
    a(f'    s_mov_b32 s94, s{STAMP_RAW+2*8}')

DUMP_BASE = 0x0800_0000
_dumpn = [0]
def dump(a, cfg, w, slot, first, n):
    if 'dumpstep' not in cfg: return
    _dumpn[0] += 1
    lab = 'L_dmp%d' % _dumpn[0]
    a(f"""
    s_cmp_lg_u32 s{S_STEP}, {cfg['dumpstep']}
    s_cbranch_scc1 {lab}
    s_waitcnt lgkmcnt(0)
    s_nop 15
    s_lshl_b32 s{S_T0}, s{S_H}, 2
    s_add_u32 s{S_T0}, s{S_T0}, {w}
    s_lshl_b32 s{S_T0}, s{S_T0}, 15
    s_add_u32 s{S_T0}, s{S_T0}, {DUMP_BASE + slot * 0x400000}
""")
    for r in range(n):
        a(f'    buffer_store_dword {vr(first + r)}, {vr(V_LIN16)}, {WS}, s{S_T0} offen')
        a(f'    s_add_u32 s{S_T0}, s{S_T0}, 1024')
    a(f'{lab}:')

def smf(acc, A, B):
    return f'    v_smfmac_f32_16x16x64_bf16 {vr(acc,4)}, {vr(A,4)}, {B}, {vr(V_IDX)}'
def mf32(D, A, B, C):
    return f'    v_mfma_f32_16x16x32_bf16 {vr(D,4)}, {A}, {B}, {C}'
def pkadd(d, x, y):
    return f'    v_pk_add_f32 {vr(d,2)}, {vr(x,2)}, {vr(y,2)}'
def cvt(d, x, y):
    return f'    v_cvt_pk_bf16_f32 {vr(d)}, {vr(x)}, {vr(y)}'

def emit_setup(a, cfg, w):
    t0, t1, t2 = R_X, R_X + 1, R_X + 2
    L = R_X + 5
    a(f'''
    v_and_b32 {vr(L)}, 63, v0
    v_lshlrev_b32 {vr(V_LIN16)}, 4, {vr(L)}
    ; V_PLD = (l>>2)*8192 + R*64 + (l&3)*16 ; R = 4h+w
    s_lshl_b32 s{S_T0}, s{S_H}, 2
    s_add_u32 s{S_T0}, s{S_T0}, {w}          ; R
    s_lshl_b32 s{S_T1}, s{S_T0}, 6
    v_lshrrev_b32 {vr(t0)}, 2, {vr(L)}
    v_lshlrev_b32 {vr(t0)}, 13, {vr(t0)}
    v_and_b32 {vr(t1)}, 3, {vr(L)}
    v_lshlrev_b32 {vr(t1)}, 4, {vr(t1)}
    v_add3_u32 {vr(V_PLD)}, {vr(t0)}, {vr(t1)}, s{S_T1}
    s_lshr_b32 s{S_T1}, s{S_T0}, 4
    s_lshl_b32 s{S_T1}, s{S_T1}, 10
    s_and_b32 s{S_T2}, s{S_T0}, 3
    s_lshl_b32 s{S_T2}, s{S_T2}, 8
    s_add_u32 s{S_T1}, s{S_T1}, s{S_T2}
    s_and_b32 s{S_T2}, s{S_T0}, 12              ; gR*4
    s_lshl_b32 s{S_T2}, s{S_T2}, 4              ; 4 gR * 16
    s_add_u32 s{S_T1}, s{S_T1}, s{S_T2}
    v_bfe_u32 {vr(t0)}, {vr(L)}, 4, 1
    v_lshlrev_b32 {vr(t0)}, 5, {vr(t0)}
    v_bfe_u32 {vr(t1)}, {vr(L)}, 2, 1
    v_lshlrev_b32 {vr(t1)}, 4, {vr(t1)}
    v_and_b32 {vr(t2)}, 3, {vr(L)}
    v_lshlrev_b32 {vr(t2)}, 2, {vr(t2)}
    v_add3_u32 {vr(t0)}, {vr(t0)}, {vr(t1)}, {vr(t2)}
    v_add_u32 {vr(V_MST)}, s{S_T1}, {vr(t0)}
    v_and_b32 {vr(t0)}, 15, {vr(L)}
    v_lshlrev_b32 {vr(t0)}, 4, {vr(t0)}
    v_lshrrev_b32 {vr(t1)}, 4, {vr(L)}
    v_lshlrev_b32 {vr(t1)}, 2, {vr(t1)}
    v_add_u32 {vr(t0)}, {vr(t0)}, {vr(t1)}
    v_add_u32 {vr(V_QW)}, {LDS_QK + w * 1024}, {vr(t0)}
    v_lshrrev_b32 {vr(t0)}, 5, {vr(L)}
    v_lshlrev_b32 {vr(t0)}, 9, {vr(t0)}
    v_bfe_u32 {vr(t1)}, {vr(L)}, 4, 1
    v_lshlrev_b32 {vr(t1)}, 6, {vr(t1)}
    v_bfe_u32 {vr(t2)}, {vr(L)}, 2, 2
    v_lshlrev_b32 {vr(t2)}, 4, {vr(t2)}
    v_add3_u32 {vr(t0)}, {vr(t0)}, {vr(t1)}, {vr(t2)}
    v_bfe_u32 {vr(t1)}, {vr(L)}, 1, 1
    v_lshlrev_b32 {vr(t1)}, 3, {vr(t1)}
    v_add_u32 {vr(t0)}, {vr(t0)}, {vr(t1)}
    v_add_u32 {vr(V_QR)}, {LDS_QK}, {vr(t0)}
    v_lshrrev_b32 {vr(t0)}, 4, {vr(L)}
    v_lshlrev_b32 {vr(t0)}, 9, {vr(t0)}
    v_and_b32 {vr(t1)}, 15, {vr(L)}
    v_lshlrev_b32 {vr(t1)}, 4, {vr(t1)}
    v_add_u32 {vr(t0)}, {vr(t0)}, {vr(t1)}
    v_bfe_u32 {vr(t2)}, {vr(L)}, 3, 1
    v_lshlrev_b32 {vr(t2)}, 8, {vr(t2)}
    v_add_u32 {vr(V_K0)}, {vr(t0)}, {vr(t2)}
    v_add_u32 {vr(V_K0)}, {LDS_KB}, {vr(V_K0)}
    v_add_u32 {vr(V_K1)}, {LDS_KB + 128}, {vr(t0)}
    v_lshrrev_b32 {vr(t0)}, 4, {vr(L)}
    v_lshlrev_b32 {vr(t0)}, 7, {vr(t0)}
    v_bfe_u32 {vr(t1)}, {vr(L)}, 3, 1
    v_lshlrev_b32 {vr(t1)}, 6, {vr(t1)}
    v_and_b32 {vr(t2)}, 3, {vr(L)}
    v_lshlrev_b32 {vr(t2)}, 4, {vr(t2)}
    v_add3_u32 {vr(V_OW)}, {vr(t0)}, {vr(t1)}, {vr(t2)}
    v_lshrrev_b32 {vr(t0)}, 4, {vr(L)}
    v_lshlrev_b32 {vr(t0)}, 8, {vr(t0)}
    v_bfe_u32 {vr(t1)}, {vr(L)}, 1, 1
    v_lshlrev_b32 {vr(t1)}, 7, {vr(t1)}
    v_bfe_u32 {vr(t2)}, {vr(L)}, 2, 2
    v_lshlrev_b32 {vr(t2)}, 5, {vr(t2)}
    v_add3_u32 {vr(t0)}, {vr(t0)}, {vr(t1)}, {vr(t2)}
    v_and_b32 {vr(t1)}, 1, {vr(L)}
    v_lshlrev_b32 {vr(t1)}, 4, {vr(t1)}
    v_add_u32 {vr(t0)}, {vr(t0)}, {vr(t1)}
    v_add_u32 {vr(V_OR)}, {LDS_OX}, {vr(t0)}
    ; V_VLD = (g>>1)*1024 + (g&1)*512 + f16*16
    v_lshrrev_b32 {vr(t0)}, 5, {vr(L)}
    v_lshlrev_b32 {vr(t0)}, 10, {vr(t0)}
    v_bfe_u32 {vr(t1)}, {vr(L)}, 4, 1
    v_lshlrev_b32 {vr(t1)}, 9, {vr(t1)}
    v_and_b32 {vr(t2)}, 15, {vr(L)}
    v_lshlrev_b32 {vr(t2)}, 4, {vr(t2)}
    v_add3_u32 {vr(V_VLD)}, {vr(t0)}, {vr(t1)}, {vr(t2)}
    v_bfe_u32 {vr(t0)}, {vr(L)}, 1, 1
    v_mov_b32 {vr(t1)}, 0x4444
    v_mov_b32 {vr(t2)}, 0xeeee
    v_cmp_eq_u32 vcc, 1, {vr(t0)}
    v_cndmask_b32 {vr(V_IDX)}, {vr(t1)}, {vr(t2)}, vcc
    v_add_u32 {vr(V_WL)}, {LDS_W + w * 32768}, {vr(V_LIN16)}
    v_mov_b32 {vr(V_VB+1)}, 0
    v_mov_b32 {vr(V_VB+3)}, 0
    v_mov_b32 {vr(V_ON16)}, 0x3f803f80
    v_mov_b32 {vr(V_ON16+1)}, 0
    v_bfe_u32 {vr(t0)}, {vr(L)}, 1, 3
''')
    for u in range(4):
        a(f'    v_cmp_eq_u32 s[{S_SEL+2*u}:{S_SEL+2*u+1}], {u}, {vr(t0)}')
    a(f'''
    s_mov_b32 s{S_MASK_T}, 0x0f0f0f0f
    s_mov_b32 s{S_MASK_T+1}, 0x0f0f0f0f
    s_mov_b32 s{S_MASK_ODD}, 0xffff0000
    s_mov_b32 s{S_MASK_ODD+1}, 0xffff0000
    s_mov_b32 s{S_MASK_M}, 0x00ff00ff
    s_mov_b32 s{S_MASK_M+1}, 0
    s_mov_b32 s{S_MASK_PB}, 0xf0f0f0f0
    s_mov_b32 s{S_MASK_PB+1}, 0xf0f0f0f0
    s_mov_b32 s{S_C}, {f2u(SOFT_C):#x}
''')

def emit_init(a, cfg, w):
    t = R_S
    L = R_X + 5
    ST = cfg['st']
    a(f"""
    v_mov_b32 {vr(t)}, -1
    v_mov_b32 {vr(t+1)}, -1
    v_mov_b32 {vr(t+2)}, -1
    v_mov_b32 {vr(t+3)}, -1
""")
    for off in (0, 131072, 262144, 262144 + 131072):
        a(f"""
    s_mov_b32 s{S_T0}, {WS_P + off}
    buffer_store_dwordx4 {vr(t,4)}, {vr(V_PLD)}, {WS}, s{S_T0} offen {ST}
""")
    a(f"""
    s_lshl_b32 s{S_T0}, s{S_H}, 2
    s_add_u32 s{S_T0}, s{S_T0}, {w}
    s_lshr_b32 s{S_T1}, s{S_T0}, 4
    s_lshl_b32 s{S_T1}, s{S_T1}, 7
    s_and_b32 s{S_T2}, s{S_T0}, 3
    s_lshl_b32 s{S_T2}, s{S_T2}, 3          ; 4 ga * 2
    s_add_u32 s{S_T1}, s{S_T1}, s{S_T2}
    s_bfe_u32 s{S_T2}, s{S_T0}, 0x20002     ; gR
    s_lshl_b32 s{S_T2}, s{S_T2}, 11         ; 2 gR * 1024
    s_add_u32 s{S_T1}, s{S_T1}, s{S_T2}
    v_bfe_u32 {vr(t+4)}, {vr(L)}, 4, 1
    v_lshlrev_b32 {vr(t+4)}, 6, {vr(t+4)}    ; 32 half * 2
    v_bfe_u32 {vr(t+5)}, {vr(L)}, 2, 1
    v_lshlrev_b32 {vr(t+5)}, 10, {vr(t+5)}
    v_and_b32 {vr(t+6)}, 3, {vr(L)}
    v_lshlrev_b32 {vr(t+6)}, 1, {vr(t+6)}
    v_add3_u32 {vr(t+4)}, {vr(t+4)}, {vr(t+5)}, {vr(t+6)}
    v_add_u32 {vr(t+4)}, s{S_T1}, {vr(t+4)}
    buffer_load_ushort {vr(t+5)}, {vr(t+4)}, s[{SRD_A}:{SRD_A+3}], 0 offen
    buffer_load_ushort {vr(t+6)}, {vr(t+4)}, s[{SRD_A}:{SRD_A+3}], 0 offen offset:32
    s_waitcnt vmcnt(0)
    v_lshl_or_b32 {vr(t+5)}, {vr(t+6)}, 16, {vr(t+5)}
    v_min_u32 {vr(t+5)}, -2, {vr(t+5)}
    s_mov_b64 exec, s[{S_MASK_M}:{S_MASK_M+1}]
    s_mov_b32 s{S_T0}, {WS_M}
    buffer_store_dword {vr(t+5)}, {vr(V_MST)}, {WS}, s{S_T0} offen {ST}
    s_mov_b32 s{S_T0}, {WS_M + 8192}
    buffer_store_dword {vr(t)}, {vr(V_MST)}, {WS}, s{S_T0} offen {ST}
    s_mov_b32 s{S_T0}, {WS_M + 16384}
    buffer_store_dword {vr(t)}, {vr(V_MST)}, {WS}, s{S_T0} offen {ST}
""")
    if cfg.get('dbgm'):
        a(f"""
    s_mov_b32 s{S_T0}, {WS_DBGM}
    buffer_store_dword {vr(t+5)}, {vr(V_MST)}, {WS}, s{S_T0} offen
""")
    a(f"""
    s_mov_b64 exec, -1
    s_waitcnt vmcnt(0)
""")

def emit_weight_prologue(a, cfg, w):
    L = R_X + 5
    vq0, vq1, vo0, vo1 = R_Q, R_Q + 1, R_Q + 2, R_Q + 3
    t0, t1, t2 = R_X, R_X + 1, R_X + 2
    tA, tB, tA2, tB2, tO = R_Q + 4, R_Q + 5, R_Q + 6, R_Q + 7, R_Q + 8
    for gb1, (vq, vo) in enumerate(((vq0, vo0), (vq1, vo1))):
        a(f'''
    v_lshrrev_b32 {vr(t0)}, 4, {vr(L)}                ; r
    v_bfe_u32 {vr(t1)}, {vr(L)}, 1, 3                 ; pp
    v_add_u32 {vr(t2)}, {gb1*4}, {vr(t0)}
    v_xor_b32 {vr(t1)}, {vr(t1)}, {vr(t2)}
    v_lshlrev_b32 {vr(t1)}, 5, {vr(t1)}
    v_and_b32 {vr(t2)}, 1, {vr(L)}
    v_lshlrev_b32 {vr(t2)}, 4, {vr(t2)}
    v_add_u32 {vr(t1)}, {vr(t1)}, {vr(t2)}
    v_and_b32 {vr(t2)}, 1, {vr(t0)}
    v_lshlrev_b32 {vr(t2)}, 17, {vr(t2)}
    v_add_u32 {vr(vq)}, {vr(t1)}, {vr(t2)}
    v_lshrrev_b32 {vr(t2)}, 1, {vr(t0)}
    v_lshlrev_b32 {vr(t2)}, 18, {vr(t2)}
    v_add_u32 {vr(vq)}, {vr(vq)}, {vr(t2)}
    v_and_b32 {vr(t2)}, 1, {vr(t0)}
    v_lshlrev_b32 {vr(t2)}, 10, {vr(t2)}
    v_add_u32 {vr(vo)}, {vr(t1)}, {vr(t2)}
    v_lshrrev_b32 {vr(t2)}, 1, {vr(t0)}
    v_lshlrev_b32 {vr(t2)}, 12, {vr(t2)}
    v_add_u32 {vr(vo)}, {vr(vo)}, {vr(t2)}
''')
    a(f'''
    v_lshrrev_b32 {vr(t0)}, 2, {vr(L)}
    v_lshlrev_b32 {vr(t1)}, 8, {vr(t0)}
    v_and_b32 {vr(t0)}, 7, {vr(t0)}
    v_lshlrev_b32 {vr(t0)}, 5, {vr(t0)}
    v_and_b32 {vr(t2)}, 3, {vr(L)}
    v_lshlrev_b32 {vr(t2)}, 3, {vr(t2)}
    v_add3_u32 {vr(t0)}, {vr(t0)}, {vr(t1)}, {vr(t2)}
    v_add_u32 {vr(tO)}, {LDS_W}, {vr(t0)}
    v_xor_b32 {vr(tA)}, {(2*w) << 5}, {vr(tO)}
    v_xor_b32 {vr(tB)}, 32, {vr(tA)}
    v_add_u32 {vr(tA2)}, 0x10000, {vr(tA)}
    v_add_u32 {vr(tB2)}, 0x10000, {vr(tB)}
    s_lshl_b32 s{S_WBASE}, s{S_H}, 8
    s_add_u32 s{S_WBASE}, s{S_WBASE}, {(8 * (w >> 1) + (w & 1)) * 8192}
    s_lshl_b32 s{S_WBASE_O}, s{S_H}, 17
    s_add_u32 s{S_WBASE_O}, s{S_WBASE_O}, {(32 * (w >> 1) + 2 * (w & 1)) * 1024}
''')
    units = []
    for m in ('q', 'k'):
        for ks in range(6): units.append((m, ks))
    for ks in range(8): units.append(('v', ks))
    for p in range(4): units.append(('o0', p))
    units += [('q', 6), ('o1', 0), ('q', 7), ('o1', 1), ('k', 6), ('o1', 2), ('k', 7), ('o1', 3)]
    srd = {'q': SRD_Q, 'k': SRD_K, 'v': SRD_V, 'o0': SRD_O, 'o1': SRD_O}
    def issue(u):
        m, x = units[u]
        slot = u % 8
        S = srd[m]
        for gb in range(4):
            if m in ('q', 'k', 'v'):
                uni = (64 * x + 4 * (gb >> 1) + 2 * (gb & 1)) * 8192
                vo = vq1 if gb & 1 else vq0
                base = S_WBASE
            else:
                kap = 0 if m == 'o0' else 1
                uni = (64 * kap + 16 * (gb & 1) + 8 * (gb >> 1)) * 1024 + x * 256
                vo = vo1 if gb & 1 else vo0
                base = S_WBASE_O
            a(f'''
    s_mov_b32 m0, {LDS_W + slot * 16384 + w * 4096 + gb * 1024}
    s_add_u32 s{S_T1}, s{base}, {uni}
    buffer_load_dwordx4 {vr(vo)}, s[{S}:{S+3}], s{S_T1} offen lds
''')
    def qkv_reads(slot, dsts):
        for sel in range(2):
            addr = (tA, tB)[sel] if slot < 4 else (tA2, tB2)[sel]
            off = (slot % 4) * 16384
            for U in range(4):
                a(f'    ds_read_b64_tr_b16 {dsts(sel, U)}, {vr(addr)} offset:{off + U * 4096}')
    def wo_reads(slot, dsts):
        a(f'    v_add_u32 {vr(tO+1)}, {slot * 16384}, {vr(tO)}')
        for tau in range(8):
            a(f'    v_xor_b32 {vr(tO+2)}, {tau << 5}, {vr(tO+1)}')
            for U in range(4):
                a(f'    ds_read_b64_tr_b16 {dsts(tau, U)}, {vr(tO+2)} offset:{U * 4096}')
            if tau % 2 == 1: a('    s_waitcnt lgkmcnt(0)')
    NIF = 7
    for u in range(NIF): issue(u)
    for u in range(24):
        m, x = units[u]
        slot = u % 8
        a(f'    s_waitcnt vmcnt({4 * (NIF - 1)}) lgkmcnt(0)')
        a('    s_barrier')
        if m == 'v':
            qkv_reads(slot, lambda sel, U: vr(V_WV + (x * 2 + sel) * 8 + 2 * U, 2))
        elif m in ('q', 'k'):
            qkv_reads(slot, lambda sel, U: ar((0 if m == 'q' else 96) + (x * 2 + sel) * 8 + 2 * U, 2))
        elif x == w:
            wo_reads(slot, lambda tau, U: ar(192 + tau * 8 + 2 * U, 2))
        issue(u + NIF)
    a('    s_waitcnt lgkmcnt(0)')
    a('    s_barrier')
    issue(31)
    a('    s_waitcnt vmcnt(0)')
    a('    s_barrier')
    for f2, slot in enumerate((0, 2, 4, 6)):
        qkv_reads(slot, lambda sel, U: vr(R_M + (f2 * 2 + sel) * 8 + 2 * U, 2))
        a('    s_waitcnt lgkmcnt(0)')
    a('    s_barrier')
    for f in range(8):
        for hh in range(2):
            a(f'    ds_write_b128 {vr(V_WL)}, {vr(R_M + f * 8 + 4 * hh, 4)} offset:{f * 2048 + hh * 1024}')
    a('    s_waitcnt lgkmcnt(0)')
    wo_reads(2 * w + 1, lambda tau, U: vr(R_M + tau * 8 + 2 * U, 2))
    a('    s_waitcnt lgkmcnt(0)')
    for f in range(8):
        for hh in range(2):
            a(f'    ds_write_b128 {vr(V_WL)}, {vr(R_M + f * 8 + 4 * hh, 4)} offset:{16384 + f * 2048 + hh * 1024}')
    a('    s_waitcnt lgkmcnt(0)')
    a('    s_barrier')

def stage(lg, dst, f, tag=None):
    return [(lambda hh=hh: lg.issue(f'    ds_read_b128 {vr(dst + 4*hh, 4)}, {vr(V_WL)} offset:{f * 2048 + hh * 1024}', tag if hh == 1 else None)) for hh in range(2)]

def poll_check(a, regs, retry):
    a(f"""
    v_max3_u32 {vr(R_X)}, {vr(regs)}, {vr(regs+1)}, {vr(regs+2)}
    v_max3_u32 {vr(R_X+1)}, {vr(regs+3)}, {vr(regs+4)}, {vr(regs+5)}
    v_max3_u32 {vr(R_X)}, {vr(R_X)}, {vr(regs+6)}, {vr(regs+7)}
    v_max_u32 {vr(R_X)}, {vr(R_X)}, {vr(R_X+1)}
    v_cmp_eq_u32 vcc, -1, {vr(R_X)}
    s_cbranch_vccnz {retry}
""")

def retry_block(a, name, back, done, loads):
    a(f"""
{name}:
    s_add_u32 s{S_CNT}, s{S_CNT}, 1
    s_cmp_lt_u32 s{S_CNT}, s{S_ERR}
    s_cbranch_scc0 {name}_to
{loads}
    s_branch {back}
{name}_to:
    s_mov_b32 s{S_ERR}, 0
    s_branch {done}
""")

def hop2_loads(w):
    PM = R_M + 8 * w
    return (f'    buffer_load_dwordx4 {vr(PM,4)}, {vr(V_LIN16)}, {WS}, s{S_MPOLL} offen sc1\n'
            f'    buffer_load_dwordx4 {vr(PM+4,4)}, {vr(V_LIN16)}, {WS}, s{S_MPOLL} offen offset:1024 sc1\n')
def hop1_loads():
    PA = R_Q
    return (f'    buffer_load_dwordx4 {vr(PA,4)}, {vr(V_PLD)}, {WS}, s{S_PL0} offen sc1\n'
            f'    buffer_load_dwordx4 {vr(PA+4,4)}, {vr(V_PLD)}, {WS}, s{S_PL1} offen sc1\n')

def idle_prep(a, lg):
    for f in range(4):
        for th in stage(lg, R_S + f * 8, f, f'wq{f}'): th()
    for r in range(16):
        a(f'    v_mov_b32 {vr(R_K + r)}, 0')

def weave(a, mf, fill):
    for i, m in enumerate(mf):
        if callable(m): m()
        else: a(m)
        for f in fill.get(i, []):
            if callable(f): f()
            else: a(f)

def mov64(r, src='0'):
    return f'    v_mov_b64 {vr(r,2)}, {src}'

class Sched:
    def __init__(self, a): self.a = a; self.mf = []; self.ds = {}; self.va = {}; self.pre = {}
    def add(self, m): self.mf.append(m); return len(self.mf) - 1
    def D(self, i, x): self.ds.setdefault(i, []).append(x)
    def V(self, i, x): self.va.setdefault(i, []).append(x)
    def P(self, i, x): self.pre.setdefault(i, []).append(x)
    def emit(self):
        run = lambda x: x() if callable(x) else self.a(x)
        for i, m in enumerate(self.mf):
            for x in self.pre.get(i, []): run(x)
            run(m)
            for x in self.ds.get(i, []): run(x)
            for x in self.va.get(i, []): run(x)

S_CC = 96
S_ONE2 = 98

def emit_step(a, cfg, w, last, ool):
    lg = LG(a)
    ST = cfg['st']
    tag = f'{w}' + ('l' if last else 'm')
    own = (2 * w, 2 * w + 1)
    PM = R_M + 8 * w
    accQ, accK = R_K, R_K + 8
    X = R_X
    np2 = cfg.get('np2', 1)
    nres = 2 if not cfg.get('noreset') else 0
    a(f"    s_waitcnt vmcnt({2 * (np2 - 1)})")
    poll_check(a, PM, f'L_p2r_{tag}')
    a(f'L_p2d_{tag}:')
    T(a, cfg, 0)
    def ool2():
        a(f"""
L_p2r_{tag}:
    s_add_u32 s{S_CNT}, s{S_CNT}, 1
    s_cmp_lt_u32 s{S_CNT}, s{S_ERR}
    s_cbranch_scc0 L_p2r_{tag}_to
""")
        a(hop2_loads(w))
        a(f"    s_waitcnt vmcnt({2 * (np2 - 1)})")
        poll_check(a, PM, f'L_p2r_{tag}')
        a(f"""
    s_branch L_p2d_{tag}
L_p2r_{tag}_to:
    s_mov_b32 s{S_ERR}, 0
    s_branch L_p2d_{tag}
""")
    ool.append(ool2)
    stamp(a, cfg, 9)
    lg.n = 8; lg.done = 0
    for f in range(4): lg.tags[f'wq{f}'] = 2 * f + 2
    lg.issue(f'    ds_write_b128 {vr(V_LIN16)}, {vr(PM,4)} offset:{LDS_M + own[0] * 1024}')
    lg.issue(f'    ds_write_b128 {vr(V_LIN16)}, {vr(PM+4,4)} offset:{LDS_M + own[1] * 1024}', 'mw')
    def Wq(ks, sel): return wq(ks, sel) if ks < 6 else vr(R_S + ((ks - 6) * 2 + sel) * 8, 8)
    def Wk(ks, sel): return wk(ks, sel) if ks < 6 else vr(R_S + ((ks - 6) * 2 + sel) * 8, 8)
    def Qs(ks, sel): return smf(accQ + 4 * sel, R_M + 4 * ks, Wq(ks, sel))
    def Ks(ks, sel): return smf(accK + 4 * sel, R_M + 4 * ks, Wk(ks, sel))
    accV = R_S + 16
    def Vs(ks, sel): return smf(accV + 4 * sel, R_M + 4 * ks, wv(ks, sel))
    others = [ks for ks in (6, 7, 0, 1, 2, 3, 4, 5) if ks not in own]
    mread = {ks: (lambda ks=ks: lg.issue(f'    ds_read_b128 {vr(R_M + 4*ks, 4)}, {vr(V_LIN16)} offset:{LDS_M + ks * 1024}', f'm{ks}')) for ks in others}
    wkst = []
    for f in range(4): wkst += stage(lg, R_S + f * 8, 4 + f, f'wk{f}')
    def waits(*tags):
        def f():
            for t in tags:
                if t in lg.tags: lg.wait(t)
        return f
    S = Sched(a)
    if not last:
        for ks in own:
            for sel in range(2):
                i = S.add(Qs(ks, sel))
                if ks >= 6 and sel == 0: S.P(i, waits('wq3'))
    if w < 3:
        for ks in own:
            for sel in range(2): S.add(Ks(ks, sel))
    nE = len(S.mf)
    bgv = []
    KP = R_Q
    pub_prev = [lambda: lg.issue(f'    ds_read_b64_tr_b16 {vr(KP, 2)}, {vr(V_QR)} offset:{256 + w * 1024}'),
                lambda: lg.issue(f'    ds_read_b64_tr_b16 {vr(KP + 2, 2)}, {vr(V_QR)} offset:{256 + w * 1024 + 128}', 'kp')]
    if not last:
        bgv += [f'    s_mov_b32 m0, s{S_KDST}',
                f'    buffer_load_dwordx4 {vr(V_LIN16)}, {WS}, s{S_KSRC} offen lds',
                f'    buffer_load_dwordx4 {vr(V_LIN16)}, {WS}, s{S_KSRC} offen offset:1024 lds',
                f'    s_mov_b32 m0, {LDS_MISC + w * 512}',
                f'    buffer_load_dword {vr(V_VLD)}, {WS}, s{S_VSRC} offen lds',
                f'    buffer_load_dword {vr(V_VLD)}, {WS}, s{S_VSRC} offen offset:256 lds']
    bgv += [f'    buffer_store_dwordx4 {vr(X+2,4)}, {vr(V_PLD)}, {WS}, s{S_PR0} offen {ST}',
            f'    buffer_store_dwordx4 {vr(X+2,4)}, {vr(V_PLD)}, {WS}, s{S_PR1} offen {ST}',
            f'    buffer_store_dwordx4 {vr(V_VB,4)}, {vr(V_LIN16)}, {WS}, s{S_VMP} offen offset:{w * 1024} sc1']
    if cfg.get('progress') and w == 0 and not last:
        bgv += [f'    s_sub_u32 s{S_T1}, s{S_STEP}, 1', f'    s_max_i32 s{S_T1}, s{S_T1}, 0', f'    s_lshl_b32 s{S_T0}, s{S_H}, 7', f'    s_add_u32 s{S_T0}, s{S_T0}, {FL_P}',
                f'    v_mov_b32 {vr(X)}, s{S_T1}', f'    v_mov_b32 {vr(X+1)}, 0', f'    s_mov_b64 exec, 1',
                f'    buffer_store_dword {vr(X)}, {vr(X+1)}, {WS}, s{S_T0} offen sc1', f'    s_mov_b64 exec, -1']
    kmpub = [waits('kp'), f'    s_mov_b64 exec, s[{S_MASK_T}:{S_MASK_T+1}]',
             f'    buffer_store_dwordx4 {vr(KP,4)}, {vr(V_OW)}, {WS}, s{S_KMP} offen offset:{w * 512} sc1',
             f'    s_mov_b64 exec, -1']
    PB = min(cfg.get('pb', 5), nE - 1)
    rd = list(others)
    for th in pub_prev: th()
    if nE > 0:
        S.D(PB, lambda: T(a, cfg, 1)); S.D(PB, waits('mw')); S.D(PB, '    s_barrier'); S.D(PB, lambda: T(a, cfg, 2))
        S.D(PB, mread[rd.pop(0)]); S.D(PB, mread[rd.pop(0)])
        S.D(PB, lambda: stamp(a, cfg, 0))
        g = PB + 1
    laststagedQ = None
    if not last:
        for ks in others:
            for sel in range(2):
                i = S.add(Qs(ks, sel))
                if sel == 0: S.P(i, waits(f'm{ks}', 'wq3') if ks >= 6 else waits(f'm{ks}'))
                if ks >= 6: laststagedQ = i
        if laststagedQ is None: laststagedQ = 3
        while rd:
            S.D(g, mread[rd.pop(0)]); g += 1
        groups = []; cur = []
        for x in bgv:
            cur.append(x)
            if (x.strip().startswith('buffer') and not x.strip().startswith('buffer_store_dword ')) or x.strip().endswith('exec, -1'):
                groups.append(cur); cur = []
        late = groups[2:]
        for x in groups[0]: S.V(1, x)
        for x in groups[1]: S.V(nE + 3, x)
        for x in kmpub: S.V(nE + 8, x)
        bg_late = late
        g = max(g, laststagedQ)
        k = 0
        while k < 8 and g < len(S.mf):
            S.D(g, wkst[k]); k += 1; g += 1
        S.emit()
        while k < 8: wkst[k](); k += 1
    else:
        for x in bgv: a(x)
        for x in kmpub: x() if callable(x) else a(x)
        if nE > 0:
            S.emit()
        else:
            lg.wait('mw'); a('    s_barrier')
        for ks in rd: mread[ks]()
        for th in wkst: th()
    stamp(a, cfg, 1)
    T(a, cfg, 3)
    nonst = [ks for ks in others if ks < 6]
    if w < 3: kord = [6, nonst[0], 7] + nonst[1:]
    else: kord = [0, 6, 1, 7, 2, 3, 4, 5]
    S = Sched(a)
    pos6 = pos7 = None
    for ks in kord:
        for sel in range(2):
            i = S.add(Ks(ks, sel))
            if sel == 0:
                t = [f'm{ks}']
                if ks >= 6: t.append(f'wk{(ks - 6) * 2 + 1}')
                S.P(i, waits(*t))
            if ks == 6: pos6 = i
            if ks == 7: pos7 = i
    nk = len(S.mf)
    Sx, KA, Sm = R_K, R_S, R_S + 24
    if not last:
        S.V(1, pkadd(accQ, accQ, accQ + 2)); S.V(1, pkadd(accQ + 4, accQ + 4, accQ + 6))
        S.V(2, cvt(accQ, accQ, accQ + 1)); S.V(2, cvt(accQ + 4, accQ + 4, accQ + 5))
        S.D(3, lambda: lg.issue(f'    ds_write2_b32 {vr(V_QW)}, {vr(accQ)}, {vr(accQ+4)} offset0:0 offset1:128', 'qw'))
        kx = {(tau, k2): (lambda tau=tau, k2=k2: lg.issue(f'    ds_read_b128 {vr(R_S + tau*16 + 4*k2, 4)}, {vr((V_K0, V_K1)[tau])} offset:{k2 * 2048}', f'kx{tau}{k2}'))
              for tau in range(2) for k2 in range(4)}
        qb = [(lambda k2=k2, hh=hh: lg.issue(f'    ds_read_b64_tr_b16 {vr(R_Q + 4*k2 + 2*hh, 2)}, {vr(V_QR)} offset:{k2 * 1024 + hh * 128}', f'q{k2}'))
              for k2 in range(4) for hh in range(2)]
        g = max(pos6, 4)
        for k2 in range(4):
            S.D(g, kx[(0, k2)]); g += 1
        gb = cfg.get('gb1', 8)
        S.D(gb, waits('qw')); S.D(gb, '    s_barrier'); S.D(gb, lambda: T(a, cfg, 4))
        rest = qb[:]
        gq = gb
        while rest:
            S.D(min(gq, nk - 1), rest.pop(0))
            if rest: S.D(min(gq, nk - 1), rest.pop(0))
            gq += 1
        kx1 = [kx[(1, k2)] for k2 in range(4)]
        for gi, grp in zip((0, 2, 5, 10), (bg_late[0], bg_late[1], bg_late[2], bg_late[4])):
            for x in grp: S.V(gi, x)
        S.emit()
    else:
        S.emit()
    stamp(a, cfg, 2)
    T(a, cfg, 5)
    kf = [pkadd(accK, accK, accK + 2), pkadd(accK + 4, accK + 4, accK + 6), cvt(accK, accK, accK + 1), cvt(accK + 4, accK + 4, accK + 5)]
    kw = lambda: lg.issue(f'    ds_write2_b32 {vr(V_QW)}, {vr(accK)}, {vr(accK+4)} offset0:64 offset1:192', 'kw')
    kar = [(lambda k2=k2, hh=hh: lg.issue(f'    ds_read_b64_tr_b16 {vr(KA + 4*k2 + 2*hh, 2)}, {vr(V_QR)} offset:{256 + k2 * 1024 + hh * 128}', f'k{k2}'))
           for k2 in range(4) for hh in range(2)]
    if not last:
        for th in kx1: th()
        S = Sched(a)
        for tau in range(2):
            for k2 in range(4):
                i = S.add(mf32(Sx + 4 * tau, vr(R_S + tau * 16 + 4 * k2, 4), vr(R_Q + 4 * k2, 4), '0' if k2 == 0 else vr(Sx + 4 * tau, 4)))
                S.P(i, waits(f'q{k2}', f'kx{tau}{k2}'))
        S.V(0, kf[0]); S.V(0, kf[1]); S.V(1, kf[2]); S.V(1, kf[3]); S.D(2, kw)
        S.V(6, mov64(accV)); S.V(6, mov64(accV + 2)); S.V(7, mov64(accV + 4)); S.V(7, mov64(accV + 6))
        S.D(7, waits('kw')); S.D(7, '    s_barrier'); S.D(7, kar[0]); S.D(7, kar[1])
        for x in bg_late[3]: S.V(4, x)
        if len(bg_late) > 5:
            for x in bg_late[5]: S.V(5, x)
        dump(a, cfg, w, 0, R_Q, 16)
        S.emit()
        karest = kar[2:]
    else:
        for x in kf: a(x)
        kw()
        for r in range(0, 8, 2): a(mov64(accV + r))
        lg.wait('kw'); a('    s_barrier')
        karest = kar
    stamp(a, cfg, 3)
    T(a, cfg, 6)
    MX, NEG, T0 = X, X + 2, X + 4
    Px, Lx, ON, Ox = R_K + 8, R_K + 12, R_S + 28, R_K
    vm = [Vs(ks, sel) for ks in range(8) for sel in range(2)]
    kmst = [f'    s_mov_b64 exec, s[{S_MASK_T}:{S_MASK_T+1}]',
            f'    buffer_store_dwordx4 {vr(KA + 4*w,4)}, {vr(V_OW)}, {WS}, s{S_KMO} offen offset:{w * 512} sc1',
            f'    s_mov_b64 exec, -1']
    if last:
        for th in karest: th()
        for x in vm: a(x)
        lg.wait('k3')
        for x in kmst: a(x)
        a(pkadd(accV, accV, accV + 2)); a(pkadd(accV + 4, accV + 4, accV + 6))
        a(cvt(V_VB, accV, accV + 1)); a(cvt(V_VB + 2, accV + 4, accV + 5))
        a(f'    buffer_store_dwordx4 {vr(V_VB,4)}, {vr(V_LIN16)}, {WS}, s{S_VMO} offen offset:{w * 1024} sc1')
        return
    T1 = X + 1
    sx = [f'    v_max3_f32 {vr(MX)}, {vr(Sx)}, {vr(Sx+1)}, {vr(Sx+2)}',
          f'    v_max3_f32 {vr(T1)}, {vr(Sx+3)}, {vr(Sx+4)}, {vr(Sx+5)}',
          f'    v_max3_f32 {vr(MX)}, {vr(MX)}, {vr(Sx+6)}, {vr(Sx+7)}',
          f'    v_max_f32 {vr(MX)}, {vr(MX)}, {vr(T1)}',
          f'    v_mov_b32 {vr(T1)}, {vr(MX)}',
          mov64(ON, f's[{S_ONE2}:{S_ONE2+1}]'),
          f'    v_permlane16_swap_b32 {vr(MX)}, {vr(T1)}',
          mov64(ON + 2, f's[{S_ONE2}:{S_ONE2+1}]'),
          f'    v_max_f32 {vr(MX)}, {vr(MX)}, {vr(T1)}',
          f'    v_mov_b32 {vr(T1)}, {vr(MX)}',
          '    s_nop 0',
          f'    v_permlane32_swap_b32 {vr(MX)}, {vr(T1)}',
          f'    v_max_f32 {vr(MX)}, {vr(MX)}, {vr(T1)}',
          f'    v_mul_f32 {vr(NEG)}, s{S_C}, {vr(MX)}']
    for r in range(4):
        sx.append(f'    v_pk_fma_f32 {vr(Sx+2*r,2)}, {vr(Sx+2*r,2)}, s[{S_CC}:{S_CC+1}], {vr(NEG,2)} op_sel_hi:[1,1,0] neg_lo:[0,0,1] neg_hi:[0,0,1]')
    for r in range(8):
        sx.append(f'    v_exp_f32 {vr(Sx+r)}, {vr(Sx+r)}')
    for r in range(4):
        sx.append(cvt(Px + r, Sx + 2 * r, Sx + 2 * r + 1))
    NV1 = cfg.get('nv1', 8)
    S = Sched(a)
    for x in vm[:NV1]: S.add(x)
    g = 0
    while karest:
        S.D(g, karest.pop(0)); S.D(g, karest.pop(0)); g += 1
    q = list(sx)
    per = -(-len(q) // NV1)
    for g in range(NV1):
        for x in q[:per]: S.V(g, x)
        q = q[per:]
    b = len(S.mf)
    for k2 in range(4):
        i = S.add(mf32(Sm, vr(KA + 4 * k2, 4), vr(R_Q + 4 * k2, 4), '0' if k2 == 0 else vr(Sm, 4)))
        S.P(i, waits(f'k{k2}'))
    S.P(b, lambda: T(a, cfg, 7))
    for phi in range(2):
        S.add(mf32(Ox + 4 * phi, vr(V_VX + 4 * phi, 4), vr(Px, 4), '0'))
    il = S.add(mf32(Lx, vr(ON, 4), vr(Px, 4), '0'))
    S.V(il - 1, f'    buffer_load_dwordx4 {vr(V_VX,4)}, {vr(V_VLD)}, {WS}, s{S_VSRC} offen')
    S.V(il, f'    buffer_load_dwordx4 {vr(V_VX+4,4)}, {vr(V_VLD)}, {WS}, s{S_VSRC} offen offset:256')
    MM = X + 1
    S0 = Px + 0
    al = T0
    sl = [f'    v_max3_f32 {vr(MM)}, {vr(Sm)}, {vr(Sm+1)}, {vr(Sm+2)}',
          f'    v_cndmask_b32 {vr(S0)}, {vr(Sm)}, {vr(Sm+2)}, s[{S_MASK_ODD}:{S_MASK_ODD+1}]',
          f'    v_max3_f32 {vr(MM)}, {vr(MM)}, {vr(Sm+3)}, {vr(MX)}',
          f'    v_cndmask_b32 {vr(S0+1)}, {vr(Sm+1)}, {vr(Sm+3)}, s[{S_MASK_ODD}:{S_MASK_ODD+1}]',
          f'    v_mov_b32 {vr(al)}, {vr(MM)}',
          mov64(R_Q), mov64(R_Q + 2),
          f'    v_permlane32_swap_b32 {vr(MM)}, {vr(al)}',
          f'    v_max_f32 {vr(MM)}, {vr(MM)}, {vr(al)}',
          f'    v_mul_f32 {vr(NEG)}, s{S_C}, {vr(MM)}',
          f'    v_sub_f32 {vr(al)}, {vr(MX)}, {vr(MM)}',
          f'    v_pk_fma_f32 {vr(S0,2)}, {vr(S0,2)}, s[{S_CC}:{S_CC+1}], {vr(NEG,2)} op_sel_hi:[1,1,0] neg_lo:[0,0,1] neg_hi:[0,0,1]',
          f'    v_mul_f32 {vr(al)}, s{S_C}, {vr(al)}',
          f'    v_exp_f32 {vr(S0)}, {vr(S0)}',
          f'    v_exp_f32 {vr(S0+1)}, {vr(S0+1)}',
          f'    v_exp_f32 {vr(al)}, {vr(al)}',
          cvt(Px + 2, S0, S0 + 1)]
    for r in range(4):
        sl.append(f'    v_pk_mul_f32 {vr(Ox+2*r,2)}, {vr(Ox+2*r,2)}, {vr(al,2)} op_sel_hi:[1,0]')
    sl.append(f'    v_mul_f32 {vr(Lx)}, {vr(Lx)}, {vr(al)}')
    b2 = len(S.mf)
    for x in vm[NV1:]: S.add(x)
    nrem = 16 - NV1
    first = cfg.get('slfirst', 1)
    q = list(sl)
    per = -(-len(q) // (nrem - first))
    for g in range(first, nrem):
        for x in q[:per]: S.V(b2 + g, x)
        q = q[per:]
    S.emit()
    stamp(a, cfg, 4)
    T(a, cfg, 8)
    PM16 = Px + 2
    nyoung = 2 + 2 + 2 + 1 + 1 + 2 + (1 if (cfg.get('progress') and w == 0) else 0)
    a(f'    s_waitcnt vmcnt({nyoung})')
    stg = []
    for tau in range(4): stg += stage(lg, R_M + tau * 8, 8 + tau, f'wo{tau}')
    seq = [stg[0], mov64(R_Q + 4), mov64(R_Q + 6), stg[1],
           pkadd(accV, accV, accV + 2), pkadd(accV + 4, accV + 4, accV + 6), stg[2],
           cvt(V_VB, accV, accV + 1), cvt(V_VB + 2, accV + 4, accV + 5), stg[3]]
    for x in seq: x() if callable(x) else a(x)
    for phi in range(2):
        a(f'    v_mfma_f32_16x16x16_bf16 {vr(Ox + 4*phi, 4)}, {vr(V_VB + 2*phi, 2)}, {vr(PM16, 2)}, {vr(Ox + 4*phi, 4)}')
    a(f'    v_mfma_f32_16x16x16_bf16 {vr(Lx, 4)}, {vr(V_ON16, 2)}, {vr(PM16, 2)}, {vr(Lx, 4)}')
    for r in range(8, 16, 2): a(mov64(R_Q + r))
    stg[4](); stg[5]()
    a(f'    v_rcp_f32 {vr(al)}, {vr(Lx)}')
    for r in range(4):
        a(f'    v_pk_mul_f32 {vr(Ox+2*r,2)}, {vr(Ox+2*r,2)}, {vr(al,2)} op_sel_hi:[1,0]')
    dump(a, cfg, w, 2, Ox, 8)
    O4 = Px
    for r in range(4): a(cvt(O4 + r, Ox + 2 * r, Ox + 2 * r + 1))
    a(f'    s_mov_b64 exec, s[{S_MASK_T}:{S_MASK_T+1}]')
    lg.issue(f'    ds_write_b128 {vr(V_OW)}, {vr(O4,4)} offset:{LDS_OX + w * 512}', 'ow')
    a('    s_mov_b64 exec, -1')
    for r in range(0, 8, 2): a(mov64(R_K + r))
    T(a, cfg, 9)
    lg.wait('ow')
    a('    s_barrier')
    T(a, cfg, 10)
    OA = R_S + 24
    for kap in range(2):
        lg.issue(f'    ds_read_b128 {vr(OA + 4*kap, 4)}, {vr(V_OR)} offset:{kap * 1024}', f'oa{kap}')
    stg[6](); stg[7]()
    for r in range(8, 16, 2): a(mov64(R_K + r))
    stamp(a, cfg, 5)
    dump(a, cfg, w, 4, OA, 8)
    accO = [R_Q + 4 * i for i in range(4)] + [R_K + 4 * i for i in range(4)]
    def src1(tau): return R_M + tau * 8 if tau < 4 else (R_S + (tau - 4) * 8 if tau < 7 else R_M)
    stg2 = []
    for tau in range(4, 7): stg2 += stage(lg, R_S + (tau - 4) * 8, 8 + tau, f'wo{tau}')
    last7 = stage(lg, R_M, 8 + 7, 'wo7')
    def gran(q):
        T = [accO[4 * q + t] for t in range(4)]
        ins = [pkadd(T[t], T[t], T[t] + 2) for t in range(4)]
        ins += [cvt(T[0], T[0], T[0] + 1), cvt(T[0] + 1, T[1], T[1] + 1), cvt(T[0] + 2, T[2], T[2] + 1), cvt(T[0] + 3, T[3], T[3] + 1)]
        ins.append(f'    buffer_store_dwordx4 {vr(T[0],4)}, {vr(V_LIN16)}, {WS}, s{S_PST} offen offset:{q*1024} {ST}')
        return ins
    S = Sched(a)
    order = [(0,0),(1,0),(2,0),(3,0),(4,0),(5,0),(0,1),(1,1),(2,1),(3,1),(6,0),(7,0),(4,1),(5,1),(6,1),(7,1)]
    idx = {}
    for tau, kap in order:
        if kap == 0:
            i = S.add(smf(accO[tau], OA, wo0(tau))); S.P(i, waits('oa0'))
        else:
            i = S.add(smf(accO[tau], OA + 4, vr(src1(tau), 8))); S.P(i, waits('oa1', f'wo{tau}'))
        idx[(tau, kap)] = i
    for k, th in enumerate(stg2): S.D(k, th)
    S.D(idx[(0, 1)], last7[0]); S.D(idx[(0, 1)] + 1, last7[1])
    g0 = gran(0)
    p = idx[(3, 1)] + 2
    S.V(p, g0[0]); S.V(p, g0[1]); S.V(p + 1, g0[2]); S.V(p + 1, g0[3]); S.V(p + 2, g0[4]); S.V(p + 2, g0[5]); S.V(p + 3, g0[6]); S.V(p + 3, g0[7]); S.V(p + 4, g0[8])
    S.emit()
    for x in gran(1): a(x)
    stamp(a, cfg, 6)
    T(a, cfg, 11)
    PA, D, SEL = R_Q, R_Q + 8, R_Q + 12
    lg2 = LG(a)
    a(f'    v_mov_b32 {vr(X)}, 0x3f80')
    a(f'    v_mov_b32 {vr(X+1)}, 0x3f800000')
    a(f'    v_cndmask_b32 {vr(X)}, {vr(X)}, {vr(X+1)}, s[{S_MASK_ODDL}:{S_MASK_ODDL+1}]')
    for u in range(4):
        a(f'    v_cndmask_b32 {vr(SEL+u)}, 0, {vr(X)}, s[{S_SEL+2*u}:{S_SEL+2*u+1}]')
    for f in range(4):
        for th in stage(lg2, R_S + f * 8, f): th()
    for r in range(0, 16, 2): a(mov64(R_K + r))
    a(mov64(X + 2, '-1')); a(mov64(X + 4, '-1'))
    a(f'    s_mov_b32 s{S_CNT}, 0')
    delay(a, cfg.get('d1', 0))
    a(hop1_loads())
    T(a, cfg, 12)
    np1 = cfg.get('np1', 1)
    for i in range(np1 - 1):
        delay(a, cfg.get('g1', 0))
        a(hop1_loads())
    if cfg.get('fused'):
        a(f"""
    s_and_b32 s{S_T0}, s{S_STEP}, 7
    s_cmp_eq_u32 s{S_T0}, 6
    s_cbranch_scc0 L_nkv_{tag}
    s_add_u32 s{S_T0}, s{S_STEP}, 2
    s_lshr_b32 s{S_T0}, s{S_T0}, 3
    s_lshl_b32 s{S_T0}, s{S_T0}, 7
    s_add_u32 s{S_T0}, s{S_T0}, {FL_G1}
    v_mov_b32 {vr(X)}, s{S_T0}
    buffer_load_dword {vr(X+1)}, {vr(X)}, {WS}, 0 offen sc1
L_nkv_{tag}:
""")
    a(f'L_p1w_{tag}:')
    a(f'    s_waitcnt vmcnt({2 * (np1 - 1)})')
    a(mf32(D, vr(SEL, 4), vr(PA, 4), '0'))
    a(mf32(D, vr(SEL, 4), vr(PA + 4, 4), vr(D, 4)))
    a(f'    v_cmp_u_f32 vcc, {vr(D)}, {vr(D)}')
    a(f'    s_cbranch_vccnz L_p1r_{tag}')
    a(f'L_p1d_{tag}:')
    ool.append(lambda: retry_block(a, f'L_p1r_{tag}', f'L_p1w_{tag}', f'L_p1d_{tag}', hop1_loads()))
    stamp(a, cfg, 7)
    T(a, cfg, 13)
    for r in range(4):
        a(f'    v_add_f32_dpp {vr(D+r)}, {vr(D+r)}, {vr(D+r)} row_ror:8 row_mask:0xf bank_mask:0xf')
    for r in range(4):
        a(f'    v_add_f32_dpp {vr(D+r)}, {vr(D+r)}, {vr(D+r)} row_ror:4 row_mask:0xf bank_mask:0xf')
    a(f"""
    v_cvt_pk_bf16_f32 {vr(D)}, {vr(D)}, {vr(D+2)}
    v_cvt_pk_bf16_f32 {vr(D+1)}, {vr(D+1)}, {vr(D+3)}
    s_mov_b64 exec, s[{S_MASK_M}:{S_MASK_M+1}]
    v_cndmask_b32 {vr(D)}, {vr(D)}, {vr(D+1)}, s[{S_MASK_PB}:{S_MASK_PB+1}]
    v_min_u32 {vr(D)}, -2, {vr(D)}
    buffer_store_dword {vr(D)}, {vr(V_MST)}, {WS}, s{S_MNXT} offen {ST}
""")
    if cfg.get('dbgm'):
        a(f"""
    s_add_u32 s{S_DBGM}, s{S_DBGM}, 8192
    buffer_store_dword {vr(D)}, {vr(V_MST)}, {WS}, s{S_DBGM} offen
""")
    a(f"""
    buffer_store_dword {vr(X+2)}, {vr(V_MST)}, {WS}, s{S_MCUR} offen {ST}
    s_mov_b64 exec, -1
""")
    stamp(a, cfg, 8)
    T(a, cfg, 14)
    a(f"""
    s_add_u32 s{S_MPOLL}, s{S_MNXT}, {w * 2048}
    s_mov_b32 s{S_CNT}, 0
    s_add_u32 s{S_STEP}, s{S_STEP}, 1
""")
    if cfg.get('fused'):
        a(f"""
    s_and_b32 s{S_T0}, s{S_STEP}, 7
    s_cmp_eq_u32 s{S_T0}, 7
    s_cbranch_scc0 L_ckv_{tag}
    s_cmp_ge_u32 s{S_STEP}, 57
    s_cbranch_scc1 L_ckv_{tag}
L_ckvl_{tag}:
    v_readfirstlane_b32 s{S_T0}, {vr(X+1)}
    s_and_b32 s{S_T0}, s{S_T0}, 0xff
    s_cmp_eq_u32 s{S_T0}, 64
    s_cbranch_scc1 L_ckv_{tag}
    s_add_u32 s{S_CNT}, s{S_CNT}, 1
    s_cmp_lt_u32 s{S_CNT}, 400000
    s_cbranch_scc0 L_ckv_{tag}
    s_sleep 2
    buffer_load_dword {vr(X+1)}, {vr(X)}, {WS}, 0 offen sc1
    s_waitcnt vmcnt(0)
    s_branch L_ckvl_{tag}
L_ckv_{tag}:
    s_mov_b32 s{S_CNT}, 0
""")
    delay(a, cfg.get('d2', 0))
    a(hop2_loads(w))
    a(f"""
    s_mov_b32 s{S_T0}, s{S_MCUR}
    s_mov_b32 s{S_MCUR}, s{S_MNXT}
    s_mov_b32 s{S_MNXT}, s{S_MOTH}
    s_mov_b32 s{S_MOTH}, s{S_T0}
    s_xor_b32 s{S_PST}, s{S_PST}, 0x40000
    s_mov_b32 s{S_PR0}, s{S_PL0}
    s_mov_b32 s{S_PR1}, s{S_PL1}
    s_xor_b32 s{S_PL0}, s{S_PL0}, 0x40000
    s_xor_b32 s{S_PL1}, s{S_PL1}, 0x40000
    s_add_u32 s{S_KSRC}, s{S_KSRC}, 0x40000
    s_xor_b32 s{S_KDST}, s{S_KDST}, 8192
    s_add_u32 s{S_VSRC}, s{S_VSRC}, 0x40000
    s_mov_b32 s{S_KMP}, s{S_KMO}
    s_mov_b32 s{S_VMP}, s{S_VMO}
    s_add_u32 s{S_KMO}, s{S_KMO}, 65536
    s_add_u32 s{S_VMO}, s{S_VMO}, 131072
    v_xor_b32 {vr(V_K0)}, 0x2000, {vr(V_K0)}
    v_xor_b32 {vr(V_K1)}, 0x2000, {vr(V_K1)}
""")
    T(a, cfg, 15)
    stamp_accum(a, cfg)
    trace_dump(a, cfg, w) if not last else None
    for i in range(np2 - 1):
        delay(a, cfg.get('g2', 0))
        a(hop2_loads(w))

def emit_wave(a, cfg, w):
    ool = []
    emit_setup(a, cfg, w)
    if cfg.get('fused'):
        a(f"""
    s_cmp_lg_u32 s{S_H}, 0
    s_cbranch_scc1 L_nofi_{w}
    v_mov_b64 {vr(R_S,2)}, 0
    v_mov_b64 {vr(R_S+2,2)}, 0
    s_mov_b32 s{S_T0}, {WS_FL + w * 4096}
""")
        for i in range(4):
            a(f'    buffer_store_dwordx4 {vr(R_S,4)}, {vr(V_LIN16)}, {WS}, s{S_T0} offen offset:{i * 1024} sc1')
        a(f"""
    s_waitcnt vmcnt(0)
L_nofi_{w}:
    s_barrier
""")
        if w == 0:
            a(f"""
    s_cmp_lg_u32 s{S_H}, 0
    s_cbranch_scc1 L_nofj
    s_mov_b64 exec, 1
    v_mov_b32 {vr(R_S)}, {DB_INIT}
    v_mov_b32 {vr(R_S+1)}, 1
    global_store_dword {vr(R_S)}, {vr(R_S+1)}, s[{S_DBG}:{S_DBG+1}] sc1
    s_mov_b64 exec, -1
L_nofj:
""")
    emit_init(a, cfg, w)
    a('    s_barrier')
    if w == 0:
        a(f"""
    s_mov_b64 exec, 1
    v_mov_b32 {vr(R_S)}, {DB_CBAR}
    v_mov_b32 {vr(R_S+1)}, 1
    global_atomic_add {vr(R_S)}, {vr(R_S+1)}, s[{S_DBG}:{S_DBG+1}]
    s_mov_b64 exec, -1
    s_waitcnt vmcnt(0)
""")
    emit_weight_prologue(a, cfg, w)
    if cfg.get('fused'):
        a(f"""
    v_mov_b32 {vr(R_S)}, {DB_INIT}
    s_mov_b32 s{S_CNT}, 0
L_ini_{w}:
    global_load_dword {vr(R_S+1)}, {vr(R_S)}, s[{S_DBG}:{S_DBG+1}] sc1
    s_waitcnt vmcnt(0)
    v_readfirstlane_b32 s{S_T0}, {vr(R_S+1)}
    s_cmp_lg_u32 s{S_T0}, 0
    s_cbranch_scc1 L_inid_{w}
    s_add_u32 s{S_CNT}, s{S_CNT}, 1
    s_cmp_lt_u32 s{S_CNT}, 100000
    s_cbranch_scc1 L_ini_{w}
L_inid_{w}:
    v_mov_b32 {vr(R_S)}, {FL_G1}
    s_mov_b32 s{S_CNT}, 0
L_kv0_{w}:
    buffer_load_dword {vr(R_S+1)}, {vr(R_S)}, {WS}, 0 offen sc1
    s_waitcnt vmcnt(0)
    v_readfirstlane_b32 s{S_T0}, {vr(R_S+1)}
    s_and_b32 s{S_T0}, s{S_T0}, 0xff
    s_cmp_eq_u32 s{S_T0}, 64
    s_cbranch_scc1 L_kv0d_{w}
    s_sleep 2
    s_add_u32 s{S_CNT}, s{S_CNT}, 1
    s_cmp_lt_u32 s{S_CNT}, 400000
    s_cbranch_scc1 L_kv0_{w}
L_kv0d_{w}:
""")
    a(f"""
    s_lshl_b32 s{S_T0}, s{S_H}, 13
    s_add_u32 s{S_T0}, s{S_T0}, {w * 2048}
    s_add_u32 s{S_KSRC}, s{S_T0}, {WS_K}
    s_mov_b32 s{S_KDST}, {LDS_KB + w * 2048}
    s_mov_b32 m0, s{S_KDST}
    s_add_u32 s{S_VSRC}, s{S_T0}, {WS_V}
    buffer_load_dwordx4 {vr(V_LIN16)}, {WS}, s{S_KSRC} offen lds
    buffer_load_dwordx4 {vr(V_LIN16)}, {WS}, s{S_KSRC} offen offset:1024 lds
    buffer_load_dwordx4 {vr(V_VX,4)}, {vr(V_VLD)}, {WS}, s{S_VSRC} offen
    buffer_load_dwordx4 {vr(V_VX+4,4)}, {vr(V_VLD)}, {WS}, s{S_VSRC} offen offset:256
    s_add_u32 s{S_KSRC}, s{S_KSRC}, 0x40000
    s_xor_b32 s{S_KDST}, s{S_KDST}, 8192
    s_add_u32 s{S_VSRC}, s{S_VSRC}, 0x40000
    s_mov_b32 s{S_STEP}, 0
    s_mov_b32 s{S_MCUR}, {WS_M}
    s_mov_b32 s{S_MNXT}, {WS_M + 8192}
    s_mov_b32 s{S_MOTH}, {WS_M + 16384}
    s_lshl_b32 s{S_T0}, s{S_H}, 13
    s_add_u32 s{S_PST}, s{S_T0}, {WS_P + w * 2048}
    s_mov_b32 s{S_PL0}, {WS_P}
    s_mov_b32 s{S_PL1}, {WS_P + 131072}
    s_mov_b32 s{S_PR0}, {WS_P + 262144}
    s_mov_b32 s{S_PR1}, {WS_P + 262144 + 131072}
    s_lshl_b32 s{S_T0}, s{S_H}, 11
    s_add_u32 s{S_KMO}, s{S_T0}, {WS_KM}
    s_lshl_b32 s{S_T0}, s{S_H}, 12
    s_add_u32 s{S_VMO}, s{S_T0}, {WS_VM}
    s_mov_b32 s{S_DBGM}, {WS_DBGM}
    s_mov_b32 s{S_KMP}, 0x0F000000
    s_mov_b32 s{S_VMP}, 0x0F000000
    s_mov_b32 s96, {f2u(SOFT_C):#x}
    s_mov_b32 s97, {f2u(SOFT_C):#x}
    s_mov_b32 s98, 0x3f803f80
    s_mov_b32 s99, 0x3f803f80
    s_mov_b32 s{S_MASK_ODDL}, 0xaaaaaaaa
    s_mov_b32 s{S_MASK_ODDL+1}, 0xaaaaaaaa
    v_mov_b32 {vr(R_S)}, {DB_CBAR}
    s_mov_b32 s{S_CNT}, 0
L_cb{w}:
    global_load_dword {vr(R_S+1)}, {vr(R_S)}, s[{S_DBG}:{S_DBG+1}] sc1
    s_waitcnt vmcnt(0)
    v_readfirstlane_b32 s{S_T0}, {vr(R_S+1)}
    s_cmp_ge_u32 s{S_T0}, 32
    s_cbranch_scc1 L_cbd{w}
    s_add_u32 s{S_CNT}, s{S_CNT}, 1
    s_cmp_lt_u32 s{S_CNT}, s{S_ERR}
    s_cbranch_scc1 L_cb{w}
    s_mov_b32 s{S_ERR}, 0
L_cbd{w}:
""")
    for k in range(10):
        a(f'    s_mov_b32 s{STAMP_ACC+k}, 0')
    a('    s_barrier')
    lg = LG(a)
    idle_prep(a, lg)
    a(mov64(R_X + 2, '-1')); a(mov64(R_X + 4, '-1'))
    a(f"""
    s_add_u32 s{S_MPOLL}, s{S_MCUR}, {w * 2048}
    s_mov_b32 s{S_CNT}, 0
""")
    a(hop2_loads(w))
    a(f"""
    s_memtime s[{S_TM0}:{S_TM0+1}]
    s_memrealtime s[74:75]
    s_waitcnt vmcnt(0) lgkmcnt(0)
    s_mov_b32 s94, s{S_TM0}
L_step{w}:
""")
    emit_step(a, cfg, w, False, ool)
    a(f"""
    s_cmp_lt_u32 s{S_STEP}, {cfg.get('nsteps', 63)}
    s_cbranch_scc1 L_step{w}
""")
    emit_step(a, cfg, w, True, ool)
    a(f"""
    s_waitcnt vmcnt(0)
    s_barrier
    s_memtime s[{S_TM1}:{S_TM1+1}]
    s_memrealtime s[76:77]
    s_waitcnt lgkmcnt(0)
""")
    if cfg.get('progress') and w == 0:
        a(f"""
    s_mov_b64 exec, 1
    v_mov_b32 {vr(R_X)}, 64
    s_lshl_b32 s{S_T0}, s{S_H}, 7
    s_add_u32 s{S_T0}, s{S_T0}, {FL_P}
    v_mov_b32 {vr(R_X+1)}, 0
    buffer_store_dword {vr(R_X)}, {vr(R_X+1)}, {WS}, s{S_T0} offen sc1
    s_mov_b64 exec, -1
""")
    if cfg.get('timing'):
        a(f"""
    s_sub_u32 s{S_TM1}, s{S_TM1}, s{S_TM0}
    s_lshl_b32 s{S_T0}, s{S_H}, 2
    s_add_u32 s{S_T0}, s{S_T0}, {w}
    s_lshl_b32 s{S_T0}, s{S_T0}, 7
    s_add_u32 s{S_T0}, s{S_T0}, 0x1000
    s_mov_b64 exec, 1
    v_mov_b32 {vr(R_X)}, 0
    v_mov_b32 {vr(R_X+1)}, s{S_TM1}
    buffer_store_dword {vr(R_X+1)}, {vr(R_X)}, {WS}, s{S_T0} offen
    v_mov_b32 {vr(R_X+1)}, s{S_ERR}
    buffer_store_dword {vr(R_X+1)}, {vr(R_X)}, {WS}, s{S_T0} offen offset:4
""")
        for k in range(13):
            a(f'    v_mov_b32 {vr(R_X+1)}, s{(STAMP_ACC+k) if k < 10 else (74 if k == 10 else (76 if k == 11 else 73))}')
            a(f'    buffer_store_dword {vr(R_X+1)}, {vr(R_X)}, {WS}, s{S_T0} offen offset:{8+4*k}')
        a('    s_mov_b64 exec, -1')
    a('    s_branch L_chain_end')
    for f in ool: f()

class Filt:
    def __init__(self, a, cfg): self.a = a; self.cfg = cfg; self.lines = a.lines
    def __call__(self, text):
        out = []
        for ln in text.split('\n'):
            if self.cfg.get('nopub') and ('sc1' in ln and 'store_dwordx4' in ln): continue
            if self.cfg.get('nokv') and (' lds' in ln and f's{S_KSRC}' in ln): continue
            if self.cfg.get('nokv') and (f's{S_VSRC} offen' in ln): continue
            if self.cfg.get('noreset') and (f's{S_PR0} offen' in ln or f's{S_PR1} offen' in ln):
                continue
            out.append(ln)
        self.a('\n'.join(out))
    def label(self, n): self.a.label(n)

def emit_chain(a, cfg):
    a = Filt(a, cfg)
    a(f"""
    s_load_dwordx2 s[{S_WSP}:{S_WSP+1}], s[0:1], {KA_WS}
    s_load_dwordx2 s[{S_DBG}:{S_DBG+1}], s[0:1], {KA_DBG}
    s_load_dwordx2 s[{SRD_Q}:{SRD_Q+1}], s[0:1], {KA_WQ}
    s_load_dwordx2 s[{SRD_K}:{SRD_K+1}], s[0:1], {KA_WK}
    s_load_dwordx2 s[{SRD_V}:{SRD_V+1}], s[0:1], {KA_WV}
    s_load_dwordx2 s[{SRD_O}:{SRD_O+1}], s[0:1], {KA_WO}
    s_load_dwordx2 s[{SRD_A}:{SRD_A+1}], s[0:1], {KA_MEM0}
    s_waitcnt lgkmcnt(0)
    s_mov_b32 s{SRD_WS}, s{S_WSP}
    s_mov_b32 s{SRD_WS+1}, s{S_WSP+1}
    s_mov_b32 s{SRD_WS+2}, {WS_SIZE}
    s_mov_b32 s{SRD_WS+3}, 0x20000
    s_mov_b32 s{SRD_A+2}, 8192
    s_mov_b32 s{SRD_A+3}, 0x20000
""")
    for S in (SRD_Q, SRD_K, SRD_V, SRD_O):
        a(f'    s_mov_b32 s{S+2}, 0x400000\n    s_mov_b32 s{S+3}, 0x20000')
    a(f'    s_mov_b32 s{S_ERR}, {cfg.get("maxpoll", 20000)}')
    for w in range(1, 4):
        a(f'    s_cmp_eq_u32 s{S_W}, {w}\n    s_cbranch_scc1 L_wave{w}')
    for w in range(4):
        a(f'L_wave{w}:')
        emit_wave(a, cfg, w)
    a('L_chain_end:')
```

```python
from asmlib import *
from layout import *

S_W = 4
SRD_WS, SRD_WO, SRD_W2, SRD_OUT = 8, 12, 16, 20
S_SL, S_SEG, S_NSEG = 5, 6, 7
S_OA, S_HA, S_OAN, S_HAN = 24, 25, 26, 27
S_T0, S_T1, S_T2 = 28, 29, 30
S_STEP, S_END = 31, 32
WS = f's[{SRD_WS}:{SRD_WS+3}]'
V_LIN16, V_L, V_TR, V_DM, V_RW, V_RR, V_GA, V_OUT, V_TMP = 0, 1, 2, 3, 4, 5, 6, 7, 8
ACC_A, ACC_B = 12, 28 + 0
ACC_A, ACC_B = 16, 32
V_BUF = 48
NB = 24
V_W2 = 144
LDS_RED = 0

def wo(hh, jj): return ar((hh * 8 + jj) * 4, 4)
def w2(j): return vr(V_W2 + 4 * j, 4)

def emit_setup(a):
    L = V_L; t0, t1, t2 = 16, 17, 18
    a(f'''
    v_and_b32 {vr(L)}, 63, v0
    v_lshlrev_b32 {vr(V_LIN16)}, 4, {vr(L)}
    v_lshrrev_b32 {vr(t0)}, 2, {vr(L)}
    v_lshlrev_b32 {vr(t0)}, 10, {vr(t0)}
    v_and_b32 {vr(t1)}, 3, {vr(L)}
    v_lshlrev_b32 {vr(t1)}, 4, {vr(t1)}
    v_add_u32 {vr(V_DM)}, {vr(t0)}, {vr(t1)}
    v_lshrrev_b32 {vr(t0)}, 5, {vr(L)}
    v_lshlrev_b32 {vr(t0)}, 8, {vr(t0)}
    v_bfe_u32 {vr(t1)}, {vr(L)}, 2, 2
    v_lshlrev_b32 {vr(t1)}, 6, {vr(t1)}
    v_add_u32 {vr(t0)}, {vr(t0)}, {vr(t1)}
    v_bfe_u32 {vr(t1)}, {vr(L)}, 4, 1
    v_lshlrev_b32 {vr(t1)}, 5, {vr(t1)}
    v_and_b32 {vr(t2)}, 3, {vr(L)}
    v_lshlrev_b32 {vr(t2)}, 3, {vr(t2)}
    v_add3_u32 {vr(t0)}, {vr(t0)}, {vr(t1)}, {vr(t2)}
    s_lshl_b32 s{S_T0}, s{S_W}, 15
    v_add_u32 {vr(V_TR)}, s{S_T0}, {vr(t0)}
    v_and_b32 {vr(t0)}, 31, {vr(L)}
    v_lshlrev_b32 {vr(t1)}, 7, {vr(t0)}
    v_and_b32 {vr(t0)}, 7, {vr(t0)}
    v_lshrrev_b32 {vr(t2)}, 5, {vr(L)}
    v_xor_b32 {vr(t0)}, {vr(t0)}, {vr(t2)}
    v_lshlrev_b32 {vr(t0)}, 4, {vr(t0)}
    v_add_u32 {vr(t0)}, {vr(t0)}, {vr(t1)}
    s_lshl_b32 s{S_T0}, s{S_W}, 13
    v_add_u32 {vr(V_RW)}, s{S_T0}, {vr(t0)}
    v_lshrrev_b32 {vr(t0)}, 3, {vr(L)}
    v_and_b32 {vr(t1)}, 7, {vr(L)}
    v_xor_b32 {vr(t2)}, {vr(t0)}, {vr(t1)}
    v_lshlrev_b32 {vr(t2)}, 4, {vr(t2)}
    v_lshlrev_b32 {vr(t0)}, 7, {vr(t0)}
    v_add_u32 {vr(t2)}, {vr(t2)}, {vr(t0)}
    s_lshl_b32 s{S_T0}, s{S_W}, 10
    v_add_u32 {vr(V_RR)}, s{S_T0}, {vr(t2)}
    v_lshrrev_b32 {vr(t0)}, 3, {vr(L)}
    s_lshl_b32 s{S_T0}, s{S_W}, 3
    v_add_u32 {vr(t0)}, s{S_T0}, {vr(t0)}
    v_lshlrev_b32 {vr(V_GA)}, 2, {vr(t0)}
    v_lshlrev_b32 {vr(t0)}, 10, {vr(t0)}
    v_lshlrev_b32 {vr(t1)}, 3, {vr(t1)}
    v_add_u32 {vr(V_OUT)}, {vr(t0)}, {vr(t1)}
''')

def emit_weights(a):
    def batch(srd, row0_sgpr_expr, nrows, frags):
        a(f'    s_lshl_b32 s{S_T1}, s{S_W}, 15')
        for i in range(nrows // 16):
            a(f'    s_mov_b32 m0, s{S_T1}')
            a(f'    buffer_load_dwordx4 {vr(V_DM)}, s[{srd}:{srd+3}], s{S_T0} offen lds')
            a(f'    s_add_u32 s{S_T0}, s{S_T0}, 16384')
            a(f'    s_add_u32 s{S_T1}, s{S_T1}, 1024')
        a('    s_waitcnt vmcnt(0)')
        for n, (cls, reg, blk) in enumerate(frags):
            for rr in range(2):
                d = (ar if cls == 'a' else vr)(reg + 2 * rr, 2)
                a(f'    ds_read_b64_tr_b16 {d}, {vr(V_TR)} offset:{blk * 1024 + rr * 512}')
            if n % 6 == 5: a('    s_waitcnt lgkmcnt(0)')
        a('    s_waitcnt lgkmcnt(0)')
    a(f'''
    s_lshl_b32 s{S_T0}, s{S_W}, 20
    s_lshl_b32 s{S_T2}, s{S_SL}, 6
    s_add_u32 s{S_T0}, s{S_T0}, s{S_T2}
''')
    for half in range(2):
        frags = [('a', ((half * 4 + hh) * 8 + jj) * 4, hh * 8 + jj) for hh in range(4) for jj in range(8)]
        batch(SRD_WO, None, 512, frags)
    a(f'''
    s_mul_i32 s{S_T0}, s{S_W}, {448 * 1024}
    s_add_u32 s{S_T0}, s{S_T0}, s{S_T2}
''')
    batch(SRD_W2, None, 448, [('v', V_W2 + 4 * j, j) for j in range(28)])

def seg_offsets(a, seg, so, sh):
    a(f'''
    s_lshl_b32 s{so}, s{seg}, 18                 ; seg*32*8192
    s_lshl_b32 s{S_T0}, s{S_W}, 16               ; 8 heads * 8192
    s_add_u32 s{so}, s{so}, s{S_T0}
    s_add_u32 s{so}, s{so}, {WS_O}
    s_mul_i32 s{sh}, s{seg}, {H_SEG}
    s_mul_i32 s{S_T0}, s{S_W}, {28 * 1024}
    s_add_u32 s{sh}, s{sh}, s{S_T0}
    s_add_u32 s{sh}, s{sh}, {WS_H}
''')

NL = 92
def load_i(a, i, nxt, fl):
    buf = V_BUF + 4 * (i % NB)
    if i < 28: base, off = (S_HAN if nxt else S_HA), i * 1024
    else: base, off = (S_OAN if nxt else S_OA), (i - 28) * 1024
    if off >= 4096:
        a(f'    s_add_u32 s{S_T1}, s{base}, {off & ~4095}')
        a(f'    buffer_load_dwordx4 {vr(buf,4)}, {vr(V_LIN16)}, {WS}, s{S_T1} offen offset:{off & 4095} {fl}')
    else:
        a(f'    buffer_load_dwordx4 {vr(buf,4)}, {vr(V_LIN16)}, {WS}, s{base} offen offset:{off} {fl}')

def emit_epilogue(a):
    T = V_TMP
    for ab, A in ((0, ACC_A), (1, ACC_B)):
        for q in range(4):
            a(f'    v_xor_b32 {vr(T)}, {(2 * q) << 4}, {vr(V_RW)}')
            a(f'    ds_write_b128 {vr(T)}, {vr(A + 4*q, 4)} offset:{LDS_RED + ab * 4096}')
    a('    s_waitcnt lgkmcnt(0)')
    a('    s_barrier')
    for ab, A in ((0, ACC_A), (1, ACC_B)):
        for w in range(4):
            a(f'    ds_read_b128 {vr(A + 4*w, 4)}, {vr(V_RR)} offset:{LDS_RED + w * 8192 + ab * 4096}')
    a('    s_waitcnt lgkmcnt(0)')
    a('    s_barrier')
    for A in (ACC_A, ACC_B):
        for i in (0, 2):
            a(f'    v_pk_add_f32 {vr(A+i,2)}, {vr(A+i,2)}, {vr(A+4+i,2)}')
            a(f'    v_pk_add_f32 {vr(A+8+i,2)}, {vr(A+8+i,2)}, {vr(A+12+i,2)}')
        for i in (0, 2):
            a(f'    v_pk_add_f32 {vr(A+i,2)}, {vr(A+i,2)}, {vr(A+8+i,2)}')
    G, OMG = 9, 10
    def rnd(r):
        a(f'    v_cvt_pk_bf16_f32 {vr(T)}, {vr(r)}, {vr(r+1)}')
        a(f'    v_lshlrev_b32 {vr(r)}, 16, {vr(T)}')
        a(f'    v_and_b32 {vr(r+1)}, 0xffff0000, {vr(T)}')
    a(f'    v_sub_f32 {vr(OMG)}, 1.0, {vr(G)}')
    a(f'    v_cvt_pk_bf16_f32 {vr(OMG)}, {vr(OMG)}, {vr(OMG)}')
    a(f'    v_and_b32 {vr(OMG)}, 0xffff0000, {vr(OMG)}')
    for i in (0, 2):
        rnd(ACC_A + i); rnd(ACC_B + i)
    for i in range(4):
        a(f'    v_mul_f32 {vr(ACC_A+i)}, {vr(ACC_A+i)}, {vr(G)}')
        a(f'    v_mul_f32 {vr(ACC_B+i)}, {vr(ACC_B+i)}, {vr(OMG)}')
    for i in (0, 2):
        rnd(ACC_A + i); rnd(ACC_B + i)
    for i in (0, 2):
        a(f'    v_pk_add_f32 {vr(ACC_A+i,2)}, {vr(ACC_A+i,2)}, {vr(ACC_B+i,2)}')
    a(f'    v_cvt_pk_bf16_f32 {vr(ACC_A+4)}, {vr(ACC_A)}, {vr(ACC_A+1)}')
    a(f'    v_cvt_pk_bf16_f32 {vr(ACC_A+5)}, {vr(ACC_A+2)}, {vr(ACC_A+3)}')
    a(f'''
    s_lshl_b32 s{S_T0}, s{S_SEG}, 15            ; seg*32*1024
    s_lshl_b32 s{S_T1}, s{S_SL}, 6
    s_add_u32 s{S_T0}, s{S_T0}, s{S_T1}
    buffer_store_dwordx2 {vr(ACC_A+4,2)}, {vr(V_OUT)}, s[{SRD_OUT}:{SRD_OUT+3}], s{S_T0} offen
''')

def emit_seg(a, fl=''):
    a(f'''
    s_lshl_b32 s{S_T0}, s{S_SEG}, 7
    s_add_u32 s{S_T0}, s{S_T0}, {WS_G}
    buffer_load_dword v9, {vr(V_GA)}, {WS}, s{S_T0} offen
''')
    for i in range(NL):
        extra = 2 if i < NB else 0
        a(f'    s_waitcnt vmcnt({NB - 1 + extra})')
        buf = vr(V_BUF + 4 * (i % NB), 4)
        if i < 28:
            a(f'    v_mfma_f32_32x32x16_bf16 {vr(ACC_B,16)}, {w2(i)}, {buf}, {"0" if i == 0 else vr(ACC_B,16)}')
        else:
            k = i - 28
            a(f'    v_mfma_f32_32x32x16_bf16 {vr(ACC_A,16)}, {wo(k // 8, k % 8)}, {buf}, {"0" if k == 0 else vr(ACC_A,16)}')
        j = i + NB
        if j < NL: load_i(a, j, False, fl)
        else: load_i(a, j - NL, True, fl)
    emit_epilogue(a)

def emit_fin_kernel(a, cfg):
    a(f"""
    s_load_dwordx2 s[{SRD_WS}:{SRD_WS+1}], s[0:1], {KA_WS}
    s_load_dwordx2 s[{SRD_WO}:{SRD_WO+1}], s[0:1], {KA_WO}
    s_load_dwordx2 s[{SRD_W2}:{SRD_W2+1}], s[0:1], {KA_W2}
    s_load_dwordx2 s[{SRD_OUT}:{SRD_OUT+1}], s[0:1], {KA_OUT}
    v_lshrrev_b32 v1, 6, v0
    s_nop 1
    v_readfirstlane_b32 s{S_W}, v1
    s_waitcnt lgkmcnt(0)
    s_mov_b32 s{SRD_WS+2}, {WS_SIZE}
    s_mov_b32 s{SRD_WS+3}, 0x20000
    s_mov_b32 s{SRD_WO+2}, 0x400000
    s_mov_b32 s{SRD_WO+3}, 0x20000
    s_mov_b32 s{SRD_W2+2}, {1792 * 1024}
    s_mov_b32 s{SRD_W2+3}, 0x20000
    s_mov_b32 s{SRD_OUT+2}, {2048 * 1024}
    s_mov_b32 s{SRD_OUT+3}, 0x20000
    s_lshr_b32 s{S_SL}, s2, 3
    s_and_b32 s{S_SL}, s{S_SL}, 15
    s_and_b32 s{S_SEG}, s2, 7
    s_lshl_b32 s{S_SEG}, s{S_SEG}, 1
    s_lshr_b32 s{S_T0}, s2, 7
    s_add_u32 s{S_SEG}, s{S_SEG}, s{S_T0}
""")
    emit_setup(a)
    emit_weights(a)
    a('    s_barrier')
    seg_offsets(a, S_SEG, S_OA, S_HA)
    for i in range(NB): load_i(a, i, False, '')
    a(f'    buffer_load_dword v10, {vr(V_LIN16)}, {WS}, 0 offen')
    a('L_fin_loop:')
    a(f"""
    s_add_u32 s{S_NSEG}, s{S_SEG}, 16
    s_cmp_ge_u32 s{S_NSEG}, 64
    s_cselect_b32 s{S_NSEG}, s{S_SEG}, s{S_NSEG}
""")
    seg_offsets(a, S_NSEG, S_OAN, S_HAN)
    emit_seg(a)
    a(f"""
    s_mov_b32 s{S_OA}, s{S_OAN}
    s_mov_b32 s{S_HA}, s{S_HAN}
    s_add_u32 s{S_SEG}, s{S_SEG}, 16
    s_cmp_lt_u32 s{S_SEG}, 64
    s_cbranch_scc1 L_fin_loop
    s_waitcnt vmcnt(0)
""")


S_DBG2, S_CNT, S_ERR, S_WID = 34, 36, 37, 90
def poll(a, lab, check, sleep=16):
    a(f"""
    s_cmp_lg_u32 s{S_W}, 0
    s_cbranch_scc1 {lab}_d
    v_mov_b32 v11, s{S_T1}
    s_mov_b32 s{S_CNT}, 0
{lab}:
    buffer_load_dword v10, v11, {WS}, 0 offen sc1
    s_waitcnt vmcnt(0)
    v_readfirstlane_b32 s{S_T0}, v10
{check}
    s_cbranch_scc1 {lab}_d
    s_sleep {sleep}
    s_add_u32 s{S_CNT}, s{S_CNT}, 1
    s_cmp_lt_u32 s{S_CNT}, s{S_ERR}
    s_cbranch_scc1 {lab}
    s_mov_b32 s{S_ERR}, 0
{lab}_d:
    s_barrier
""")

def emit_fin_worker(a, cfg):
    a(f"""
    s_load_dwordx2 s[{SRD_WS}:{SRD_WS+1}], s[0:1], {KA_WS}
    s_load_dwordx2 s[{SRD_WO}:{SRD_WO+1}], s[0:1], {KA_WO}
    s_load_dwordx2 s[{SRD_W2}:{SRD_W2+1}], s[0:1], {KA_W2}
    s_load_dwordx2 s[{SRD_OUT}:{SRD_OUT+1}], s[0:1], {KA_OUT}
    s_load_dwordx2 s[{S_DBG2}:{S_DBG2+1}], s[0:1], {KA_DBG}
    s_waitcnt lgkmcnt(0)
    s_mov_b32 s{SRD_WS+2}, {WS_SIZE}
    s_mov_b32 s{SRD_WS+3}, 0x20000
    s_mov_b32 s{SRD_WO+2}, 0x400000
    s_mov_b32 s{SRD_WO+3}, 0x20000
    s_mov_b32 s{SRD_W2+2}, {1792 * 1024}
    s_mov_b32 s{SRD_W2+3}, 0x20000
    s_mov_b32 s{SRD_OUT+2}, {2048 * 1024}
    s_mov_b32 s{SRD_OUT+3}, 0x20000
    s_mov_b32 s{S_ERR}, {cfg.get('maxpoll_w', 400000)}
    s_sub_u32 s{S_T0}, s{S_WID}, {cfg.get('natt', 32)}
    s_and_b32 s{S_SL}, s{S_T0}, 15
    s_lshr_b32 s{S_SEG}, s{S_T0}, 4
""")
    emit_setup(a)
    emit_weights(a)
    a('    s_barrier')
    a('L_finw_loop:')
    seg_offsets(a, S_SEG, S_OA, S_HA)
    a(f"""
    s_lshr_b32 s{S_T1}, s{S_SEG}, 3
    s_lshl_b32 s{S_T1}, s{S_T1}, 7
    s_add_u32 s{S_T1}, s{S_T1}, {FL_G1}
""")
    poll(a, 'L_finw_p1', f'    s_lshr_b32 s{S_T0}, s{S_T0}, 16\n    s_cmp_eq_u32 s{S_T0}, {28 + (1 << 8)}')
    a(f"""
    s_lshl_b32 s{S_T0}, s{S_SEG}, 7
    s_add_u32 s{S_T0}, s{S_T0}, {WS_G}
    buffer_load_dword v9, {vr(V_GA)}, {WS}, s{S_T0} offen
""")
    for i in range(min(NB, 28)): load_i(a, i, False, '')
    for i in range(28):
        issued = min(28, NB + i)
        a(f'    s_waitcnt vmcnt({issued - 1 - i})')
        a(f'    v_mfma_f32_32x32x16_bf16 {vr(ACC_B,16)}, {w2(i)}, {vr(V_BUF + 4 * (i % NB), 4)}, {"0" if i == 0 else vr(ACC_B,16)}')
        if i + NB < 28: load_i(a, i + NB, False, '')
    a(f"""
    s_lshl_b32 s{S_T1}, s{S_SEG}, 7
    s_add_u32 s{S_T1}, s{S_T1}, {FL_O}
""")
    poll(a, 'L_finw_p2', f'    s_cmp_eq_u32 s{S_T0}, 32', sleep=6)
    def ldo(k): load_i(a, 28 + k, False, '')
    for k in range(NB): ldo(k)
    for k in range(64):
        issued = min(64, NB + k)
        a(f'    s_waitcnt vmcnt({issued - 1 - k})')
        a(f'    v_mfma_f32_32x32x16_bf16 {vr(ACC_A,16)}, {wo(k // 8, k % 8)}, {vr(V_BUF + 4 * ((28 + k) % NB), 4)}, {"0" if k == 0 else vr(ACC_A,16)}')
        if k + NB < 64: ldo(k + NB)
    emit_epilogue(a)
    a(f"""
    s_add_u32 s{S_SEG}, s{S_SEG}, {cfg.get('nsets', (224 - cfg.get('natt', 32)) // 16)}
    s_cmp_lt_u32 s{S_SEG}, 64
    s_cbranch_scc1 L_finw_loop
    s_waitcnt vmcnt(0)
""")
```

```python
from asmlib import *
from layout import *
import struct
def f2u(x): return struct.unpack('<I', struct.pack('<f', x))[0]

S_W = 4
SRD_WS, SRD_X = 8, 12
S_TB, S_CU, S_NU = 5, 6, 7
SRD_TA, SRD_TB = 16, 20
SRD_WQ, SRD_WK, SRD_WV, SRD_W1, SRD_W3 = 24, 28, 32, 36, 40
S_COL, S_STR8 = 44, 45
S_T0, S_T1, S_T2 = 46, 47, 48
S_TYPE, S_OUT = 49, 50
S_NTYPE, S_NOUT = 51, 52
S_ROW = 53
S_NLOG = 54
S_ISF = 56
S_ONE = 58
S_O0, S_O1, S_FIRST = 64, 65, 66
V_LIN16, V_DQ, V_DF, V_DCUR, V_T0, V_T1, V_STK, V_XA, V_L, V_TMP = 0, 1, 2, 3, 4, 5, 6, 7, 8, 9
V_T2, V_T3, V_JUNK = 12, 13, 14
V_WF = 64
V_E = 16
V_ACC = 128
LDS_RING = 0
WS = f's[{SRD_WS}:{SRD_WS+3}]'
NSLOT = 8
PD = 6

def acc(ct, tt): return V_ACC + (ct * 2 + tt) * 16
def xf(tt, ks): return ar((tt * 32 + ks) * 4, 4)

def emit_gate(a, wg_sgpr):
    t = V_E
    a(f'''
    s_lshl_b32 s{S_T0}, s{wg_sgpr}, 3
    s_lshl_b32 s{S_T1}, s{S_W}, 1
    s_add_u32 s{S_T0}, s{S_T0}, s{S_T1}           ; token0
    s_lshl_b32 s{S_T1}, s{S_T0}, 10
    buffer_load_dwordx4 {vr(t,4)}, {vr(V_LIN16)}, s[60:63], 0 offen
    buffer_load_dwordx4 {vr(t+4,4)}, {vr(V_LIN16)}, s[{SRD_X}:{SRD_X+3}], s{S_T1} offen
    buffer_load_dwordx4 {vr(t+8,4)}, {vr(V_LIN16)}, s[{SRD_X}:{SRD_X+3}], s{S_T1} offen offset:1024
    s_waitcnt vmcnt(0)
''')
    G = t + 12
    for i in range(4):
        a(f'    v_lshlrev_b32 {vr(G+2*i)}, 16, {vr(t+i)}')
        a(f'    v_and_b32 {vr(G+2*i+1)}, 0xffff0000, {vr(t+i)}')
    for tk in range(2):
        x = t + 4 + 4 * tk
        A = t + 20 + tk
        u = t + 24
        for i in range(4):
            a(f'    v_lshlrev_b32 {vr(u)}, 16, {vr(x+i)}')
            a(f'    v_and_b32 {vr(u+1)}, 0xffff0000, {vr(x+i)}')
            if i == 0:
                a(f'    v_mul_f32 {vr(A)}, {vr(u)}, {vr(G)}')
            else:
                a(f'    v_fmac_f32 {vr(A)}, {vr(u)}, {vr(G+2*i)}')
            a(f'    v_fmac_f32 {vr(A)}, {vr(u+1)}, {vr(G+2*i+1)}')
        for sh in (1, 2, 4, 8):
            a(f'    v_add_f32_dpp {vr(A)}, {vr(A)}, {vr(A)} row_ror:{sh} row_mask:0xf bank_mask:0xf')
        a(f'    v_mov_b32 {vr(u)}, {vr(A)}')
        a(f'    v_permlane16_swap_b32 {vr(A)}, {vr(u)}')
        a(f'    v_add_f32 {vr(A)}, {vr(A)}, {vr(u)}')
        a(f'    v_mov_b32 {vr(u)}, {vr(A)}')
        a(f'    v_permlane32_swap_b32 {vr(A)}, {vr(u)}')
        a(f'    v_add_f32 {vr(A)}, {vr(A)}, {vr(u)}')
        a(f'    v_cvt_pk_bf16_f32 {vr(A)}, {vr(A)}, {vr(A)}')
        a(f'    v_and_b32 {vr(A)}, 0xffff0000, {vr(A)}')
        a(f'    v_mul_f32 {vr(A)}, s{S_NLOG}, {vr(A)}')
        a(f'    v_exp_f32 {vr(A)}, {vr(A)}')
        a(f'    v_add_f32 {vr(A)}, 1.0, {vr(A)}')
        a(f'    v_rcp_f32 {vr(A)}, {vr(A)}')
        a(f'    v_cvt_pk_bf16_f32 {vr(A)}, {vr(A)}, {vr(A)}')
        a(f'    v_and_b32 {vr(A)}, 0xffff0000, {vr(A)}')
    a(f'''
    s_lshl_b32 s{S_T0}, s{S_T0}, 2
    s_add_u32 s{S_T0}, s{S_T0}, {WS_G}
    v_mov_b32 {vr(t)}, 0
    s_mov_b64 exec, 1
    buffer_store_dword {vr(t+20)}, {vr(t)}, {WS}, s{S_T0} offen
    buffer_store_dword {vr(t+21)}, {vr(t)}, {WS}, s{S_T0} offen offset:4
    s_mov_b64 exec, -1
''')

def emit_setup(a):
    L = V_L
    t0, t1, t2 = V_E, V_E + 1, V_E + 2
    a(f'''
    v_and_b32 {vr(L)}, 63, v0
    v_lshlrev_b32 {vr(V_LIN16)}, 4, {vr(L)}
    v_lshrrev_b32 {vr(t0)}, 3, {vr(L)}
    v_bfe_u32 {vr(t1)}, {vr(L)}, 1, 2
    v_and_b32 {vr(t2)}, 2, {vr(t0)}
    v_xor_b32 {vr(t1)}, {vr(t1)}, {vr(t2)}
    v_lshlrev_b32 {vr(t1)}, 5, {vr(t1)}
    v_and_b32 {vr(t2)}, 1, {vr(L)}
    v_lshlrev_b32 {vr(t2)}, 4, {vr(t2)}
    v_add_u32 {vr(t1)}, {vr(t1)}, {vr(t2)}
    v_lshlrev_b32 {vr(t2)}, 13, {vr(t0)}
    v_add_u32 {vr(V_DQ)}, {vr(t1)}, {vr(t2)}
    v_mul_u32_u24 {vr(t2)}, 3584, {vr(t0)}
    v_add_u32 {vr(V_DF)}, {vr(t1)}, {vr(t2)}
    v_lshrrev_b32 {vr(t0)}, 5, {vr(L)}
    v_lshlrev_b32 {vr(t0)}, 10, {vr(t0)}
    v_bfe_u32 {vr(t1)}, {vr(L)}, 2, 2
    v_lshlrev_b32 {vr(t2)}, 7, {vr(t1)}
    v_add_u32 {vr(t0)}, {vr(t0)}, {vr(t2)}
    v_and_b32 {vr(t1)}, 2, {vr(t1)}
    v_bfe_u32 {vr(t2)}, {vr(L)}, 4, 1
    v_add_u32 {vr(t1)}, {vr(t1)}, {vr(t2)}
    v_lshlrev_b32 {vr(t1)}, 5, {vr(t1)}
    v_add_u32 {vr(t0)}, {vr(t0)}, {vr(t1)}
    v_and_b32 {vr(t1)}, 3, {vr(L)}
    v_lshlrev_b32 {vr(t1)}, 3, {vr(t1)}
    v_add_u32 {vr(V_T0)}, {vr(t0)}, {vr(t1)}
    v_xor_b32 {vr(V_T1)}, 64, {vr(V_T0)}
    v_add_u32 {vr(V_T2)}, 0x10000, {vr(V_T0)}
    v_add_u32 {vr(V_T3)}, 0x10000, {vr(V_T1)}
    v_and_b32 {vr(t0)}, 31, {vr(L)}
    v_bfe_u32 {vr(t1)}, {vr(L)}, 4, 1
    v_lshlrev_b32 {vr(t1)}, 3, {vr(t1)}
    v_xor_b32 {vr(t0)}, {vr(t0)}, {vr(t1)}
    v_lshlrev_b32 {vr(t0)}, 4, {vr(t0)}
    v_lshrrev_b32 {vr(t1)}, 5, {vr(L)}
    v_lshlrev_b32 {vr(t1)}, 9, {vr(t1)}
    v_add_u32 {vr(V_STK)}, {vr(t0)}, {vr(t1)}
    v_and_b32 {vr(t0)}, 31, {vr(L)}
    v_lshlrev_b32 {vr(t1)}, 10, {vr(t0)}
    v_and_b32 {vr(t0)}, 15, {vr(t0)}
    v_lshrrev_b32 {vr(t2)}, 5, {vr(L)}
    v_xor_b32 {vr(t0)}, {vr(t0)}, {vr(t2)}
    v_lshlrev_b32 {vr(t0)}, 4, {vr(t0)}
    v_add_u32 {vr(t0)}, {vr(t0)}, {vr(t1)}
    s_lshl_b32 s{S_T0}, s{S_W}, 15
    v_add_u32 {vr(V_XA)}, s{S_T0}, {vr(t0)}
''')

def emit_load_x(a):
    for tt in range(2):
        a(f'''
    s_lshl_b32 s{S_T0}, s{S_TB}, 8
    s_lshl_b32 s{S_T1}, s{S_W}, 6
    s_add_u32 s{S_T0}, s{S_T0}, s{S_T1}
    s_add_u32 s{S_T0}, s{S_T0}, {tt * 32}
    s_lshl_b32 s{S_T0}, s{S_T0}, 10
    s_lshl_b32 s{S_T1}, s{S_W}, 15
''')
        for t in range(32):
            a(f'''
    v_xor_b32 {vr(V_TMP)}, {(t & 15) << 4}, {vr(V_LIN16)}
    s_mov_b32 m0, s{S_T1}
    buffer_load_dwordx4 {vr(V_TMP)}, s[{SRD_X}:{SRD_X+3}], s{S_T0} offen lds
    s_add_u32 s{S_T0}, s{S_T0}, 1024
    s_add_u32 s{S_T1}, s{S_T1}, 1024
''')
        a('    s_waitcnt vmcnt(0)')
        for ks in range(32):
            a(f'    v_xor_b32 {vr(V_TMP + (ks & 1))}, {ks << 5}, {vr(V_XA)}')
            a(f'    ds_read_b128 {xf(tt, ks)}, {vr(V_TMP + (ks & 1))}')
        a('    s_waitcnt lgkmcnt(0)')

def emit_decode(a, cu, typ, out):
    a(f'''
    s_lshr_b32 s{S_T0}, s{cu}, 5            ; 0 K, 1 V, 2 Q, 3 F
    s_and_b32 s{S_T1}, s{cu}, 31            ; head / fb
    s_mov_b32 s{typ}, s{S_T0}
    s_cmp_eq_u32 s{S_T0}, 3
    s_cbranch_scc1 L_decF_%(id)s
    s_lshl_b32 s{S_COL}, s{S_T1}, 8
    s_mov_b32 s{S_STR8}, 65536
    v_mov_b32 {vr(V_DCUR)}, {vr(V_DQ)}
    ; select matrix
    s_cmp_eq_u32 s{S_T0}, 0
    s_cselect_b32 s{SRD_TA}, s{SRD_WK}, s{SRD_WV}
    s_cselect_b32 s{SRD_TA+1}, s{SRD_WK+1}, s{SRD_WV+1}
    s_mov_b32 s{S_T2}, {WS_V}
    s_cselect_b32 s{S_T2}, {WS_K}, s{S_T2}
    s_cmp_eq_u32 s{S_T0}, 2
    s_cselect_b32 s{SRD_TA}, s{SRD_WQ}, s{SRD_TA}
    s_cselect_b32 s{SRD_TA+1}, s{SRD_WQ+1}, s{SRD_TA+1}
    s_cselect_b32 s{S_T2}, {WS_Q}, s{S_T2}
    s_mov_b32 s{SRD_TA+2}, 0x400000
    s_mov_b32 s{SRD_TA+3}, 0x20000
    s_add_u32 s{SRD_TB}, s{SRD_TA}, 128
    s_addc_u32 s{SRD_TB+1}, s{SRD_TA+1}, 0
    s_mov_b32 s{SRD_TB+2}, {0x400000 - 128}
    s_mov_b32 s{SRD_TB+3}, 0x20000
    ; out = base + ((tb*8 + w*2)*32 + h)*8192
    s_lshl_b32 s{out}, s{S_TB}, 3
    s_lshl_b32 s{S_T0}, s{S_W}, 1
    s_add_u32 s{out}, s{out}, s{S_T0}
    s_lshl_b32 s{out}, s{out}, 5
    s_add_u32 s{out}, s{out}, s{S_T1}
    s_lshl_b32 s{out}, s{out}, 13
    s_add_u32 s{out}, s{out}, s{S_T2}
    s_branch L_decD_%(id)s
L_decF_%(id)s:
    s_lshl_b32 s{S_COL}, s{S_T1}, 7
    s_mov_b32 s{S_STR8}, {3584 * 8}
    v_mov_b32 {vr(V_DCUR)}, {vr(V_DF)}
    s_mov_b32 s{SRD_TA}, s{SRD_W1}
    s_mov_b32 s{SRD_TA+1}, s{SRD_W1+1}
    s_mov_b32 s{SRD_TA+2}, {512 * 3584}
    s_mov_b32 s{SRD_TA+3}, 0x20000
    s_mov_b32 s{SRD_TB}, s{SRD_W3}
    s_mov_b32 s{SRD_TB+1}, s{SRD_W3+1}
    s_mov_b32 s{SRD_TB+2}, {512 * 3584}
    s_mov_b32 s{SRD_TB+3}, 0x20000
    ; out = WS_H + (tb*8 + w*2)*H_SEG + fb*4096
    s_lshl_b32 s{out}, s{S_TB}, 3
    s_lshl_b32 s{S_T0}, s{S_W}, 1
    s_add_u32 s{out}, s{out}, s{S_T0}
    s_mul_i32 s{out}, s{out}, {H_SEG}
    s_lshl_b32 s{S_T1}, s{S_T1}, 12
    s_add_u32 s{out}, s{out}, s{S_T1}
    s_add_u32 s{out}, s{out}, {WS_H}
L_decD_%(id)s:
    ; running row offset for this wave: col + (2w)*8*stride
    s_mul_i32 s{S_ROW}, s{S_STR8}, s{S_W}
    s_lshl_b32 s{S_ROW}, s{S_ROW}, 1
    s_add_u32 s{S_ROW}, s{S_ROW}, s{S_COL}
''' % dict(id='u%d' % len(a.lines)))

def dma_chunk(a, slot):
    for hb, S in ((0, SRD_TA), (1, SRD_TB)):
        for j in range(2):
            a(f'''
    s_lshl_b32 s{S_T0}, s{S_W}, 11
    s_add_u32 m0, s{S_T0}, {LDS_RING + slot * 16384 + hb * 8192 + j * 1024}
''')
            if j == 0:
                a(f'    buffer_load_dwordx4 {vr(V_DCUR)}, s[{S}:{S+3}], s{S_ROW} offen lds')
            else:
                a(f'    s_add_u32 s{S_T1}, s{S_ROW}, s{S_STR8}')
                a(f'    buffer_load_dwordx4 {vr(V_DCUR)}, s[{S}:{S+3}], s{S_T1} offen lds')
    a(f'    s_lshl_b32 s{S_T0}, s{S_STR8}, 3')
    a(f'    s_add_u32 s{S_ROW}, s{S_ROW}, s{S_T0}')

def wreads(buf, slot, kk):
    out = []
    for ct in range(4):
        for rr in range(2):
            if slot < 4: addr = V_T1 if ct & 1 else V_T0
            else: addr = V_T3 if ct & 1 else V_T2
            off = LDS_RING + (slot % 4) * 16384 + (ct >> 1) * 8192 + kk * 2048 + rr * 512
            out.append(f'    ds_read_b64_tr_b16 {vr(V_WF + buf * 16 + ct * 4 + 2 * rr, 2)}, {vr(addr)} offset:{off}')
    return out


def dummies(a, n):
    for i in range(n):
        a(f'    buffer_load_dword {vr(V_JUNK)}, {vr(V_LIN16)}, s[{SRD_X}:{SRD_X+3}], 0 offen')

def emit_mainloop(a, vtype, tag, next_decode, midflag=None):
    a('    s_waitcnt vmcnt(36)')
    a('    s_barrier')
    for x in wreads(0, 0, 0): a(x)
    for c in range(8):
        slot = c % NSLOT
        for kk in range(4):
            ks = c * 4 + kk
            buf = ks & 1
            if kk < 3: nxt = wreads(buf ^ 1, slot, kk + 1)
            elif c < 7: nxt = wreads(buf ^ 1, (c + 1) % NSLOT, 0)
            else: nxt = []
            a('    s_waitcnt lgkmcnt(0)')
            if kk == 3 and c < 7:
                a(f'    s_waitcnt vmcnt({36 if c <= 4 else 20})')
                a('    s_barrier')
                if c == 5 and midflag: midflag()
            i = 0
            for ct in range(4):
                for tt in range(2):
                    C = '0' if ks == 0 else vr(acc(ct, tt), 16)
                    wf = vr(V_WF + buf * 16 + ct * 4, 4)
                    if vtype:
                        a(f'    v_mfma_f32_32x32x16_bf16 {vr(acc(ct,tt),16)}, {xf(tt, ks)}, {wf}, {C}')
                    else:
                        a(f'    v_mfma_f32_32x32x16_bf16 {vr(acc(ct,tt),16)}, {wf}, {xf(tt, ks)}, {C}')
                    for x in nxt[2*i:2*i+2]: a(x)
                    i += 1
                    if kk == 0 and i == 5:
                        if c == 2: next_decode()
                        dma_chunk(a, (c + PD) % NSLOT)

def epi_pack(a, lanereg, segstride, ST):
    k = 0
    for tt in range(2):
        a(f'    s_add_u32 s{S_O0}, s{S_OUT}, {tt * segstride}')
        a(f'    s_add_u32 s{S_O1}, s{S_O0}, 4096')
        for ct in range(4):
            A = acc(ct, tt)
            for cb in range(2):
                E = V_E + (k % 4) * 4; k += 1
                for i in range(4):
                    a(f'    v_cvt_pk_bf16_f32 {vr(E+i)}, {vr(A + 8*cb + 2*i)}, {vr(A + 8*cb + 2*i + 1)}')
                off = (4 * ct + 2 * cb) * 512
                so = S_O0 if off < 4096 else S_O1
                a(f'    buffer_store_dwordx4 {vr(E,4)}, {vr(lanereg)}, {WS}, s{so} offen offset:{off % 4096} {ST}')

def epi_ffn(a, ST):
    k = 0
    T = V_E + 16
    for tt in range(2):
        a(f'    s_add_u32 s{S_O0}, s{S_OUT}, {tt * H_SEG}')
        for ct in range(2):
            G, U = acc(ct, tt), acc(ct + 2, tt)
            for cb in range(2):
                E = V_E + (k % 4) * 4; k += 1
                for i in range(4):
                    g, u = G + 8 * cb + 2 * i, U + 8 * cb + 2 * i
                    t = T + 2 * i
                    a(f'    v_pk_mul_f32 {vr(t,2)}, {vr(g,2)}, s[{S_NLOG}:{S_NLOG+1}]')
                    a(f'    v_pk_mul_f32 {vr(g,2)}, {vr(g,2)}, {vr(u,2)}')
                    a(f'    v_exp_f32 {vr(t)}, {vr(t)}')
                    a(f'    v_exp_f32 {vr(t+1)}, {vr(t+1)}')
                for i in range(4):
                    t = T + 2 * i
                    a(f'    v_pk_add_f32 {vr(t,2)}, {vr(t,2)}, s[{S_ONE}:{S_ONE+1}]')
                for i in range(4):
                    t = T + 2 * i
                    a(f'    v_rcp_f32 {vr(t)}, {vr(t)}')
                    a(f'    v_rcp_f32 {vr(t+1)}, {vr(t+1)}')
                for i in range(4):
                    g = G + 8 * cb + 2 * i; t = T + 2 * i
                    a(f'    v_pk_mul_f32 {vr(g,2)}, {vr(g,2)}, {vr(t,2)}')
                    a(f'    v_cvt_pk_bf16_f32 {vr(E+i)}, {vr(g)}, {vr(g+1)}')
                off = (4 * ct + 2 * cb) * 512
                a(f'    buffer_store_dwordx4 {vr(E,4)}, {vr(V_LIN16)}, {WS}, s{S_O0} offen offset:{off} {ST}')

def emit_g1_kernel(a, cfg):
    ST = cfg.get('st_pub', '')
    a(f"""
    s_load_dwordx2 s[{SRD_WS}:{SRD_WS+1}], s[0:1], {KA_WS}
    s_load_dwordx2 s[{SRD_X}:{SRD_X+1}], s[0:1], {KA_X}
    s_load_dwordx2 s[{SRD_WQ}:{SRD_WQ+1}], s[0:1], {KA_WQ}
    s_load_dwordx2 s[{SRD_WK}:{SRD_WK+1}], s[0:1], {KA_WK}
    s_load_dwordx2 s[{SRD_WV}:{SRD_WV+1}], s[0:1], {KA_WV}
    s_load_dwordx2 s[{SRD_W1}:{SRD_W1+1}], s[0:1], {KA_W1}
    s_load_dwordx2 s[{SRD_W3}:{SRD_W3+1}], s[0:1], {KA_W3}
    s_load_dwordx2 s[60:61], s[0:1], {KA_GW}
    v_lshrrev_b32 v1, 6, v0
    s_nop 1
    v_readfirstlane_b32 s{S_W}, v1
    s_waitcnt lgkmcnt(0)
    s_mov_b32 s{SRD_WS+2}, {WS_SIZE}
    s_mov_b32 s{SRD_WS+3}, 0x20000
    s_mov_b32 s{SRD_X+2}, {2048 * 1024}
    s_mov_b32 s{SRD_X+3}, 0x20000
    s_mov_b32 s62, 1024
    s_mov_b32 s63, 0x20000
    s_mov_b32 s{S_NLOG}, {f2u(-1.4426950408889634):#x}
    s_mov_b32 s{S_NLOG+1}, {f2u(-1.4426950408889634):#x}
    s_mov_b32 s{S_ONE}, 1.0
    s_mov_b32 s{S_ONE+1}, 1.0
    s_lshr_b32 s{S_TB}, s2, 3
    s_and_b32 s{S_TB}, s{S_TB}, 7
    s_lshr_b32 s{S_CU}, s2, 6
    s_lshl_b32 s{S_CU}, s{S_CU}, 3
    s_and_b32 s{S_T0}, s2, 7
    s_add_u32 s{S_CU}, s{S_CU}, s{S_T0}
""")
    tm = cfg.get('timing')
    def TS(k):
        if tm: a(f'    s_memrealtime s[{70+2*k}:{70+2*k+1}]')
    TS(0)
    emit_setup(a)
    emit_gate(a, 2)
    TS(1)
    emit_load_x(a)
    a('    s_barrier')
    TS(2)
    if tm: a('    s_memtime s[82:83]')
    emit_decode(a, S_CU, S_TYPE, S_OUT)
    for c in range(PD): dma_chunk(a, c)
    dummies(a, 16)
    def next_decode():
        a(f"""
    s_add_u32 s{S_FIRST}, s{S_CU}, 32
    s_cmp_ge_u32 s{S_FIRST}, 124
    s_cselect_b32 s{S_FIRST+1}, s{S_CU}, s{S_FIRST}
""")
        emit_decode(a, S_FIRST + 1, S_NTYPE, S_NOUT)
    a('L_g1_unit:')
    a(f"""
    s_cmp_eq_u32 s{S_TYPE}, 1
    s_cbranch_scc1 L_g1_v
""")
    emit_mainloop(a, False, 'k', next_decode)
    a('    s_branch L_g1_next')
    a('L_g1_v:')
    emit_mainloop(a, True, 'v', next_decode)
    a('L_g1_next:')
    if tm:
        a(f"""
    s_lshr_b32 s{S_T0}, s{S_CU}, 5
    s_cmp_eq_u32 s{S_T0}, 0
    s_cbranch_scc0 L_ts1
    s_memrealtime s[76:77]
L_ts1:
    s_cmp_eq_u32 s{S_T0}, 2
    s_cbranch_scc0 L_ts2
    s_memrealtime s[78:79]
L_ts2:
""")
    a(f"""
    s_cmp_eq_u32 s{S_TYPE}, 3
    s_cbranch_scc1 L_g1_ef
    s_cmp_eq_u32 s{S_TYPE}, 1
    s_cbranch_scc1 L_g1_ev
""")
    epi_pack(a, V_STK, 262144, ST)
    a('    s_branch L_g1_ed')
    a('L_g1_ev:')
    epi_pack(a, V_LIN16, 262144, ST)
    a('    s_branch L_g1_ed')
    a('L_g1_ef:')
    epi_ffn(a, ST)
    dummies(a, 8)
    a('L_g1_ed:')
    a(f"""
    s_mov_b32 s{S_TYPE}, s{S_NTYPE}
    s_mov_b32 s{S_OUT}, s{S_NOUT}
    s_add_u32 s{S_CU}, s{S_CU}, 32
    s_cmp_lt_u32 s{S_CU}, 124
    s_cbranch_scc1 L_g1_unit
    s_waitcnt vmcnt(0)
""")
    if tm:
        a(f'''
    s_waitcnt vmcnt(0)
    s_memrealtime s[80:81]
    s_memtime s[84:85]
    s_waitcnt lgkmcnt(0)
    s_lshl_b32 s{S_T0}, s2, 2
    s_add_u32 s{S_T0}, s{S_T0}, s{S_W}
    s_lshl_b32 s{S_T0}, s{S_T0}, 5
    s_add_u32 s{S_T0}, s{S_T0}, 0x10000
    s_mov_b64 exec, 1
    v_mov_b32 v20, 0
''')
        for k in range(8):
            a(f'    v_mov_b32 v21, s{70+2*k}')
            a(f'    buffer_store_dword v21, v20, {WS}, s{S_T0} offen offset:{4*k}')


S_WID, S_DBG2 = 90, 68
S_STRIDE, S_URG, S_PEND, S_SESS = 70, 71, 72, 73
S_PTB = 74

def flag_add(a, lab):
    a(f"""
    s_cmp_eq_u32 s{S_PEND}, 0
    s_cbranch_scc1 {lab}
    s_cmp_lg_u32 s{S_W}, 0
    s_cbranch_scc1 {lab}_c
    s_lshl_b32 s{S_T0}, s{S_PTB}, 7
    s_add_u32 s{S_T0}, s{S_T0}, {FL_G1}
    v_mov_b32 {vr(V_TMP)}, 0
    v_mov_b32 {vr(V_TMP+1)}, s{S_PEND}
    s_mov_b64 exec, 1
    buffer_atomic_add {vr(V_TMP+1)}, {vr(V_TMP)}, {WS}, s{S_T0} offen sc1
    s_mov_b64 exec, -1
{lab}_c:
    s_mov_b32 s{S_PEND}, 0
{lab}:
""")

def emit_gate_mfma(a):
    G = V_WF
    D = V_ACC
    for tt in range(2):
        for b in range(4):
            for k in range(8):
                ks = b * 8 + k
                a(f'    buffer_load_dwordx4 {vr(G + 4*k - (0), 4)}, {vr(V_TMP)}, s[60:63], 0 offen offset:{ks * 32}')
            for k in range(8):
                ks = b * 8 + k
                a(f'    s_waitcnt vmcnt({7 - k})')
                a(f'    v_mfma_f32_32x32x16_bf16 {vr(D + 16*tt,16)}, {vr(G + 4*k, 4)}, {xf(tt, ks)}, {"0" if ks == 0 else vr(D + 16*tt,16)}')
    for tt in range(2):
        A = D + 16 * tt
        a(f"""
    v_cvt_pk_bf16_f32 {vr(A)}, {vr(A)}, {vr(A)}
    v_and_b32 {vr(A)}, 0xffff0000, {vr(A)}
    v_mul_f32 {vr(A)}, s{S_NLOG}, {vr(A)}
    v_exp_f32 {vr(A)}, {vr(A)}
    v_add_f32 {vr(A)}, 1.0, {vr(A)}
    v_rcp_f32 {vr(A)}, {vr(A)}
    v_cvt_pk_bf16_f32 {vr(A)}, {vr(A)}, {vr(A)}
    v_and_b32 {vr(A)}, 0xffff0000, {vr(A)}
""")
    a(f"""
    s_lshl_b32 s{S_T0}, s{S_TB}, 8
    s_lshl_b32 s{S_T1}, s{S_W}, 6
    s_add_u32 s{S_T0}, s{S_T0}, s{S_T1}
    s_lshl_b32 s{S_T0}, s{S_T0}, 2
    s_add_u32 s{S_T0}, s{S_T0}, {WS_G}
    v_lshlrev_b32 {vr(V_TMP)}, 2, {vr(V_L)}
    s_mov_b32 exec_hi, 0
    buffer_store_dword {vr(D)}, {vr(V_TMP)}, {WS}, s{S_T0} offen sc1
    buffer_store_dword {vr(D+16)}, {vr(V_TMP)}, {WS}, s{S_T0} offen offset:128 sc1
    s_mov_b64 exec, -1
    s_waitcnt vmcnt(0)
    s_barrier
    s_mov_b32 s{S_PEND}, {1 << 24}
    s_mov_b32 s{S_PTB}, s{S_TB}
""")
    flag_add(a, 'L_gfl')

def emit_worker_g1(a, cfg):
    ST = 'sc1'
    a(f"""
    s_load_dwordx2 s[{SRD_WS}:{SRD_WS+1}], s[0:1], {KA_WS}
    s_load_dwordx2 s[{SRD_X}:{SRD_X+1}], s[0:1], {KA_X}
    s_load_dwordx2 s[{SRD_WQ}:{SRD_WQ+1}], s[0:1], {KA_WQ}
    s_load_dwordx2 s[{SRD_WK}:{SRD_WK+1}], s[0:1], {KA_WK}
    s_load_dwordx2 s[{SRD_WV}:{SRD_WV+1}], s[0:1], {KA_WV}
    s_load_dwordx2 s[{SRD_W1}:{SRD_W1+1}], s[0:1], {KA_W1}
    s_load_dwordx2 s[{SRD_W3}:{SRD_W3+1}], s[0:1], {KA_W3}
    s_load_dwordx2 s[60:61], s[0:1], {KA_GW}
    s_load_dwordx2 s[{S_DBG2}:{S_DBG2+1}], s[0:1], {KA_DBG}
    s_waitcnt lgkmcnt(0)
    s_mov_b32 s{SRD_WS+2}, {WS_SIZE}
    s_mov_b32 s{SRD_WS+3}, 0x20000
    s_mov_b32 s{SRD_X+2}, {2048 * 1024}
    s_mov_b32 s{SRD_X+3}, 0x20000
    s_mov_b32 s62, 1024
    s_mov_b32 s63, 0x20000
    s_mov_b32 s{S_NLOG}, {f2u(-1.4426950408889634):#x}
    s_mov_b32 s{S_NLOG+1}, {f2u(-1.4426950408889634):#x}
    s_mov_b32 s{S_ONE}, 1.0
    s_mov_b32 s{S_ONE+1}, 1.0
    s_mov_b32 s{S_PEND}, 0
""")
    emit_setup(a)
    a(f"""
    s_and_b32 s75, s{S_WID}, 7
    s_lshr_b32 s76, s{S_WID}, 3             ; group 0..27
    s_mov_b32 s{S_SESS}, 1
    s_cmp_lt_u32 s75, 5
    s_cbranch_scc1 L_g1w_sess
    s_cmp_ge_u32 s76, 12
    s_cbranch_scc1 L_g1w_sess
    s_mov_b32 s{S_SESS}, 0
L_g1w_sess:
    s_cmp_eq_u32 s{S_SESS}, 0
    s_cbranch_scc0 L_g1w_own
    s_mov_b32 s{S_TB}, 0
    s_sub_u32 s{S_T0}, s75, 5
    s_mul_i32 s{S_T0}, s{S_T0}, 12
    s_add_u32 s{S_CU}, s{S_T0}, s76
    s_add_u32 s{S_CU}, s{S_CU}, 28
    s_mov_b32 s{S_STRIDE}, 1000
    s_mov_b32 s77, s{S_CU}
    s_branch L_g1w_go
L_g1w_own:
    s_mov_b32 s{S_TB}, s75
    s_mov_b32 s{S_STRIDE}, 28
    s_cmp_eq_u32 s75, 0
    s_cbranch_scc0 L_g1w_n0
    s_mov_b32 s{S_CU}, s76
    s_add_u32 s77, s76, 64
    s_branch L_g1w_go
L_g1w_n0:
    s_cmp_lt_u32 s75, 5
    s_cbranch_scc0 L_g1w_late
    s_mov_b32 s{S_CU}, s76
    s_add_u32 s77, s76, 28
    s_branch L_g1w_go
L_g1w_late:
    s_add_u32 s77, s76, 16
    s_cmp_ge_u32 s76, 12
    s_cbranch_scc1 L_g1w_l2
    s_mov_b32 s{S_CU}, s77
    s_add_u32 s77, s77, 28
    s_branch L_g1w_go
L_g1w_l2:
    s_sub_u32 s{S_CU}, s76, 12
L_g1w_go:
    s_mov_b32 s{S_URG}, 1
""")
    emit_load_x(a)
    a(f"""
    v_mov_b32 {vr(V_TMP)}, {DB_INIT}
    s_mov_b32 s78, 0
L_g1w_init:
    global_load_dword {vr(V_TMP+1)}, {vr(V_TMP)}, s[{S_DBG2}:{S_DBG2+1}] sc1
    s_waitcnt vmcnt(0)
    v_readfirstlane_b32 s{S_T0}, {vr(V_TMP+1)}
    s_cmp_lg_u32 s{S_T0}, 0
    s_cbranch_scc1 L_g1w_initd
    s_sleep 8
    s_add_u32 s78, s78, 1
    s_cmp_lt_u32 s78, 100000
    s_cbranch_scc1 L_g1w_init
L_g1w_initd:
""")
    a('    s_barrier')
    a(f"""
    s_cmp_eq_u32 s{S_SESS}, 1
    s_cbranch_scc0 L_g1w_nog
    s_cmp_eq_u32 s76, 27
    s_cbranch_scc0 L_g1w_nog
    v_lshrrev_b32 {vr(V_TMP)}, 5, {vr(V_L)}
    v_lshlrev_b32 {vr(V_TMP)}, 4, {vr(V_TMP)}
""")
    emit_gate_mfma(a)
    a('L_g1w_nog:')
    emit_decode(a, S_CU, S_TYPE, S_OUT)
    for c in range(PD): dma_chunk(a, c)
    dummies(a, 16)
    def next_decode():
        a(f"""
    s_cmp_ge_u32 s77, 124
    s_cselect_b32 s{S_FIRST+1}, s{S_CU}, s77
    s_cmp_eq_u32 s{S_SESS}, 0
    s_cselect_b32 s{S_FIRST+1}, s{S_CU}, s{S_FIRST+1}
""")
        emit_decode(a, S_FIRST + 1, S_NTYPE, S_NOUT)
    def midflag():
        flag_add(a, 'L_mf_%d' % len(a.lines))
    a('L_g1w_unit:')
    a(f"""
    s_cmp_eq_u32 s{S_TYPE}, 1
    s_cbranch_scc1 L_g1w_v
""")
    emit_mainloop(a, False, 'k', next_decode, midflag)
    a('    s_branch L_g1w_next')
    a('L_g1w_v:')
    emit_mainloop(a, True, 'v', next_decode, midflag)
    a('L_g1w_next:')
    a(f"""
    s_cmp_eq_u32 s{S_TYPE}, 3
    s_cbranch_scc1 L_g1w_ef
    s_cmp_eq_u32 s{S_TYPE}, 1
    s_cbranch_scc1 L_g1w_ev
""")
    epi_pack(a, V_STK, 262144, ST)
    a('    s_branch L_g1w_ed')
    a('L_g1w_ev:')
    epi_pack(a, V_LIN16, 262144, ST)
    a('    s_branch L_g1w_ed')
    a('L_g1w_ef:')
    epi_ffn(a, ST)
    dummies(a, 8)
    a('L_g1w_ed:')
    a(f"""
    s_mov_b32 s{S_PEND}, 1
    s_cmp_eq_u32 s{S_TYPE}, 2
    s_cselect_b32 s{S_PEND}, 0x100, s{S_PEND}
    s_cmp_eq_u32 s{S_TYPE}, 3
    s_cselect_b32 s{S_PEND}, 0x10000, s{S_PEND}
    s_mov_b32 s{S_PTB}, s{S_TB}
    s_mov_b32 s{S_T2}, 0
    s_cmp_ge_u32 s77, 124
    s_cselect_b32 s{S_T2}, 1, s{S_T2}
    s_cmp_eq_u32 s{S_SESS}, 0
    s_cselect_b32 s{S_T2}, 1, s{S_T2}
    s_or_b32 s{S_T1}, s{S_T2}, s{S_URG}
    s_cmp_eq_u32 s{S_T1}, 0
    s_cbranch_scc1 L_g1w_noflush
    s_waitcnt vmcnt(0)
    s_barrier
""")
    flag_add(a, 'L_fl0')
    dummies(a, 16)
    a(f"""
L_g1w_noflush:
    s_mov_b32 s{S_URG}, 0
    s_cmp_eq_u32 s{S_T2}, 1
    s_cbranch_scc1 L_g1w_sessend
    s_mov_b32 s{S_TYPE}, s{S_NTYPE}
    s_mov_b32 s{S_OUT}, s{S_NOUT}
    s_mov_b32 s{S_CU}, s77
    s_add_u32 s77, s77, 28
    s_branch L_g1w_unit
L_g1w_sessend:
    s_waitcnt vmcnt(0)
    s_barrier
    s_cmp_eq_u32 s{S_SESS}, 0
    s_cbranch_scc0 L_g1w_done
    s_mov_b32 s{S_SESS}, 1
    s_branch L_g1w_own
L_g1w_done:
""")
```

```python
import numpy as np

KA_X, KA_MEM0, KA_WQ, KA_WK, KA_WV, KA_WO, KA_SEG, KA_BX, KA_W1, KA_W3, KA_W2, KA_GW, KA_OUT, KA_DBG, KA_WS = [8 * i for i in range(15)]

WS_P    = 0x0010_0000
WS_M    = 0x0018_0000
WS_DBGM = 0x0020_0000
WS_K    = 0x0100_0000
WS_V    = 0x0200_0000
WS_Q    = 0x0300_0000
WS_O    = 0x0400_0000
WS_KM   = 0x0500_0000
WS_VM   = 0x0580_0000
WS_H    = 0x0680_0000
WS_B    = 0x0780_0000
WS_G    = 0x0030_0000
H_SEG   = 224 * 512
WS_SIZE = 0x1000_0000

def feat_of_chunk(c, i):
    ft, cb, hf = c >> 2, (c >> 1) & 1, c & 1
    return 32 * ft + 16 * cb + 4 * hf + 8 * (i >> 2) + (i & 3)

def tokpos(t):
    return t ^ ((t >> 4) << 3)

def vkey(j, hk, i):
    return 16 * j + 8 * (i >> 2) + 4 * hk + (i & 3)

def pack_K(K):
    K = K.reshape(64, 32, 32, 128)
    out = np.zeros((64, 32, 16, 32, 8), dtype=K.dtype)
    for c in range(16):
        f = [feat_of_chunk(c, i) for i in range(8)]
        for t in range(32):
            out[:, :, c, tokpos(t), :] = K[:, t][:, :, f]
    return out

def pack_V(V):
    V = V.reshape(64, 32, 32, 128)
    out = np.zeros((64, 32, 4, 2, 2, 32, 8), dtype=V.dtype)
    for j in range(2):
        for hk in range(2):
            keys = [vkey(j, hk, i) for i in range(8)]
            x = V[:, keys]
            x = x.transpose(0, 2, 3, 1).reshape(64, 32, 4, 32, 8)
            out[:, :, :, j, hk, :, :] = x
    return out

def m_dim(ks, ga, half, s):
    jj, e = s >> 1, s & 1
    return 64 * ks + 32 * half + 16 * e + 4 * ga + jj

def row_token(rho): return 2 * (rho >> 2) + (rho & 1)
def row_half(rho): return (rho >> 1) & 1

def unpack_M(buf):
    m = np.zeros((8, 512), dtype=buf.dtype)
    for ks in range(8):
        for lane in range(64):
            ga, row = lane >> 4, lane & 15
            tok, half = row_token(row), row_half(row)
            for s in range(8):
                m[tok, m_dim(ks, ga, half, s)] = buf[ks, lane, s]
    return m

def unpack_KM(buf):
    out = np.zeros((8, 128), dtype=buf.dtype)
    for c in range(16):
        for i in range(8):
            out[:, feat_of_chunk(c, i)] = buf[c, :, i]
    return out

def unpack_VM(buf):
    out = np.zeros((8, 128), dtype=buf.dtype)
    for w in range(4):
        for l in range(64):
            n, g = l & 15, l >> 4
            for phi in range(2):
                for e in range(2):
                    out[2 * g + e, 32 * w + 16 * phi + n] = buf[w, l, 4 * phi + e]
    return out


def unpack_QK(buf):
    out = np.zeros((64, 32, 32, 128), dtype=buf.dtype)
    for c in range(16):
        f = [feat_of_chunk(c, i) for i in range(8)]
        for t in range(32):
            out[:, t][:, :, f] = buf[:, :, c, tokpos(t), :]
    return out.reshape(2048, 32, 128)

def unpack_V(buf):
    out = np.zeros((64, 32, 32, 128), dtype=buf.dtype)
    for j in range(2):
        for hk in range(2):
            keys = [vkey(j, hk, i) for i in range(8)]
            x = buf[:, :, :, j, hk, :, :].reshape(64, 32, 128, 8)
            for i, k in enumerate(keys):
                out[:, k] = x[:, :, :, i]
    return out.reshape(2048, 32, 128)

def h_col_of_chunk(c, i):
    fb, r = c >> 3, c & 7
    ct, cb, hf = r >> 2, (r >> 1) & 1, r & 1
    return 64 * fb + 32 * ct + 16 * cb + 4 * hf + 8 * (i >> 2) + (i & 3)

def unpack_H(buf):
    out = np.zeros((64, 32, 1792), dtype=buf.dtype)
    for c in range(224):
        f = [h_col_of_chunk(c, i) for i in range(8)]
        out[:, :, f] = buf[:, c, :, :]
    return out.reshape(2048, 1792)

def unpack_O(buf):
    out = np.zeros((64, 32, 32, 128), dtype=buf.dtype)
    for c in range(16):
        f = [feat_of_chunk(c, i) for i in range(8)]
        out[:, :, :, f] = buf[:, :, c, :, :].transpose(0, 2, 1, 3)
    return out.reshape(2048, 32, 128)

DB_TICK, DB_CBAR, DB_TOTAL, DB_OVF = 0, 16, 20, 24
DB_OCNT, DB_G1, DB_PROG = 32, 96, 128

DB_INIT = 28
WS_FL = 0x0004_0000
FL_G1, FL_O, FL_P = WS_FL, WS_FL + 1024, WS_FL + 1024 + 8192
FL_BYTES = 1024 + 8192 + 4096
```

```python
import sys
sys.path.insert(0, 'gen')
from asmlib import *
from layout import *
import kern, g1, attn, fin, chain2 as chain

NAME = 'gated_mix__memory_aug_recurrent_mem_tr__glu_gated_swiglu__prompt'
KNAME = NAME + '_kernel'

def body(a, cfg):
    a(f"""
    s_load_dwordx2 s[16:17], s[0:1], {KA_DBG}
    s_memrealtime s[92:93]
    s_getreg_b32 s33, hwreg(HW_REG_XCC_ID)
    s_and_b32 s33, s33, 7
    v_lshrrev_b32 v1, 6, v0
    s_nop 1
    v_readfirstlane_b32 s4, v1
    s_waitcnt lgkmcnt(0)
    v_cmp_eq_u32 vcc, 0, v0
    s_and_saveexec_b64 s[44:45], vcc
    s_cbranch_execz L_t1
    s_lshr_b32 s34, s33, 1
    s_lshl_b32 s34, s34, 2
    s_and_b32 s35, s33, 1
    s_lshl_b32 s35, s35, 4
    s_lshl_b32 s36, 1, s35
    v_mov_b32 v1, s34
    v_mov_b32 v2, s36
    global_atomic_add v3, v1, v2, s[16:17] sc0 sc1
    s_waitcnt vmcnt(0)
    v_lshrrev_b32 v3, s35, v3
    v_and_b32 v3, 0xffff, v3
    v_mov_b32 v4, {chain.LDS_MISC}
    ds_write_b32 v4, v3
    s_waitcnt lgkmcnt(0)
L_t1:
    s_mov_b64 exec, s[44:45]
    s_barrier
    v_mov_b32 v4, {chain.LDS_MISC}
    ds_read_b32 v3, v4
    s_waitcnt lgkmcnt(0)
    v_readfirstlane_b32 s3, v3
    s_barrier
    s_cmp_ge_u32 s3, 32
    s_cbranch_scc1 L_all_end
    s_cmp_lg_u32 s33, 0
    s_cbranch_scc1 L_worker
""")
    a('    s_mov_b32 s73, s92')
    chain.emit_chain(a, cfg)
    a('    s_branch L_all_end')
    a('L_worker:')
    a(f"""
    s_sub_u32 s90, s33, 1
    s_lshl_b32 s90, s90, 5
    s_add_u32 s90, s90, s3
    v_mov_b32 v15, v0
""")
    g1.emit_worker_g1(a, cfg)
    if cfg.get('timing'): a('    s_memrealtime s[94:95]')
    a(f"""
    v_mov_b32 v0, v15
    s_cmp_ge_u32 s90, {cfg.get('natt', 32)}
    s_cbranch_scc1 L_finrole
""")
    attn.emit_attn_worker(a, cfg)
    a('    s_branch L_wk_end')
    a('L_finrole:')
    fin.emit_fin_worker(a, cfg)
    a('L_wk_end:')
    if cfg.get('timing'):
        a(f"""
    s_memrealtime s[96:97]
    s_waitcnt lgkmcnt(0)
    s_lshl_b32 s28, s90, 4
    s_add_u32 s28, s28, 0x20000
    s_cmp_lg_u32 s4, 0
    s_cbranch_scc1 L_all_end
    s_mov_b64 exec, 1
    v_mov_b32 v1, 0
    v_mov_b32 v2, s92
    v_mov_b32 v3, s94
    v_mov_b32 v4, s96
    buffer_store_dword v2, v1, s[8:11], s28 offen
    buffer_store_dword v3, v1, s[8:11], s28 offen offset:4
    buffer_store_dword v4, v1, s[8:11], s28 offen offset:8
""")
    a('L_all_end:')

def gen(cfg):
    head = """; gated mix of recurrent-memory attention and SwiGLU FFN (single persistent kernel)
; @launch grid=(256,1,1) block=(256,1,1) lds=163840
.amdgcn_target "amdgcn-amd-amdhsa--gfx950"
.text
"""
    return head + kern.simple_kernel(KNAME, 256, body, cfg)

if __name__ == '__main__':
    cfg = dict(st='', d1=128, np2=2, g2=128, maxpoll=20000, progress=True, fused=True)
    t = gen(cfg)
    open('cdna_kernels/%s.s' % NAME, 'w').write(t)
    print(len(t), 'bytes', len(t.splitlines()), 'lines')
```

```python
from asmlib import *
from layout import *
import struct

LDS_M, LDS_QK, LDS_OX, LDS_MISC, LDS_KB, LDS_W = 0, 8192, 12288, 14336, 16384, 32768

S_H, S_W, S_STEP, S_ERR, S_CNT = 3, 4, 5, 6, 7
SRD_WS, SRD_A = 8, 12
S_DBG, S_WSP = 16, 18
S_MCUR, S_MNXT, S_MOTH, S_MPOLL = 20, 21, 22, 47
S_PST, S_PL0, S_PL1, S_PR0, S_PR1 = 23, 24, 25, 26, 27
S_KSRC, S_KDST, S_VSRC, S_KMO, S_VMO = 28, 29, 30, 31, 32
S_T0, S_T1, S_T2 = 33, 34, 35
S_ARR, S_MODE = 72, 71
S_KMP, S_VMP = 62, 63
S_MASK_T = 36
S_MASK_ODD = 38
S_MASK_M = 40
S_MASK_PB = 42
S_EXEC = 44
S_C = 46
S_SEL = 48
S_TM0, S_TM1 = 56, 58
S_WBASE, S_WBASE_O, S_DBGM = 60, 61, 45
S_MASK_ODDL = 100
S_ST = 64
S_TS = 80
SRD_Q, SRD_K, SRD_V, SRD_O = 84, 88, 92, 96

V_LIN16, V_PLD, V_MST, V_QW, V_QR, V_K0, V_K1, V_OW, V_OR, V_VLD, V_IDX, V_WL = range(12)
V_VB = 12
V_VX = 16
V_ON16 = 24
R_X = 26
R_M, R_S, R_Q, R_K = 32, 64, 96, 112
V_WV = 128

def wq(ks, sel): return ar(0 + (ks * 2 + sel) * 8, 8)
def wk(ks, sel): return ar(96 + (ks * 2 + sel) * 8, 8)
def wo0(tau): return ar(192 + tau * 8, 8)
def wv(ks, sel): return vr(V_WV + (ks * 2 + sel) * 8, 8)

SOFT_C = (128 ** -0.5) * 1.4426950408889634
def f2u(x): return struct.unpack('<I', struct.pack('<f', x))[0]
WS = f's[{SRD_WS}:{SRD_WS+3}]'

class LG:
    def __init__(self, a):
        self.a = a; self.n = 0; self.tags = {}; self.done = 0
    def issue(self, text, tag=None):
        self.a(text); self.n += 1
        if tag is not None: self.tags[tag] = self.n
    def wait(self, tag):
        pos = self.tags[tag]
        if pos <= self.done: return
        k = self.n - pos
        self.a('    s_waitcnt lgkmcnt(%d)' % min(k, 15))
        self.done = self.n - min(k, 15)
    def wait_all(self):
        self.a('    s_waitcnt lgkmcnt(0)'); self.done = self.n

STAMP_RAW = 64
STAMP_ACC = 84
def stamp(a, cfg, k):
    if not cfg.get('stamp'): return
    a(f'    s_memtime s[{STAMP_RAW+2*k}:{STAMP_RAW+2*k+1}]')

def T(a, cfg, k):
    if 'trace' not in cfg: return
    if 'tmap' in cfg: return
    if k in cfg.get('tset', range(16)):
        a(f'    s_memtime s[{64+2*k}:{64+2*k+1}]')

def TN(a, cfg, name):
    tm = cfg.get('tmap')
    if tm and name in tm:
        k = tm[name]
        a(f'    s_memtime s[{64+2*k}:{64+2*k+1}]')

def trace_dump(a, cfg, w):
    if 'trace' not in cfg: return
    lab = f'L_trd{w}'
    a(f"""
    s_cmp_lg_u32 s{S_STEP}, {cfg['trace']}
    s_cbranch_scc1 {lab}
    s_waitcnt lgkmcnt(0)
    s_lshl_b32 s{S_T0}, s{S_H}, 2
    s_add_u32 s{S_T0}, s{S_T0}, {w}
    s_lshl_b32 s{S_T0}, s{S_T0}, 7
    s_add_u32 s{S_T0}, s{S_T0}, 0x8000
    s_mov_b64 exec, 1
    v_mov_b32 {vr(R_X)}, 0
""")
    for k in range(16):
        a(f'    v_mov_b32 {vr(R_X+1)}, s{64+2*k}')
        a(f'    buffer_store_dword {vr(R_X+1)}, {vr(R_X)}, {WS}, s{S_T0} offen offset:{4*k}')
    a(f'    s_mov_b64 exec, -1\n{lab}:')

def stamp_accum(a, cfg):
    if not cfg.get('stamp'): return
    a('    s_waitcnt lgkmcnt(0)')
    order = [9, 0, 1, 2, 3, 4, 5, 6, 7, 8]
    prev = 94
    for k in order:
        a(f'    s_sub_u32 s{S_T0}, s{STAMP_RAW+2*k}, s{prev}')
        a(f'    s_add_u32 s{STAMP_ACC+k}, s{STAMP_ACC+k}, s{S_T0}')
        prev = STAMP_RAW + 2 * k
    a(f'    s_mov_b32 s94, s{STAMP_RAW+2*8}')

DUMP_BASE = 0x0800_0000
_dumpn = [0]
def dump(a, cfg, w, slot, first, n):
    if 'dumpstep' not in cfg: return
    _dumpn[0] += 1
    lab = 'L_dmp%d' % _dumpn[0]
    a(f"""
    s_cmp_lg_u32 s{S_STEP}, {cfg['dumpstep']}
    s_cbranch_scc1 {lab}
    s_waitcnt lgkmcnt(0)
    s_nop 15
    s_lshl_b32 s{S_T0}, s{S_H}, 2
    s_add_u32 s{S_T0}, s{S_T0}, {w}
    s_lshl_b32 s{S_T0}, s{S_T0}, 15
    s_add_u32 s{S_T0}, s{S_T0}, {DUMP_BASE + slot * 0x400000}
""")
    for r in range(n):
        a(f'    buffer_store_dword {vr(first + r)}, {vr(V_LIN16)}, {WS}, s{S_T0} offen')
        a(f'    s_add_u32 s{S_T0}, s{S_T0}, 1024')
    a(f'{lab}:')

def smf(acc, A, B):
    return f'    v_smfmac_f32_16x16x64_bf16 {vr(acc,4)}, {vr(A,4)}, {B}, {vr(V_IDX)}'
def mf32(D, A, B, C):
    return f'    v_mfma_f32_16x16x32_bf16 {vr(D,4)}, {A}, {B}, {C}'
def pkadd(d, x, y):
    return f'    v_pk_add_f32 {vr(d,2)}, {vr(x,2)}, {vr(y,2)}'
def add2(d, x, y):
    return [f'    v_add_f32 {vr(d)}, {vr(x)}, {vr(y)}', f'    v_add_f32 {vr(d+1)}, {vr(x+1)}, {vr(y+1)}']
def cvt(d, x, y):
    return f'    v_cvt_pk_bf16_f32 {vr(d)}, {vr(x)}, {vr(y)}'

def emit_setup(a, cfg, w):
    t0, t1, t2 = R_X, R_X + 1, R_X + 2
    L = R_X + 5
    a(f'''
    v_and_b32 {vr(L)}, 63, v0
    v_lshlrev_b32 {vr(V_LIN16)}, 4, {vr(L)}
    s_lshl_b32 s{S_T0}, s{S_H}, 2
    s_add_u32 s{S_T0}, s{S_T0}, {w}          ; R
    v_lshrrev_b32 {vr(t0)}, 2, {vr(L)}
    v_lshlrev_b32 {vr(t0)}, 11, {vr(t0)}
    v_and_b32 {vr(t1)}, 3, {vr(L)}
    v_lshlrev_b32 {vr(t1)}, 4, {vr(t1)}
    v_add_u32 {vr(V_PLD)}, {vr(t0)}, {vr(t1)}
    s_lshr_b32 s{S_T1}, s{S_T0}, 4
    s_lshl_b32 s{S_T1}, s{S_T1}, 10
    s_and_b32 s{S_T2}, s{S_T0}, 3
    s_lshl_b32 s{S_T2}, s{S_T2}, 8
    s_add_u32 s{S_T1}, s{S_T1}, s{S_T2}
    s_and_b32 s{S_T2}, s{S_T0}, 12              ; gR*4
    s_lshl_b32 s{S_T2}, s{S_T2}, 4              ; 4 gR * 16
    s_add_u32 s{S_T1}, s{S_T1}, s{S_T2}
    v_bfe_u32 {vr(t0)}, {vr(L)}, 4, 1
    v_lshlrev_b32 {vr(t0)}, 5, {vr(t0)}
    v_bfe_u32 {vr(t1)}, {vr(L)}, 2, 1
    v_lshlrev_b32 {vr(t1)}, 4, {vr(t1)}
    v_and_b32 {vr(t2)}, 3, {vr(L)}
    v_lshlrev_b32 {vr(t2)}, 2, {vr(t2)}
    v_add3_u32 {vr(t0)}, {vr(t0)}, {vr(t1)}, {vr(t2)}
    v_add_u32 {vr(V_MST)}, s{S_T1}, {vr(t0)}
    v_and_b32 {vr(t0)}, 15, {vr(L)}
    v_lshlrev_b32 {vr(t0)}, 4, {vr(t0)}
    v_lshrrev_b32 {vr(t1)}, 4, {vr(L)}
    v_lshlrev_b32 {vr(t1)}, 2, {vr(t1)}
    v_add_u32 {vr(t0)}, {vr(t0)}, {vr(t1)}
    v_add_u32 {vr(V_QW)}, {LDS_QK + w * 1024}, {vr(t0)}
    v_lshrrev_b32 {vr(t0)}, 5, {vr(L)}
    v_lshlrev_b32 {vr(t0)}, 9, {vr(t0)}
    v_bfe_u32 {vr(t1)}, {vr(L)}, 4, 1
    v_lshlrev_b32 {vr(t1)}, 6, {vr(t1)}
    v_bfe_u32 {vr(t2)}, {vr(L)}, 2, 2
    v_lshlrev_b32 {vr(t2)}, 4, {vr(t2)}
    v_add3_u32 {vr(t0)}, {vr(t0)}, {vr(t1)}, {vr(t2)}
    v_bfe_u32 {vr(t1)}, {vr(L)}, 1, 1
    v_lshlrev_b32 {vr(t1)}, 3, {vr(t1)}
    v_add_u32 {vr(t0)}, {vr(t0)}, {vr(t1)}
    v_add_u32 {vr(V_QR)}, {LDS_QK}, {vr(t0)}
    v_lshrrev_b32 {vr(t0)}, 4, {vr(L)}
    v_lshlrev_b32 {vr(t0)}, 9, {vr(t0)}
    v_and_b32 {vr(t1)}, 15, {vr(L)}
    v_lshlrev_b32 {vr(t1)}, 4, {vr(t1)}
    v_add_u32 {vr(t0)}, {vr(t0)}, {vr(t1)}
    v_bfe_u32 {vr(t2)}, {vr(L)}, 3, 1
    v_lshlrev_b32 {vr(t2)}, 8, {vr(t2)}
    v_add_u32 {vr(V_K0)}, {vr(t0)}, {vr(t2)}
    v_add_u32 {vr(V_K0)}, {LDS_KB}, {vr(V_K0)}
    v_add_u32 {vr(V_K1)}, {LDS_KB + 128}, {vr(t0)}
    v_lshrrev_b32 {vr(t0)}, 4, {vr(L)}
    v_lshlrev_b32 {vr(t0)}, 7, {vr(t0)}
    v_bfe_u32 {vr(t1)}, {vr(L)}, 3, 1
    v_lshlrev_b32 {vr(t1)}, 6, {vr(t1)}
    v_and_b32 {vr(t2)}, 3, {vr(L)}
    v_lshlrev_b32 {vr(t2)}, 4, {vr(t2)}
    v_add3_u32 {vr(V_OW)}, {vr(t0)}, {vr(t1)}, {vr(t2)}
    v_lshrrev_b32 {vr(t0)}, 4, {vr(L)}
    v_lshlrev_b32 {vr(t0)}, 8, {vr(t0)}
    v_bfe_u32 {vr(t1)}, {vr(L)}, 1, 1
    v_lshlrev_b32 {vr(t1)}, 7, {vr(t1)}
    v_bfe_u32 {vr(t2)}, {vr(L)}, 2, 2
    v_lshlrev_b32 {vr(t2)}, 5, {vr(t2)}
    v_add3_u32 {vr(t0)}, {vr(t0)}, {vr(t1)}, {vr(t2)}
    v_and_b32 {vr(t1)}, 1, {vr(L)}
    v_lshlrev_b32 {vr(t1)}, 4, {vr(t1)}
    v_add_u32 {vr(t0)}, {vr(t0)}, {vr(t1)}
    v_add_u32 {vr(V_OR)}, {LDS_OX}, {vr(t0)}
    ; V_VLD = (g>>1)*1024 + (g&1)*512 + f16*16
    v_lshrrev_b32 {vr(t0)}, 5, {vr(L)}
    v_lshlrev_b32 {vr(t0)}, 10, {vr(t0)}
    v_bfe_u32 {vr(t1)}, {vr(L)}, 4, 1
    v_lshlrev_b32 {vr(t1)}, 9, {vr(t1)}
    v_and_b32 {vr(t2)}, 15, {vr(L)}
    v_lshlrev_b32 {vr(t2)}, 4, {vr(t2)}
    v_add3_u32 {vr(V_VLD)}, {vr(t0)}, {vr(t1)}, {vr(t2)}
    v_bfe_u32 {vr(t0)}, {vr(L)}, 1, 1
    v_mov_b32 {vr(t1)}, 0x4444
    v_mov_b32 {vr(t2)}, 0xeeee
    v_cmp_eq_u32 vcc, 1, {vr(t0)}
    v_cndmask_b32 {vr(V_IDX)}, {vr(t1)}, {vr(t2)}, vcc
    v_add_u32 {vr(V_WL)}, {LDS_W + w * 32768}, {vr(V_LIN16)}
    v_mov_b32 {vr(V_VB+1)}, 0
    v_mov_b32 {vr(V_VB+3)}, 0
    v_mov_b32 {vr(V_ON16)}, 0x3f803f80
    v_mov_b32 {vr(V_ON16+1)}, 0
    v_bfe_u32 {vr(t0)}, {vr(L)}, 1, 3
''')
    for u in range(4):
        a(f'    v_cmp_eq_u32 s[{S_SEL+2*u}:{S_SEL+2*u+1}], {u}, {vr(t0)}')
    a(f'''
    s_mov_b32 s{S_MASK_T}, 0x0f0f0f0f
    s_mov_b32 s{S_MASK_T+1}, 0x0f0f0f0f
    s_mov_b32 s{S_MASK_ODD}, 0xffff0000
    s_mov_b32 s{S_MASK_ODD+1}, 0xffff0000
    s_mov_b32 s{S_MASK_M}, 0x00ff00ff
    s_mov_b32 s{S_MASK_M+1}, 0
    s_mov_b32 s{S_MASK_PB}, 0xf0f0f0f0
    s_mov_b32 s{S_MASK_PB+1}, 0xf0f0f0f0
    s_mov_b32 s{S_C}, {f2u(SOFT_C):#x}
''')

def emit_init(a, cfg, w):
    t = R_S
    L = R_X + 5
    ST = 'sc1' if cfg.get('fallback') else cfg['st']
    a(f"""
    v_mov_b32 {vr(t)}, -1
    v_mov_b32 {vr(t+1)}, -1
    v_mov_b32 {vr(t+2)}, -1
    v_mov_b32 {vr(t+3)}, -1
""")
    a(f"""
    s_lshl_b32 s{S_T0}, s{S_H}, 13
    s_add_u32 s{S_T0}, s{S_T0}, {WS_P + w * 2048}
    buffer_store_dwordx4 {vr(t,4)}, {vr(V_LIN16)}, {WS}, s{S_T0} offen {ST}
    buffer_store_dwordx4 {vr(t,4)}, {vr(V_LIN16)}, {WS}, s{S_T0} offen offset:1024 {ST}
    s_add_u32 s{S_T0}, s{S_T0}, 262144
    buffer_store_dwordx4 {vr(t,4)}, {vr(V_LIN16)}, {WS}, s{S_T0} offen {ST}
    buffer_store_dwordx4 {vr(t,4)}, {vr(V_LIN16)}, {WS}, s{S_T0} offen offset:1024 {ST}
""")
    a(f"""
    s_lshl_b32 s{S_T0}, s{S_H}, 2
    s_add_u32 s{S_T0}, s{S_T0}, {w}
    s_lshr_b32 s{S_T1}, s{S_T0}, 4
    s_lshl_b32 s{S_T1}, s{S_T1}, 7
    s_and_b32 s{S_T2}, s{S_T0}, 3
    s_lshl_b32 s{S_T2}, s{S_T2}, 3          ; 4 ga * 2
    s_add_u32 s{S_T1}, s{S_T1}, s{S_T2}
    s_bfe_u32 s{S_T2}, s{S_T0}, 0x20002     ; gR
    s_lshl_b32 s{S_T2}, s{S_T2}, 11         ; 2 gR * 1024
    s_add_u32 s{S_T1}, s{S_T1}, s{S_T2}
    v_bfe_u32 {vr(t+4)}, {vr(L)}, 4, 1
    v_lshlrev_b32 {vr(t+4)}, 6, {vr(t+4)}    ; 32 half * 2
    v_bfe_u32 {vr(t+5)}, {vr(L)}, 2, 1
    v_lshlrev_b32 {vr(t+5)}, 10, {vr(t+5)}
    v_and_b32 {vr(t+6)}, 3, {vr(L)}
    v_lshlrev_b32 {vr(t+6)}, 1, {vr(t+6)}
    v_add3_u32 {vr(t+4)}, {vr(t+4)}, {vr(t+5)}, {vr(t+6)}
    v_add_u32 {vr(t+4)}, s{S_T1}, {vr(t+4)}
    buffer_load_ushort {vr(t+5)}, {vr(t+4)}, s[{SRD_A}:{SRD_A+3}], 0 offen
    buffer_load_ushort {vr(t+6)}, {vr(t+4)}, s[{SRD_A}:{SRD_A+3}], 0 offen offset:32
    s_waitcnt vmcnt(0)
    v_lshl_or_b32 {vr(t+5)}, {vr(t+6)}, 16, {vr(t+5)}
    v_min_u32 {vr(t+5)}, -2, {vr(t+5)}
    s_mov_b64 exec, s[{S_MASK_M}:{S_MASK_M+1}]
    s_mov_b32 s{S_T0}, {WS_M}
    buffer_store_dword {vr(t+5)}, {vr(V_MST)}, {WS}, s{S_T0} offen {ST}
    s_mov_b32 s{S_T0}, {WS_M + 8192}
    buffer_store_dword {vr(t)}, {vr(V_MST)}, {WS}, s{S_T0} offen {ST}
    s_mov_b32 s{S_T0}, {WS_M + 16384}
    buffer_store_dword {vr(t)}, {vr(V_MST)}, {WS}, s{S_T0} offen {ST}
""")
    if cfg.get('dbgm'):
        a(f"""
    s_mov_b32 s{S_T0}, {WS_DBGM}
    buffer_store_dword {vr(t+5)}, {vr(V_MST)}, {WS}, s{S_T0} offen
""")
    a(f"""
    s_mov_b64 exec, -1
    s_waitcnt vmcnt(0)
""")

def emit_weight_prologue(a, cfg, w, hook=None, hook2=None, hookA=None, hookB=None):
    L = R_X + 5
    vq0, vq1, vo0, vo1 = R_Q, R_Q + 1, R_Q + 2, R_Q + 3
    t0, t1, t2 = R_X, R_X + 1, R_X + 2
    tA, tB, tA2, tB2, tO = R_Q + 4, R_Q + 5, R_Q + 6, R_Q + 7, R_Q + 8
    for gb1, (vq, vo) in enumerate(((vq0, vo0), (vq1, vo1))):
        a(f'''
    v_lshrrev_b32 {vr(t0)}, 4, {vr(L)}                ; r
    v_bfe_u32 {vr(t1)}, {vr(L)}, 1, 3                 ; pp
    v_add_u32 {vr(t2)}, {gb1*4}, {vr(t0)}
    v_xor_b32 {vr(t1)}, {vr(t1)}, {vr(t2)}
    v_lshlrev_b32 {vr(t1)}, 5, {vr(t1)}
    v_and_b32 {vr(t2)}, 1, {vr(L)}
    v_lshlrev_b32 {vr(t2)}, 4, {vr(t2)}
    v_add_u32 {vr(t1)}, {vr(t1)}, {vr(t2)}
    v_and_b32 {vr(t2)}, 1, {vr(t0)}
    v_lshlrev_b32 {vr(t2)}, 17, {vr(t2)}
    v_add_u32 {vr(vq)}, {vr(t1)}, {vr(t2)}
    v_lshrrev_b32 {vr(t2)}, 1, {vr(t0)}
    v_lshlrev_b32 {vr(t2)}, 18, {vr(t2)}
    v_add_u32 {vr(vq)}, {vr(vq)}, {vr(t2)}
    v_and_b32 {vr(t2)}, 1, {vr(t0)}
    v_lshlrev_b32 {vr(t2)}, 10, {vr(t2)}
    v_add_u32 {vr(vo)}, {vr(t1)}, {vr(t2)}
    v_lshrrev_b32 {vr(t2)}, 1, {vr(t0)}
    v_lshlrev_b32 {vr(t2)}, 12, {vr(t2)}
    v_add_u32 {vr(vo)}, {vr(vo)}, {vr(t2)}
''')
    a(f'''
    v_lshrrev_b32 {vr(t0)}, 2, {vr(L)}
    v_lshlrev_b32 {vr(t1)}, 8, {vr(t0)}
    v_and_b32 {vr(t0)}, 7, {vr(t0)}
    v_lshlrev_b32 {vr(t0)}, 5, {vr(t0)}
    v_and_b32 {vr(t2)}, 3, {vr(L)}
    v_lshlrev_b32 {vr(t2)}, 3, {vr(t2)}
    v_add3_u32 {vr(t0)}, {vr(t0)}, {vr(t1)}, {vr(t2)}
    v_add_u32 {vr(tO)}, {LDS_W}, {vr(t0)}
    v_xor_b32 {vr(tA)}, {(2*w) << 5}, {vr(tO)}
    v_xor_b32 {vr(tB)}, 32, {vr(tA)}
    v_add_u32 {vr(tA2)}, 0x10000, {vr(tA)}
    v_add_u32 {vr(tB2)}, 0x10000, {vr(tB)}
    s_lshl_b32 s{S_WBASE}, s{S_H}, 8
    s_add_u32 s{S_WBASE}, s{S_WBASE}, {(8 * (w >> 1) + (w & 1)) * 8192}
    s_lshl_b32 s{S_WBASE_O}, s{S_H}, 17
    s_add_u32 s{S_WBASE_O}, s{S_WBASE_O}, {(32 * (w >> 1) + 2 * (w & 1)) * 1024}
''')
    units = []
    for m in ('q', 'k'):
        for ks in range(6): units.append((m, ks))
    for ks in range(8): units.append(('v', ks))
    for p in range(4): units.append(('o0', p))
    units += [('q', 6), ('o1', 0), ('q', 7), ('o1', 1), ('k', 6), ('o1', 2), ('k', 7), ('o1', 3)]
    srd = {'q': SRD_Q, 'k': SRD_K, 'v': SRD_V, 'o0': SRD_O, 'o1': SRD_O}
    def issue(u):
        m, x = units[u]
        slot = u % 8
        S = srd[m]
        for gb in range(4):
            if m in ('q', 'k', 'v'):
                uni = (64 * x + 4 * (gb >> 1) + 2 * (gb & 1)) * 8192
                vo = vq1 if gb & 1 else vq0
                base = S_WBASE
            else:
                kap = 0 if m == 'o0' else 1
                uni = (64 * kap + 16 * (gb & 1) + 8 * (gb >> 1)) * 1024 + x * 256
                vo = vo1 if gb & 1 else vo0
                base = S_WBASE_O
            a(f'''
    s_mov_b32 m0, {LDS_W + slot * 16384 + w * 4096 + gb * 1024}
    s_add_u32 s{S_T1}, s{base}, {uni}
    buffer_load_dwordx4 {vr(vo)}, s[{S}:{S+3}], s{S_T1} offen lds
''')
    def qkv_reads(slot, dsts):
        for sel in range(2):
            addr = (tA, tB)[sel] if slot < 4 else (tA2, tB2)[sel]
            off = (slot % 4) * 16384
            for U in range(4):
                a(f'    ds_read_b64_tr_b16 {dsts(sel, U)}, {vr(addr)} offset:{off + U * 4096}')
    def wo_reads(slot, dsts):
        a(f'    v_add_u32 {vr(tO+1)}, {slot * 16384}, {vr(tO)}')
        for tau in range(8):
            a(f'    v_xor_b32 {vr(tO+2)}, {tau << 5}, {vr(tO+1)}')
            for U in range(4):
                a(f'    ds_read_b64_tr_b16 {dsts(tau, U)}, {vr(tO+2)} offset:{U * 4096}')
            if tau % 2 == 1: a('    s_waitcnt lgkmcnt(0)')
    NIF = 7
    for u in range(NIF): issue(u)
    if hook: hook()
    for u in range(24):
        m, x = units[u]
        slot = u % 8
        a(f'    s_waitcnt vmcnt({4 * (NIF - 1)}) lgkmcnt(0)')
        a('    s_barrier')
        if m == 'v':
            qkv_reads(slot, lambda sel, U: vr(V_WV + (x * 2 + sel) * 8 + 2 * U, 2))
        elif m in ('q', 'k'):
            qkv_reads(slot, lambda sel, U: ar((0 if m == 'q' else 96) + (x * 2 + sel) * 8 + 2 * U, 2))
        elif x == w:
            wo_reads(slot, lambda tau, U: ar(192 + tau * 8 + 2 * U, 2))
        issue(u + NIF)
        if u == 14 and hookB: hookB()
    a('    s_waitcnt lgkmcnt(0)')
    a('    s_barrier')
    if hookA: hookA()
    issue(31)
    a('    s_waitcnt vmcnt(0)')
    a('    s_barrier')
    if hook2: hook2()
    for f2, slot in enumerate((0, 2, 4, 6)):
        qkv_reads(slot, lambda sel, U: vr(R_M + (f2 * 2 + sel) * 8 + 2 * U, 2))
        a('    s_waitcnt lgkmcnt(0)')
    a('    s_barrier')
    for f in range(8):
        for hh in range(2):
            a(f'    ds_write_b128 {vr(V_WL)}, {vr(R_M + f * 8 + 4 * hh, 4)} offset:{f * 2048 + hh * 1024}')
    a('    s_waitcnt lgkmcnt(0)')
    wo_reads(2 * w + 1, lambda tau, U: vr(R_M + tau * 8 + 2 * U, 2))
    a('    s_waitcnt lgkmcnt(0)')
    for f in range(8):
        for hh in range(2):
            a(f'    ds_write_b128 {vr(V_WL)}, {vr(R_M + f * 8 + 4 * hh, 4)} offset:{16384 + f * 2048 + hh * 1024}')
    a('    s_waitcnt lgkmcnt(0)')
    a('    s_barrier')

def stage(lg, dst, f, tag=None):
    return [(lambda hh=hh: lg.issue(f'    ds_read_b128 {vr(dst + 4*hh, 4)}, {vr(V_WL)} offset:{f * 2048 + hh * 1024}', tag if hh == 1 else None)) for hh in range(2)]

def poll_check(a, regs, retry):
    a(f"""
    v_max3_u32 {vr(R_X)}, {vr(regs)}, {vr(regs+1)}, {vr(regs+2)}
    v_max3_u32 {vr(R_X+1)}, {vr(regs+3)}, {vr(regs+4)}, {vr(regs+5)}
    v_max3_u32 {vr(R_X)}, {vr(R_X)}, {vr(regs+6)}, {vr(regs+7)}
    v_max_u32 {vr(R_X)}, {vr(R_X)}, {vr(R_X+1)}
    v_cmp_eq_u32 vcc, -1, {vr(R_X)}
    s_cbranch_vccnz {retry}
""")

def retry_block(a, name, back, done, loads):
    a(f"""
{name}:
    s_add_u32 s{S_CNT}, s{S_CNT}, 1
    s_cmp_lt_u32 s{S_CNT}, s{S_ERR}
    s_cbranch_scc0 {name}_to
{loads}
    s_branch {back}
{name}_to:
    s_mov_b32 s{S_ERR}, 0
    s_branch {done}
""")

def hop2_loads(w):
    return (f'    s_mov_b32 m0, {LDS_M + w * 2048}\n'
            f'    buffer_load_dwordx4 {vr(V_LIN16)}, {WS}, s{S_MPOLL} offen sc1 lds\n'
            f'    buffer_load_dwordx4 {vr(V_LIN16)}, {WS}, s{S_MPOLL} offen offset:1024 sc1 lds\n')
def own_reads(w):
    PM = R_M + 8 * w
    return (f'    ds_read_b128 {vr(PM,4)}, {vr(V_LIN16)} offset:{LDS_M + w * 2048}\n'
            f'    ds_read_b128 {vr(PM+4,4)}, {vr(V_LIN16)} offset:{LDS_M + w * 2048 + 1024}\n'
            f'    s_waitcnt lgkmcnt(0)\n')
def hop1_loads():
    PA = R_Q
    return (f'    buffer_load_dwordx4 {vr(PA,4)}, {vr(V_LIN16)}, {WS}, s{S_PL0} offen sc1\n'
            f'    buffer_load_dwordx4 {vr(PA+4,4)}, {vr(V_LIN16)}, {WS}, s{S_PL0} offen offset:1024 sc1\n')

def idle_prep(a, lg):
    for f in range(4):
        for th in stage(lg, R_S + f * 8, f, f'wq{f}'): th()
    for r in range(16):
        a(f'    v_mov_b32 {vr(R_K + r)}, 0')

def weave(a, mf, fill):
    for i, m in enumerate(mf):
        if callable(m): m()
        else: a(m)
        for f in fill.get(i, []):
            if callable(f): f()
            else: a(f)

def mov64(r, src='0'):
    return f'    v_mov_b64 {vr(r,2)}, {src}'

class Sched:
    def __init__(self, a): self.a = a; self.mf = []; self.ds = {}; self.va = {}; self.pre = {}
    def add(self, m): self.mf.append(m); return len(self.mf) - 1
    def D(self, i, x): self.ds.setdefault(i, []).append(x)
    def V(self, i, x): self.va.setdefault(i, []).append(x)
    def P(self, i, x): self.pre.setdefault(i, []).append(x)
    def emit(self):
        run = lambda x: x() if callable(x) else self.a(x)
        for i, m in enumerate(self.mf):
            for x in self.pre.get(i, []): run(x)
            run(m)
            for x in self.ds.get(i, []): run(x)
            for x in self.va.get(i, []): run(x)

S_CC = 96
S_ONE2 = 98

def emit_step(a, cfg, w, last, ool):
    lg = LG(a)
    ST = cfg['st']
    tag = f'{w}' + ('l' if last else 'm') + cfg.get('sfx', '')
    own = (2 * w, 2 * w + 1)
    PM = R_M + 8 * w
    accQ, accK = R_K, R_K + 8
    X = R_X
    np2 = cfg.get('np2', 1)
    NRES = 2 if cfg.get('rstend') else 0
    tn = lambda n: (lambda: TN(a, cfg, n))
    a(f"    s_waitcnt vmcnt({2 * (np2 - 1) + NRES})")
    a(own_reads(w))
    poll_check(a, PM, f'L_p2r_{tag}')
    a(f'L_p2d_{tag}:')
    T(a, cfg, 0)
    def ool2():
        a(f"""
L_p2r_{tag}:
    s_add_u32 s{S_CNT}, s{S_CNT}, 1
    s_cmp_lt_u32 s{S_CNT}, s{S_ERR}
    s_cbranch_scc0 L_p2r_{tag}_to
""")
        a(hop2_loads(w))
        a(f"    s_waitcnt vmcnt({2 * (np2 - 1)})")
        a(own_reads(w))
        poll_check(a, PM, f'L_p2r_{tag}')
        a(f"""
    s_branch L_p2d_{tag}
L_p2r_{tag}_to:
    s_mov_b32 s{S_ERR}, 0
    s_branch L_p2d_{tag}
""")
    ool.append(ool2)
    stamp(a, cfg, 9)
    lg.n = 8; lg.done = 8
    for f in range(4): lg.tags[f'wq{f}'] = 2 * f + 2
    a('    s_barrier')
    T(a, cfg, 2)
    def Wq(ks, sel): return wq(ks, sel) if ks < 6 else vr(R_S + ((ks - 6) * 2 + sel) * 8, 8)
    def Wk(ks, sel): return wk(ks, sel) if ks < 6 else vr(R_S + ((ks - 6) * 2 + sel) * 8, 8)
    def Qs(ks, sel): return smf(accQ + 4 * sel, R_M + 4 * ks, Wq(ks, sel))
    def Ks(ks, sel): return smf(accK + 4 * sel, R_M + 4 * ks, Wk(ks, sel))
    accV = R_S + 16
    def Vs(ks, sel): return smf(accV + 4 * sel, R_M + 4 * ks, wv(ks, sel))
    others = [ks for ks in (6, 7, 0, 1, 2, 3, 4, 5) if ks not in own]
    mread = {ks: (lambda ks=ks: lg.issue(f'    ds_read_b128 {vr(R_M + 4*ks, 4)}, {vr(V_LIN16)} offset:{LDS_M + ks * 1024}', f'm{ks}')) for ks in others}
    wkst = []
    for f in range(4): wkst += stage(lg, R_S + f * 8, 4 + f, f'wk{f}')
    def waits(*tags):
        def f():
            for t in tags:
                if t in lg.tags: lg.wait(t)
        return f
    S = Sched(a)
    if not last:
        for ks in own:
            for sel in range(2): S.add(Qs(ks, sel))
    if w < 3:
        for ks in own:
            for sel in range(2): S.add(Ks(ks, sel))
    nE = len(S.mf)
    rd = list(others)
    mread[rd.pop(0)](); mread[rd.pop(0)]()
    stamp(a, cfg, 0)
    nvm = 0
    KP = X + 2
    pub_rd = [lambda: lg.issue(f'    ds_read_b64_tr_b16 {vr(KP, 2)}, {vr(V_QR)} offset:{256 + w * 1024}'),
              lambda: lg.issue(f'    ds_read_b64_tr_b16 {vr(KP + 2, 2)}, {vr(V_QR)} offset:{256 + w * 1024 + 128}', 'kp')]
    vmp = f'    buffer_store_dwordx4 {vr(V_VB,4)}, {vr(V_LIN16)}, {WS}, s{S_VMP} offen offset:{w * 1024} sc1'
    kmp = [waits('kp'), f'    s_mov_b64 exec, s[{S_MASK_T}:{S_MASK_T+1}]',
           f'    buffer_store_dwordx4 {vr(KP,4)}, {vr(V_OW)}, {WS}, s{S_KMP} offen offset:{w * 512} sc1', '    s_mov_b64 exec, -1']
    rst = [f'    buffer_store_dwordx4 {vr(R_Q+8,4)}, {vr(V_LIN16)}, {WS}, s{S_PR0} offen {ST}',
           f'    buffer_store_dwordx4 {vr(R_Q+8,4)}, {vr(V_LIN16)}, {WS}, s{S_PR0} offen offset:1024 {ST}']
    nvm += 2
    if not last:
        bg = [[f'    s_mov_b32 m0, s{S_KDST}', f'    buffer_load_dwordx4 {vr(V_LIN16)}, {WS}, s{S_KSRC} offen lds'],
              [f'    buffer_load_dwordx4 {vr(V_LIN16)}, {WS}, s{S_KSRC} offen offset:1024 lds'],
              [f'    s_mov_b32 m0, {LDS_MISC + w * 512}', f'    buffer_load_dword {vr(V_VLD)}, {WS}, s{S_VSRC} offen lds'],
              [f'    buffer_load_dword {vr(V_VLD)}, {WS}, s{S_VSRC} offen offset:256 lds']]
        nvm += 4
        if cfg.get('progress') and w == 0:
            bg.append([f'    s_lshl_b32 s{S_T0}, s{S_H}, 7', f'    s_add_u32 s{S_T0}, s{S_T0}, {FL_P}',
                       f'    s_sub_u32 s{S_T1}, s{S_STEP}, 1', f'    s_max_i32 s{S_T1}, s{S_T1}, 0', f'    v_mov_b32 {vr(X)}, s{S_T1}', f'    v_mov_b32 {vr(X+1)}, 0', f'    s_mov_b64 exec, 1',
                       f'    buffer_store_dword {vr(X)}, {vr(X+1)}, {WS}, s{S_T0} offen sc1', f'    s_mov_b64 exec, -1'])
            nvm += 1
        laststagedQ = None
        for ks in others:
            for sel in range(2):
                i = S.add(Qs(ks, sel))
                if sel == 0: S.P(i, waits(f'm{ks}'))
                if ks >= 6: laststagedQ = i
        if laststagedQ is None: laststagedQ = 3
        g = 0
        while rd:
            S.D(g, mread[rd.pop(0)]); g += 1
        S.D(g, pub_rd[0]); S.D(g + 1, pub_rd[1]); g += 2
        for gi, grp in zip((1, 4, 6, 9, 11), bg):
            for x in grp: S.V(gi, x)
        if cfg.get('rstE'):
            S.V(cfg.get('rp0', 2), rst[0]); S.V(cfg.get('rp1', 13), rst[1]); nvm += 2
        g = max(g, laststagedQ)
        k = 0
        while k < 8 and g < len(S.mf):
            S.D(g, wkst[k]); k += 1; g += 1
        S.emit()
        while k < 8: wkst[k](); k += 1
    else:
        for ks in rd: mread[ks]()
        for th in pub_rd: th()
        a(vmp)
        for x in kmp: x() if callable(x) else a(x)
        if nE > 0: S.emit()
        for th in wkst: th()
    stamp(a, cfg, 1); T(a, cfg, 3); TN(a, cfg, 'Qend')
    nonst = [ks for ks in others if ks < 6]
    if w < 3: kord = [6, nonst[0], 7] + nonst[1:]
    else: kord = [0, 6, 1, 7, 2, 3, 4, 5]
    S = Sched(a)
    pos6 = pos7 = None
    for ks in kord:
        for sel in range(2):
            i = S.add(Ks(ks, sel))
            if sel == 0:
                t = [f'm{ks}']
                if ks >= 6: t.append(f'wk{(ks - 6) * 2 + 1}')
                S.P(i, waits(*t))
            if ks == 6: pos6 = i
            if ks == 7: pos7 = i
    nk = len(S.mf)
    accV = R_K
    def Vs(ks, sel): return smf(accV + 4 * sel, R_M + 4 * ks, wv(ks, sel))
    Sx, KA, Sm, ON, Pq, PM16, Lx, Ox = R_K + 8, R_M, R_M + 16, R_M + 20, R_M + 24, R_M + 28, X, R_K
    kx = {(tau, k2): (lambda tau=tau, k2=k2: lg.issue(f'    ds_read_b128 {vr(R_S + tau*16 + 4*k2, 4)}, {vr((V_K0, V_K1)[tau])} offset:{k2 * 2048}', f'kx{tau}{k2}'))
          for tau in range(2) for k2 in range(4)}
    if not last:
        qa, qb_ = add2(accQ, accQ, accQ + 2), add2(accQ + 4, accQ + 4, accQ + 6)
        S.V(1, qa[0]); S.V(2, qa[1]); S.V(2, qb_[0]); S.V(3, qb_[1]); S.V(3, cvt(accQ, accQ, accQ + 1)); S.V(4, cvt(accQ + 4, accQ + 4, accQ + 5))
        S.D(5, lambda: lg.issue(f'    ds_write2_b32 {vr(V_QW)}, {vr(accQ)}, {vr(accQ+4)} offset0:0 offset1:128', 'qw'))
        g = max(pos6 + 1, 2)
        for k2 in range(4):
            S.D(g, kx[(0, k2)]); g += 1
        g = max(g, pos7 + 1, 6)
        kx1 = [kx[(1, k2)] for k2 in range(4)]
        while kx1 and g < nk:
            S.D(g, kx1.pop(0)); g += 1
        S.V(7, vmp)
        S.P(nk - 3, waits('qw'))
        S.V(nk - 3, mov64(accV)); S.V(nk - 2, mov64(accV + 2)); S.V(nk - 1, mov64(accV + 4)); S.V(nk - 1, mov64(accV + 6))
        S.V(3, tn('k3')); S.V(7, tn('k7'))
        S.emit()
        for th in kx1: th()
    else:
        S.emit()
        for r in range(0, 8, 2): a(mov64(accV + r))
    stamp(a, cfg, 2); T(a, cfg, 5); TN(a, cfg, 'Kend')
    kf = add2(accK, accK, accK + 2) + add2(accK + 4, accK + 4, accK + 6) + [cvt(accK, accK, accK + 1), cvt(accK + 4, accK + 4, accK + 5)]
    kw = lambda: lg.issue(f'    ds_write2_b32 {vr(V_QW)}, {vr(accK)}, {vr(accK+4)} offset0:64 offset1:192', 'kw')
    qb = [(lambda k2=k2, hh=hh: lg.issue(f'    ds_read_b64_tr_b16 {vr(R_Q + 4*k2 + 2*hh, 2)}, {vr(V_QR)} offset:{k2 * 1024 + hh * 128}', f'q{k2}'))
          for k2 in range(4) for hh in range(2)]
    kar = [(lambda k2=k2, hh=hh: lg.issue(f'    ds_read_b64_tr_b16 {vr(KA + 4*k2 + 2*hh, 2)}, {vr(V_QR)} offset:{256 + k2 * 1024 + hh * 128}', f'k{k2}'))
           for k2 in range(4) for hh in range(2)]
    vm = [Vs(ks, sel) for ks in range(8) for sel in range(2)]
    MX, T1, NEG, al = X, X + 1, X + 2, X + 4
    S = Sched(a)
    for x in vm: S.add(x)
    S.V(1, kf[0]); S.V(1, kf[1]); S.V(2, kf[2]); S.V(2, kf[3]); S.V(3, kf[4]); S.V(3, kf[5]); S.D(4, kw)
    gb = cfg.get('gb2', 8)
    if not last:
        for x in kmp: S.D(gb, x)
    S.D(gb, waits('kw')); S.D(gb, '    s_barrier'); S.D(gb, tn('B2'))
    if not last:
        for k, th in enumerate(qb): S.D(min(gb + k, 15), th)
    S.V(3, tn('v3')); S.V(7, tn('v7'))
    S.emit()
    if last:
        kmst = [f'    s_mov_b64 exec, s[{S_MASK_T}:{S_MASK_T+1}]',
                f'    buffer_store_dwordx4 {vr(KA + 4*w,4)}, {vr(V_OW)}, {WS}, s{S_KMO} offen offset:{w * 512} sc1',
                f'    s_mov_b64 exec, -1']
        for th in kar: th()
        a(pkadd(accV, accV, accV + 2)); a(pkadd(accV + 4, accV + 4, accV + 6))
        a(cvt(V_VB, accV, accV + 1)); a(cvt(V_VB + 2, accV + 4, accV + 5))
        a(f'    buffer_store_dwordx4 {vr(V_VB,4)}, {vr(V_LIN16)}, {WS}, s{S_VMO} offen offset:{w * 1024} sc1')
        lg.wait('k3')
        for x in kmst: a(x)
        return
    stamp(a, cfg, 3); T(a, cfg, 6); TN(a, cfg, 'Vend')
    a(f'    s_waitcnt vmcnt({nvm})')
    for th in kar[:4]: th()
    S = Sched(a)
    for tau in range(2):
        for k2 in range(4):
            i = S.add(mf32(Sx + 4 * tau, vr(R_S + tau * 16 + 4 * k2, 4), vr(R_Q + 4 * k2, 4), '0' if k2 == 0 else vr(Sx + 4 * tau, 4)))
            S.P(i, waits(f'q{k2}', f'kx{tau}{k2}'))
    for k, th in enumerate(kar[4:]): S.D(k, th)
    va, vb_ = add2(accV, accV, accV + 2), add2(accV + 4, accV + 4, accV + 6)
    S.V(1, va[0]); S.V(1, va[1]); S.V(2, vb_[0]); S.V(2, vb_[1])
    S.V(4, cvt(V_VB, accV, accV + 1)); S.V(4, cvt(V_VB + 2, accV + 4, accV + 5))
    S.V(3, mov64(ON, f's[{S_ONE2}:{S_ONE2+1}]')); S.V(3, mov64(ON + 2, f's[{S_ONE2}:{S_ONE2+1}]'))
    S.V(6, f'    v_max3_f32 {vr(MX)}, {vr(Sx)}, {vr(Sx+1)}, {vr(Sx+2)}')
    S.V(7, f'    v_max_f32 {vr(MX)}, {vr(MX)}, {vr(Sx+3)}')
    b = len(S.mf)
    for k2 in range(4):
        i = S.add(mf32(Sm, vr(KA + 4 * k2, 4), vr(R_Q + 4 * k2, 4), '0' if k2 == 0 else vr(Sm, 4)))
        S.P(i, waits(f'k{k2}'))
    stg = []
    for tau in range(4): stg += stage(lg, R_S + tau * 8, 8 + tau, f'wo{tau}')
    S.D(4, stg[0]); S.D(5, stg[1]); S.D(6, stg[2]); S.D(7, stg[3])
    S.D(b, stg[4]); S.D(b + 1, stg[5]); S.D(b + 2, stg[6]); S.D(b + 3, stg[7])
    S.V(b + 1, f'    v_max3_f32 {vr(T1)}, {vr(Sx+4)}, {vr(Sx+5)}, {vr(Sx+6)}')
    S.V(b + 2, f'    v_max3_f32 {vr(MX)}, {vr(MX)}, {vr(Sx+7)}, {vr(T1)}')
    S.V(0, tn('sx0')); S.V(3, tn('sx3')); S.V(7, tn('sx7')); S.V(b, tn('smm0')); S.V(b + 3, tn('smm3'))
    S.emit()
    stamp(a, cfg, 4); T(a, cfg, 8)
    stg2 = []
    for tau in range(4, 6): stg2 += stage(lg, R_M + (tau - 4) * 8, 8 + tau, f'wo{tau}')
    seq = [mov64(R_Q), mov64(R_Q + 2), stg2[0], mov64(R_Q + 4), mov64(R_Q + 6), stg2[1],
           f'    v_max3_f32 {vr(MX)}, {vr(MX)}, {vr(Sm)}, {vr(Sm+1)}',
           f'    v_max3_f32 {vr(MX)}, {vr(MX)}, {vr(Sm+2)}, {vr(Sm+3)}',
           f'    v_cndmask_b32 {vr(Sm)}, {vr(Sm)}, {vr(Sm+2)}, s[{S_MASK_ODD}:{S_MASK_ODD+1}]',
           f'    v_mov_b32 {vr(T1)}, {vr(MX)}',
           f'    v_cndmask_b32 {vr(Sm+1)}, {vr(Sm+1)}, {vr(Sm+3)}, s[{S_MASK_ODD}:{S_MASK_ODD+1}]',
           stg2[2],
           f'    v_permlane16_swap_b32 {vr(MX)}, {vr(T1)}',
           f'    v_max_f32 {vr(MX)}, {vr(MX)}, {vr(T1)}',
           f'    v_mov_b32 {vr(T1)}, {vr(MX)}',
           stg2[3], f'    v_mov_b32 {vr(PM16+1)}, 0',
           f'    v_permlane32_swap_b32 {vr(MX)}, {vr(T1)}',
           f'    v_max_f32 {vr(MX)}, {vr(MX)}, {vr(T1)}',
           f'    v_mul_f32 {vr(NEG)}, s{S_C}, {vr(MX)}']
    for r in [Sx, Sx + 2, Sx + 4, Sx + 6, Sm]:
        seq.append(f'    v_pk_fma_f32 {vr(r,2)}, {vr(r,2)}, s[{S_CC}:{S_CC+1}], {vr(NEG,2)} op_sel_hi:[1,1,0] neg_lo:[0,0,1] neg_hi:[0,0,1]')
    for r in list(range(Sx, Sx + 8)) + [Sm, Sm + 1]:
        seq.append(f'    v_exp_f32 {vr(r)}, {vr(r)}')
    for r in range(4):
        seq.append(cvt(Pq + r, Sx + 2 * r, Sx + 2 * r + 1))
    seq.append(cvt(PM16, Sm, Sm + 1))
    for x in seq: x() if callable(x) else a(x)
    TN(a, cfg, 'pvx')
    S = Sched(a)
    S.add(mf32(Ox, vr(V_VX, 4), vr(Pq, 4), '0'))
    S.add(mf32(Ox + 4, vr(V_VX + 4, 4), vr(Pq, 4), '0'))
    S.add(mf32(Lx, vr(ON, 4), vr(Pq, 4), '0'))
    S.add(f'    v_mfma_f32_16x16x16_bf16 {vr(Lx, 4)}, {vr(V_ON16, 2)}, {vr(PM16, 2)}, {vr(Lx, 4)}')
    for phi in range(2):
        S.add(f'    v_mfma_f32_16x16x16_bf16 {vr(Ox + 4*phi, 4)}, {vr(V_VB + 2*phi, 2)}, {vr(PM16, 2)}, {vr(Ox + 4*phi, 4)}')
    S.V(0, mov64(R_Q + 8)); S.V(0, mov64(R_Q + 10))
    S.V(4, mov64(R_Q + 12)); S.V(4, mov64(R_Q + 14))
    S.V(1, mov64(Sx)); S.V(1, mov64(Sx + 2)); S.V(2, mov64(Sx + 4)); S.V(2, mov64(Sx + 6))
    S.V(2, f'    buffer_load_dwordx4 {vr(V_VX,4)}, {vr(V_VLD)}, {WS}, s{S_VSRC} offen')
    S.V(3, f'    buffer_load_dwordx4 {vr(V_VX+4,4)}, {vr(V_VLD)}, {WS}, s{S_VSRC} offen offset:256')
    S.emit()
    TN(a, cfg, 'pvm')
    a(f'    v_rcp_f32 {vr(al)}, {vr(Lx)}')
    TN(a, cfg, 'rcp')
    dump(a, cfg, w, 2, Ox, 8)
    O4 = Pq
    if cfg.get('pkm'):
        for r in range(4):
            a(f'    v_pk_mul_f32 {vr(Ox+2*r,2)}, {vr(Ox+2*r,2)}, {vr(al,2)} op_sel_hi:[1,0]')
        for r in range(4): a(cvt(O4 + r, Ox + 2 * r, Ox + 2 * r + 1))
    else:
        for r in range(4):
            a(f'    v_mul_f32 {vr(Ox+2*r)}, {vr(Ox+2*r)}, {vr(al)}')
            a(f'    v_mul_f32 {vr(Ox+2*r+1)}, {vr(Ox+2*r+1)}, {vr(al)}')
            a(cvt(O4 + r, Ox + 2 * r, Ox + 2 * r + 1))
    a(f'    s_mov_b64 exec, s[{S_MASK_T}:{S_MASK_T+1}]')
    lg.issue(f'    ds_write_b128 {vr(V_OW)}, {vr(O4,4)} offset:{LDS_OX + w * 512}', 'ow')
    a('    s_mov_b64 exec, -1')
    stg6 = stage(lg, R_M + 16, 8 + 6, 'wo6')
    stg6[0](); stg6[1]()
    if not cfg.get('rstE'):
        a(mov64(X + 2, '-1')); a(mov64(X + 4, '-1'))
        a(f'    buffer_store_dwordx4 {vr(X+2,4)}, {vr(V_LIN16)}, {WS}, s{S_PR0} offen {ST}')
    T(a, cfg, 9); TN(a, cfg, 'ow')
    lg.wait('ow')
    a('    s_barrier')
    T(a, cfg, 10); TN(a, cfg, 'B3')
    OA = R_M + 24
    for kap in range(2):
        lg.issue(f'    ds_read_b128 {vr(OA + 4*kap, 4)}, {vr(V_OR)} offset:{kap * 1024}', f'oa{kap}')
    if not cfg.get('rstE'):
        a(f'    buffer_store_dwordx4 {vr(X+2,4)}, {vr(V_LIN16)}, {WS}, s{S_PR0} offen offset:1024 {ST}')
    stamp(a, cfg, 5)
    dump(a, cfg, w, 4, OA, 8)
    accO = [R_Q + 4 * i for i in range(4)] + [R_K + 4 * i for i in range(4)]
    def src1(tau): return R_S + tau * 8 if tau < 4 else (R_M + (tau - 4) * 8 if tau < 7 else R_S)
    last7 = stage(lg, R_S, 8 + 7, 'wo7')
    S = Sched(a)
    order = [(0,0),(1,0),(2,0),(3,0),(0,1),(1,1),(2,1),(3,1),(4,0),(5,0),(6,0),(7,0),(4,1),(5,1),(6,1),(7,1)]
    idx = {}
    for tau, kap in order:
        if kap == 0:
            i = S.add(smf(accO[tau], OA, wo0(tau))); S.P(i, waits('oa0'))
        else:
            i = S.add(smf(accO[tau], OA + 4, vr(src1(tau), 8))); S.P(i, waits('oa1', f'wo{tau}'))
        idx[(tau, kap)] = i
    S.D(idx[(0, 1)] + 1, last7[0]); S.D(idx[(0, 1)] + 2, last7[1])
    for k in range(4): S.V(k, mov64(R_K + 2 * k))
    def fold(tau): return pkadd(accO[tau], accO[tau], accO[tau] + 2)
    def pack(q, t):
        T0_ = accO[4 * q]
        return cvt(T0_ + t, accO[4 * q + t], accO[4 * q + t] + 1)
    def pstore(q): return f'    buffer_store_dwordx4 {vr(accO[4*q],4)}, {vr(V_PLD)}, {WS}, s{S_PST if q == 0 else S_PL1} offen {ST}'
    f2 = lambda tau: add2(accO[tau], accO[tau], accO[tau] + 2)
    for x in f2(0): S.V(7, x)
    for x in f2(1): S.V(8, x)
    S.V(9, pack(0, 0)); S.V(9, f2(2)[0]); S.V(10, f2(2)[1]); S.V(10, pack(0, 1)); S.V(11, f2(3)[0]); S.V(11, f2(3)[1])
    S.V(12, pack(0, 2)); S.V(12, pack(0, 3)); S.V(13, pstore(0))
    S.V(15, f2(4)[0]); S.V(15, f2(4)[1])
    S.V(0, tn('wo0')); S.V(7, tn('wo7')); S.V(15, tn('wo15'))
    S.emit()
    for x in [pack(1, 0)] + f2(5) + [pack(1, 1)] + f2(6) + [pack(1, 2)] + f2(7) + [pack(1, 3), pstore(1)]: a(x)
    stamp(a, cfg, 6); T(a, cfg, 11); TN(a, cfg, 'Woend')
    PA, D, SEL = R_Q, R_Q + 8, R_Q + 12
    lg2 = LG(a)
    a(f'    v_mov_b32 {vr(X)}, 0x3f80')
    a(f'    v_mov_b32 {vr(X+1)}, 0x3f800000')
    a(f'    v_cndmask_b32 {vr(X)}, {vr(X)}, {vr(X+1)}, s[{S_MASK_ODDL}:{S_MASK_ODDL+1}]')
    for u in range(4):
        a(f'    v_cndmask_b32 {vr(SEL+u)}, 0, {vr(X)}, s[{S_SEL+2*u}:{S_SEL+2*u+1}]')
    for f in range(4):
        for th in stage(lg2, R_S + f * 8, f): th()
    for r in range(0, 16, 2): a(mov64(R_K + r))
    a(mov64(X + 2, '-1')); a(mov64(X + 4, '-1'))
    a(f'    s_mov_b32 s{S_CNT}, 0')
    delay(a, cfg.get('d1', 0))
    a(hop1_loads())
    T(a, cfg, 12)
    np1 = cfg.get('np1', 1)
    for i in range(np1 - 1):
        delay(a, cfg.get('g1', 0))
        a(hop1_loads())
    if cfg.get('fused'):
        a(f"""
    s_and_b32 s{S_T0}, s{S_STEP}, 7
    s_cmp_eq_u32 s{S_T0}, 6
    s_cbranch_scc0 L_nkv_{tag}
    s_add_u32 s{S_T0}, s{S_STEP}, 2
    s_lshr_b32 s{S_T0}, s{S_T0}, 3
    s_lshl_b32 s{S_T0}, s{S_T0}, 7
    s_add_u32 s{S_T0}, s{S_T0}, {FL_G1}
    v_mov_b32 {vr(X)}, s{S_T0}
    buffer_load_dword {vr(X+1)}, {vr(X)}, {WS}, 0 offen sc1
    s_waitcnt vmcnt(0)
L_nkv_{tag}:
""")
    a(f'L_p1w_{tag}:')
    a(f'    s_waitcnt vmcnt({2 * (np1 - 1)})')
    a(mf32(D, vr(SEL, 4), vr(PA, 4), '0'))
    a(mf32(D, vr(SEL, 4), vr(PA + 4, 4), vr(D, 4)))
    a(f'    v_cmp_u_f32 vcc, {vr(D)}, {vr(D)}')
    a(f'    s_cbranch_vccnz L_p1r_{tag}')
    a(f'L_p1d_{tag}:')
    ool.append(lambda: retry_block(a, f'L_p1r_{tag}', f'L_p1w_{tag}', f'L_p1d_{tag}', hop1_loads()))
    stamp(a, cfg, 7); T(a, cfg, 13)
    for r in range(4):
        a(f'    v_add_f32_dpp {vr(D+r)}, {vr(D+r)}, {vr(D+r)} row_ror:8 row_mask:0xf bank_mask:0xf')
    for r in range(4):
        a(f'    v_add_f32_dpp {vr(D+r)}, {vr(D+r)}, {vr(D+r)} row_ror:4 row_mask:0xf bank_mask:0xf')
    a(f"""
    v_cvt_pk_bf16_f32 {vr(D)}, {vr(D)}, {vr(D+2)}
    v_cvt_pk_bf16_f32 {vr(D+1)}, {vr(D+1)}, {vr(D+3)}
    s_mov_b64 exec, s[{S_MASK_M}:{S_MASK_M+1}]
    v_cndmask_b32 {vr(D)}, {vr(D)}, {vr(D+1)}, s[{S_MASK_PB}:{S_MASK_PB+1}]
    v_min_u32 {vr(D)}, -2, {vr(D)}
    buffer_store_dword {vr(D)}, {vr(V_MST)}, {WS}, s{S_MNXT} offen {ST}
""")
    if cfg.get('dbgm'):
        a(f"""
    s_add_u32 s{S_DBGM}, s{S_DBGM}, 8192
    buffer_store_dword {vr(D)}, {vr(V_MST)}, {WS}, s{S_DBGM} offen
""")
    a(f"""
    buffer_store_dword {vr(X+2)}, {vr(V_MST)}, {WS}, s{S_MCUR} offen {ST}
    s_mov_b64 exec, -1
""")
    stamp(a, cfg, 8); T(a, cfg, 14)
    a(f"""
    s_add_u32 s{S_MPOLL}, s{S_MNXT}, {w * 2048}
    s_mov_b32 s{S_CNT}, 0
    s_add_u32 s{S_STEP}, s{S_STEP}, 1
""")
    if cfg.get('fused'):
        a(f"""
    s_and_b32 s{S_T0}, s{S_STEP}, 7
    s_cmp_eq_u32 s{S_T0}, 7
    s_cbranch_scc0 L_ckv_{tag}
    s_cmp_ge_u32 s{S_STEP}, 57
    s_cbranch_scc1 L_ckv_{tag}
L_ckvl_{tag}:
    v_readfirstlane_b32 s{S_T0}, {vr(X+1)}
    s_and_b32 s{S_T0}, s{S_T0}, 0xff
    s_cmp_eq_u32 s{S_T0}, 64
    s_cbranch_scc1 L_ckv_{tag}
    s_add_u32 s{S_CNT}, s{S_CNT}, 1
    s_cmp_lt_u32 s{S_CNT}, 400000
    s_cbranch_scc0 L_ckv_{tag}
    s_sleep 2
    buffer_load_dword {vr(X+1)}, {vr(X)}, {WS}, 0 offen sc1
    s_waitcnt vmcnt(0)
    s_branch L_ckvl_{tag}
L_ckv_{tag}:
    s_mov_b32 s{S_CNT}, 0
""")
    delay(a, cfg.get('d2', 0))
    a(hop2_loads(w))
    a(f"""
    s_mov_b32 s{S_T0}, s{S_MCUR}
    s_mov_b32 s{S_MCUR}, s{S_MNXT}
    s_mov_b32 s{S_MNXT}, s{S_MOTH}
    s_mov_b32 s{S_MOTH}, s{S_T0}
    s_xor_b32 s{S_PST}, s{S_PST}, 0x40000
    s_mov_b32 s{S_PR0}, s{S_PL0}
    s_xor_b32 s{S_PL0}, s{S_PL0}, 0x40000
    s_xor_b32 s{S_PL1}, s{S_PL1}, 0x40000
    s_add_u32 s{S_KSRC}, s{S_KSRC}, 0x40000
    s_xor_b32 s{S_KDST}, s{S_KDST}, 8192
    s_add_u32 s{S_VSRC}, s{S_VSRC}, 0x40000
    s_mov_b32 s{S_KMP}, s{S_KMO}
    s_mov_b32 s{S_VMP}, s{S_VMO}
    s_add_u32 s{S_KMO}, s{S_KMO}, 65536
    s_add_u32 s{S_VMO}, s{S_VMO}, 131072
    v_xor_b32 {vr(V_K0)}, 0x2000, {vr(V_K0)}
    v_xor_b32 {vr(V_K1)}, 0x2000, {vr(V_K1)}
""")
    if cfg.get('clk') and w == 0:
        a(f"""
    s_and_b32 s{S_T0}, s{S_STEP}, 7
    s_cmp_eq_u32 s{S_T0}, 0
    s_cbranch_scc0 L_clk_{tag}
    s_cmp_eq_u32 s{S_H}, 0
    s_cbranch_scc0 L_clk_{tag}
    s_memtime s[64:65]
    s_memrealtime s[66:67]
    s_waitcnt lgkmcnt(0)
    s_lshl_b32 s{S_T0}, s{S_STEP}, 1
    s_add_u32 s{S_T0}, s{S_T0}, 0x30000
    s_mov_b64 exec, 1
    v_mov_b32 {vr(X)}, s64
    v_mov_b32 {vr(X+1)}, 0
    buffer_store_dword {vr(X)}, {vr(X+1)}, {WS}, s{S_T0} offen
    v_mov_b32 {vr(X)}, s66
    buffer_store_dword {vr(X)}, {vr(X+1)}, {WS}, s{S_T0} offen offset:4
    s_mov_b64 exec, -1
L_clk_{tag}:
""")
    T(a, cfg, 15)
    stamp_accum(a, cfg)
    trace_dump(a, cfg, w)
    for i in range(np2 - 1):
        delay(a, cfg.get('g2', 0))
        a(hop2_loads(w))
    if cfg.get('rstend'):
        delay(a, cfg.get('d3', 0))
        a(f'    buffer_store_dwordx4 {vr(X+2,4)}, {vr(V_LIN16)}, {WS}, s{S_PR0} offen {ST}')
        a(f'    buffer_store_dwordx4 {vr(X+2,4)}, {vr(V_LIN16)}, {WS}, s{S_PR0} offen offset:1024 {ST}')
    else:
        a(mov64(R_Q + 8, '-1')); a(mov64(R_Q + 10, '-1'))

def emit_wave(a, cfg, w):
    ool = []
    emit_setup(a, cfg, w)
    def hook():
        if cfg.get('fused'):
            a(f"""
    s_cmp_lg_u32 s{S_H}, 0
    s_cbranch_scc1 L_nofi_{w}
    v_mov_b64 {vr(R_S,2)}, 0
    v_mov_b64 {vr(R_S+2,2)}, 0
    s_mov_b32 s{S_T0}, {WS_FL + w * 4096}
""")
            for i in range(4):
                a(f'    buffer_store_dwordx4 {vr(R_S,4)}, {vr(V_LIN16)}, {WS}, s{S_T0} offen offset:{i * 1024} sc1')
            a(f"""
L_nofi_{w}:
""")
        emit_init(a, cfg, w)
        a('    s_barrier')
        if w == 0:
            if cfg.get('fused'):
                a(f"""
    s_cmp_lg_u32 s{S_H}, 0
    s_cbranch_scc1 L_nofj
    s_mov_b64 exec, 1
    v_mov_b32 {vr(R_S)}, {DB_INIT}
    v_mov_b32 {vr(R_S+1)}, 1
    global_store_dword {vr(R_S)}, {vr(R_S+1)}, s[{S_DBG}:{S_DBG+1}] sc1
    s_mov_b64 exec, -1
L_nofj:
""")
            a(f"""
    s_mov_b64 exec, 1
    v_mov_b32 {vr(R_S)}, {DB_CBAR}
    v_mov_b32 {vr(R_S+1)}, s{S_ARR}
    global_atomic_add {vr(R_S)}, {vr(R_S+1)}, s[{S_DBG}:{S_DBG+1}] sc1
    s_mov_b64 exec, -1
    s_waitcnt vmcnt(0)
""")
    def hookB():
        a(f"""
    v_mov_b32 {vr(V_VX+3)}, {DB_INIT}
    global_load_dword {vr(V_VX)}, {vr(V_VX+3)}, s[{S_DBG}:{S_DBG+1}] sc1
    v_mov_b32 {vr(V_VX+4)}, {DB_CBAR}
    global_load_dword {vr(V_VX+1)}, {vr(V_VX+4)}, s[{S_DBG}:{S_DBG+1}] sc1
""")
    def hookA():
        a(f"""
    v_mov_b32 {vr(V_VX+5)}, {FL_G1}
    buffer_load_dword {vr(V_VX+2)}, {vr(V_VX+5)}, {WS}, 0 offen sc1
""")
    def hook2():
        a(f"""
    v_readfirstlane_b32 s{S_T0}, {vr(V_VX+1)}
    s_lshr_b32 s{S_MODE}, s{S_T0}, 16
    s_and_b32 s{S_T0}, s{S_T0}, 0xffff
    s_cmp_ge_u32 s{S_T0}, 32
    s_cbranch_scc1 L_cbd{w}
    v_mov_b32 {vr(R_X)}, {DB_CBAR}
    s_mov_b32 s{S_CNT}, 0
L_cb{w}:
    global_load_dword {vr(R_X+1)}, {vr(R_X)}, s[{S_DBG}:{S_DBG+1}] sc1
    s_waitcnt vmcnt(0)
    v_readfirstlane_b32 s{S_T0}, {vr(R_X+1)}
    s_lshr_b32 s{S_MODE}, s{S_T0}, 16
    s_and_b32 s{S_T0}, s{S_T0}, 0xffff
    s_cmp_ge_u32 s{S_T0}, 32
    s_cbranch_scc1 L_cbd{w}
    s_add_u32 s{S_CNT}, s{S_CNT}, 1
    s_cmp_lt_u32 s{S_CNT}, s{S_ERR}
    s_cbranch_scc1 L_cb{w}
    s_mov_b32 s{S_ERR}, 0
L_cbd{w}:
""")
        if cfg.get('fused'):
            a(f"""
    v_readfirstlane_b32 s{S_T0}, {vr(V_VX)}
    v_readfirstlane_b32 s{S_T1}, {vr(V_VX+2)}
    s_and_b32 s{S_T1}, s{S_T1}, 0xff
    s_cmp_eq_u32 s{S_T1}, 64
    s_cselect_b32 s{S_T1}, s{S_T0}, 0
    s_cmp_lg_u32 s{S_T1}, 0
    s_cbranch_scc1 L_kv0d_{w}
    v_mov_b32 {vr(R_X)}, {DB_INIT}
    s_mov_b32 s{S_CNT}, 0
L_ini_{w}:
    global_load_dword {vr(R_X+1)}, {vr(R_X)}, s[{S_DBG}:{S_DBG+1}] sc1
    s_waitcnt vmcnt(0)
    v_readfirstlane_b32 s{S_T0}, {vr(R_X+1)}
    s_cmp_lg_u32 s{S_T0}, 0
    s_cbranch_scc1 L_inid_{w}
    s_add_u32 s{S_CNT}, s{S_CNT}, 1
    s_cmp_lt_u32 s{S_CNT}, 100000
    s_cbranch_scc1 L_ini_{w}
L_inid_{w}:
    v_mov_b32 {vr(R_X)}, {FL_G1}
    s_mov_b32 s{S_CNT}, 0
L_kv0_{w}:
    buffer_load_dword {vr(R_X+1)}, {vr(R_X)}, {WS}, 0 offen sc1
    s_waitcnt vmcnt(0)
    v_readfirstlane_b32 s{S_T0}, {vr(R_X+1)}
    s_and_b32 s{S_T0}, s{S_T0}, 0xff
    s_cmp_eq_u32 s{S_T0}, 64
    s_cbranch_scc1 L_kv0d_{w}
    s_sleep 2
    s_add_u32 s{S_CNT}, s{S_CNT}, 1
    s_cmp_lt_u32 s{S_CNT}, 400000
    s_cbranch_scc1 L_kv0_{w}
L_kv0d_{w}:
""")
        a(f"""
    s_lshl_b32 s{S_T0}, s{S_H}, 13
    s_add_u32 s{S_T0}, s{S_T0}, {w * 2048}
    s_add_u32 s{S_KSRC}, s{S_T0}, {WS_K}
    s_mov_b32 s{S_KDST}, {LDS_KB + w * 2048}
    s_mov_b32 m0, s{S_KDST}
    s_add_u32 s{S_VSRC}, s{S_T0}, {WS_V}
    buffer_load_dwordx4 {vr(V_LIN16)}, {WS}, s{S_KSRC} offen lds
    buffer_load_dwordx4 {vr(V_LIN16)}, {WS}, s{S_KSRC} offen offset:1024 lds
    buffer_load_dwordx4 {vr(V_VX,4)}, {vr(V_VLD)}, {WS}, s{S_VSRC} offen
    buffer_load_dwordx4 {vr(V_VX+4,4)}, {vr(V_VLD)}, {WS}, s{S_VSRC} offen offset:256
    s_add_u32 s{S_KSRC}, s{S_KSRC}, 0x40000
    s_xor_b32 s{S_KDST}, s{S_KDST}, 8192
    s_add_u32 s{S_VSRC}, s{S_VSRC}, 0x40000
    s_mov_b32 s{S_STEP}, 0
    s_mov_b32 s{S_MCUR}, {WS_M}
    s_mov_b32 s{S_MNXT}, {WS_M + 8192}
    s_mov_b32 s{S_MOTH}, {WS_M + 16384}
    s_lshl_b32 s{S_T0}, s{S_H}, 6
    s_add_u32 s{S_PST}, s{S_T0}, {WS_P + (2 * w) * 32768}
    s_add_u32 s{S_PL1}, s{S_PST}, 32768
    s_lshl_b32 s{S_T0}, s{S_H}, 13
    s_add_u32 s{S_PL0}, s{S_T0}, {WS_P + w * 2048}
    s_add_u32 s{S_PR0}, s{S_PL0}, 262144
    s_lshl_b32 s{S_T0}, s{S_H}, 11
    s_add_u32 s{S_KMO}, s{S_T0}, {WS_KM}
    s_lshl_b32 s{S_T0}, s{S_H}, 12
    s_add_u32 s{S_VMO}, s{S_T0}, {WS_VM}
    s_mov_b32 s{S_DBGM}, {WS_DBGM}
    s_mov_b32 s{S_KMP}, 0x0F000000
    s_mov_b32 s{S_VMP}, 0x0F000000
    s_mov_b32 s96, {f2u(SOFT_C):#x}
    s_mov_b32 s97, {f2u(SOFT_C):#x}
    s_mov_b32 s98, 0x3f803f80
    s_mov_b32 s99, 0x3f803f80
    s_mov_b32 s{S_MASK_ODDL}, 0xaaaaaaaa
    s_mov_b32 s{S_MASK_ODDL+1}, 0xaaaaaaaa
""")

    if cfg.get('timing'): a('    s_memrealtime s[78:79]')
    emit_weight_prologue(a, cfg, w, hook, hook2, hookA, hookB)
    if cfg.get('timing'): a('    s_memrealtime s[80:81]')
    for k in range(10):
        a(f'    s_mov_b32 s{STAMP_ACC+k}, 0')
    a('    s_waitcnt vmcnt(0)')
    a('    s_barrier')
    lg = LG(a)
    idle_prep(a, lg)
    a(mov64(R_X + 2, '-1')); a(mov64(R_X + 4, '-1')); a(mov64(R_Q + 8, '-1')); a(mov64(R_Q + 10, '-1'))
    a(f"""
    s_add_u32 s{S_MPOLL}, s{S_MCUR}, {w * 2048}
    s_mov_b32 s{S_CNT}, 0
""")
    a(hop2_loads(w))
    a(f"""
    s_memtime s[{S_TM0}:{S_TM0+1}]
    s_memrealtime s[74:75]
    s_waitcnt vmcnt(0) lgkmcnt(0)
    s_mov_b32 s94, s{S_TM0}
""")
    modes = [('', cfg)]
    if cfg.get('fallback'):
        slow = dict(cfg); slow['st'] = 'sc1'; slow['sfx'] = 's'; slow.pop('trace', None); slow.pop('stamp', None); slow.pop('clk', None)
        modes.append(('s', slow))
        a(f'    s_cmp_lg_u32 s{S_MODE}, 0\n    s_cbranch_scc1 L_step{w}s')
    for sfx, c in modes:
        a(f'L_step{w}{sfx}:')
        emit_step(a, c, w, False, ool)
        a(f"""
    s_cmp_lt_u32 s{S_STEP}, {cfg.get('nsteps', 63)}
    s_cbranch_scc1 L_step{w}{sfx}
""")
        emit_step(a, c, w, True, ool)
        if sfx == '' and len(modes) > 1: a(f'    s_branch L_cfin{w}')
    a(f'L_cfin{w}:')
    a(f"""
    s_waitcnt vmcnt(0)
    s_barrier
    s_memtime s[{S_TM1}:{S_TM1+1}]
    s_memrealtime s[76:77]
    s_waitcnt lgkmcnt(0)
""")
    if cfg.get('progress') and w == 0:
        a(f"""
    s_mov_b64 exec, 1
    v_mov_b32 {vr(R_X)}, 64
    s_lshl_b32 s{S_T0}, s{S_H}, 7
    s_add_u32 s{S_T0}, s{S_T0}, {FL_P}
    v_mov_b32 {vr(R_X+1)}, 0
    buffer_store_dword {vr(R_X)}, {vr(R_X+1)}, {WS}, s{S_T0} offen sc1
    s_mov_b64 exec, -1
""")
    if cfg.get('timing'):
        a(f"""
    s_sub_u32 s{S_TM1}, s{S_TM1}, s{S_TM0}
    s_lshl_b32 s{S_T0}, s{S_H}, 2
    s_add_u32 s{S_T0}, s{S_T0}, {w}
    s_lshl_b32 s{S_T0}, s{S_T0}, 7
    s_add_u32 s{S_T0}, s{S_T0}, 0x1000
    s_mov_b64 exec, 1
    v_mov_b32 {vr(R_X)}, 0
    v_mov_b32 {vr(R_X+1)}, s{S_TM1}
    buffer_store_dword {vr(R_X+1)}, {vr(R_X)}, {WS}, s{S_T0} offen
    v_mov_b32 {vr(R_X+1)}, s{S_ERR}
    buffer_store_dword {vr(R_X+1)}, {vr(R_X)}, {WS}, s{S_T0} offen offset:4
""")
        for k in range(15):
            a(f'    v_mov_b32 {vr(R_X+1)}, s{(STAMP_ACC+k) if k < 10 else {10: 74, 11: 76, 12: 73, 13: 78, 14: 80}[k]}')
            a(f'    buffer_store_dword {vr(R_X+1)}, {vr(R_X)}, {WS}, s{S_T0} offen offset:{8+4*k}')
        a('    s_mov_b64 exec, -1')
    a('    s_branch L_chain_end')
    for f in ool: f()

class Filt:
    def __init__(self, a, cfg): self.a = a; self.cfg = cfg; self.lines = a.lines
    def __call__(self, text):
        out = []
        for ln in text.split('\n'):
            if self.cfg.get('nopub') and ('sc1' in ln and 'store_dwordx4' in ln): continue
            if self.cfg.get('nokv') and (' lds' in ln and f's{S_KSRC}' in ln): continue
            if self.cfg.get('nokv') and (f's{S_VSRC} offen' in ln): continue
            if self.cfg.get('noreset') and (f's{S_PR0} offen' in ln or f's{S_PR1} offen' in ln):
                continue
            out.append(ln)
        self.a('\n'.join(out))
    def label(self, n): self.a.label(n)

def emit_chain(a, cfg):
    a = Filt(a, cfg)
    a(f"""
    s_load_dwordx2 s[{S_WSP}:{S_WSP+1}], s[0:1], {KA_WS}
    s_load_dwordx2 s[{S_DBG}:{S_DBG+1}], s[0:1], {KA_DBG}
    s_load_dwordx2 s[{SRD_Q}:{SRD_Q+1}], s[0:1], {KA_WQ}
    s_load_dwordx2 s[{SRD_K}:{SRD_K+1}], s[0:1], {KA_WK}
    s_load_dwordx2 s[{SRD_V}:{SRD_V+1}], s[0:1], {KA_WV}
    s_load_dwordx2 s[{SRD_O}:{SRD_O+1}], s[0:1], {KA_WO}
    s_load_dwordx2 s[{SRD_A}:{SRD_A+1}], s[0:1], {KA_MEM0}
    s_waitcnt lgkmcnt(0)
    s_mov_b32 s{SRD_WS}, s{S_WSP}
    s_mov_b32 s{SRD_WS+1}, s{S_WSP+1}
    s_mov_b32 s{SRD_WS+2}, {WS_SIZE}
    s_mov_b32 s{SRD_WS+3}, 0x20000
    s_mov_b32 s{SRD_A+2}, 8192
    s_mov_b32 s{SRD_A+3}, 0x20000
""")
    for S in (SRD_Q, SRD_K, SRD_V, SRD_O):
        a(f'    s_mov_b32 s{S+2}, 0x400000\n    s_mov_b32 s{S+3}, 0x20000')
    a(f'    s_mov_b32 s{S_ERR}, {cfg.get("maxpoll", 20000)}')
    for w in range(1, 4):
        a(f'    s_cmp_eq_u32 s{S_W}, {w}\n    s_cbranch_scc1 L_wave{w}')
    for w in range(4):
        a(f'L_wave{w}:')
        emit_wave(a, cfg, w)
    a('L_chain_end:')
```

```python
from asmlib import *
from layout import *
import struct
def f2u(x): return struct.unpack('<I', struct.pack('<f', x))[0]

S_W = 4
SRD_WS, SRD_X = 8, 12
S_TB, S_CU, S_NU = 5, 6, 7
SRD_TA, SRD_TB = 16, 20
SRD_WQ, SRD_WK, SRD_WV, SRD_W1, SRD_W3 = 24, 28, 32, 36, 40
S_COL, S_STR8 = 44, 45
S_T0, S_T1, S_T2 = 46, 47, 48
S_TYPE, S_OUT = 49, 50
S_NTYPE, S_NOUT = 51, 52
S_ROW = 53
S_NLOG = 54
S_ISF = 56
S_ONE = 58
S_O0, S_O1, S_FIRST = 64, 65, 66
V_LIN16, V_DQ, V_DF, V_DCUR, V_T0, V_T1, V_STK, V_XA, V_L, V_TMP = 0, 1, 2, 3, 4, 5, 6, 7, 8, 9
V_T2, V_T3, V_JUNK = 12, 13, 14
V_WF = 64
V_E = 16
V_ACC = 128
LDS_RING = 0
WS = f's[{SRD_WS}:{SRD_WS+3}]'
NSLOT = 8
PD = 6

def acc(ct, tt): return V_ACC + (ct * 2 + tt) * 16
def xf(tt, ks): return ar((tt * 32 + ks) * 4, 4)

def emit_gate(a, wg_sgpr):
    t = V_E
    a(f'''
    s_lshl_b32 s{S_T0}, s{wg_sgpr}, 3
    s_lshl_b32 s{S_T1}, s{S_W}, 1
    s_add_u32 s{S_T0}, s{S_T0}, s{S_T1}           ; token0
    s_lshl_b32 s{S_T1}, s{S_T0}, 10
    buffer_load_dwordx4 {vr(t,4)}, {vr(V_LIN16)}, s[60:63], 0 offen
    buffer_load_dwordx4 {vr(t+4,4)}, {vr(V_LIN16)}, s[{SRD_X}:{SRD_X+3}], s{S_T1} offen
    buffer_load_dwordx4 {vr(t+8,4)}, {vr(V_LIN16)}, s[{SRD_X}:{SRD_X+3}], s{S_T1} offen offset:1024
    s_waitcnt vmcnt(0)
''')
    G = t + 12
    for i in range(4):
        a(f'    v_lshlrev_b32 {vr(G+2*i)}, 16, {vr(t+i)}')
        a(f'    v_and_b32 {vr(G+2*i+1)}, 0xffff0000, {vr(t+i)}')
    for tk in range(2):
        x = t + 4 + 4 * tk
        A = t + 20 + tk
        u = t + 24
        for i in range(4):
            a(f'    v_lshlrev_b32 {vr(u)}, 16, {vr(x+i)}')
            a(f'    v_and_b32 {vr(u+1)}, 0xffff0000, {vr(x+i)}')
            if i == 0:
                a(f'    v_mul_f32 {vr(A)}, {vr(u)}, {vr(G)}')
            else:
                a(f'    v_fmac_f32 {vr(A)}, {vr(u)}, {vr(G+2*i)}')
            a(f'    v_fmac_f32 {vr(A)}, {vr(u+1)}, {vr(G+2*i+1)}')
        for sh in (1, 2, 4, 8):
            a(f'    v_add_f32_dpp {vr(A)}, {vr(A)}, {vr(A)} row_ror:{sh} row_mask:0xf bank_mask:0xf')
        a(f'    v_mov_b32 {vr(u)}, {vr(A)}')
        a(f'    v_permlane16_swap_b32 {vr(A)}, {vr(u)}')
        a(f'    v_add_f32 {vr(A)}, {vr(A)}, {vr(u)}')
        a(f'    v_mov_b32 {vr(u)}, {vr(A)}')
        a(f'    v_permlane32_swap_b32 {vr(A)}, {vr(u)}')
        a(f'    v_add_f32 {vr(A)}, {vr(A)}, {vr(u)}')
        a(f'    v_cvt_pk_bf16_f32 {vr(A)}, {vr(A)}, {vr(A)}')
        a(f'    v_and_b32 {vr(A)}, 0xffff0000, {vr(A)}')
        a(f'    v_mul_f32 {vr(A)}, s{S_NLOG}, {vr(A)}')
        a(f'    v_exp_f32 {vr(A)}, {vr(A)}')
        a(f'    v_add_f32 {vr(A)}, 1.0, {vr(A)}')
        a(f'    v_rcp_f32 {vr(A)}, {vr(A)}')
        a(f'    v_cvt_pk_bf16_f32 {vr(A)}, {vr(A)}, {vr(A)}')
        a(f'    v_and_b32 {vr(A)}, 0xffff0000, {vr(A)}')
    a(f'''
    s_lshl_b32 s{S_T0}, s{S_T0}, 2
    s_add_u32 s{S_T0}, s{S_T0}, {WS_G}
    v_mov_b32 {vr(t)}, 0
    s_mov_b64 exec, 1
    buffer_store_dword {vr(t+20)}, {vr(t)}, {WS}, s{S_T0} offen
    buffer_store_dword {vr(t+21)}, {vr(t)}, {WS}, s{S_T0} offen offset:4
    s_mov_b64 exec, -1
''')

def emit_setup(a):
    L = V_L
    t0, t1, t2 = V_E, V_E + 1, V_E + 2
    a(f'''
    v_and_b32 {vr(L)}, 63, v0
    v_lshlrev_b32 {vr(V_LIN16)}, 4, {vr(L)}
    v_lshrrev_b32 {vr(t0)}, 3, {vr(L)}
    v_bfe_u32 {vr(t1)}, {vr(L)}, 1, 2
    v_and_b32 {vr(t2)}, 2, {vr(t0)}
    v_xor_b32 {vr(t1)}, {vr(t1)}, {vr(t2)}
    v_lshlrev_b32 {vr(t1)}, 5, {vr(t1)}
    v_and_b32 {vr(t2)}, 1, {vr(L)}
    v_lshlrev_b32 {vr(t2)}, 4, {vr(t2)}
    v_add_u32 {vr(t1)}, {vr(t1)}, {vr(t2)}
    v_lshlrev_b32 {vr(t2)}, 13, {vr(t0)}
    v_add_u32 {vr(V_DQ)}, {vr(t1)}, {vr(t2)}
    v_mul_u32_u24 {vr(t2)}, 3584, {vr(t0)}
    v_add_u32 {vr(V_DF)}, {vr(t1)}, {vr(t2)}
    v_lshrrev_b32 {vr(t0)}, 5, {vr(L)}
    v_lshlrev_b32 {vr(t0)}, 10, {vr(t0)}
    v_bfe_u32 {vr(t1)}, {vr(L)}, 2, 2
    v_lshlrev_b32 {vr(t2)}, 7, {vr(t1)}
    v_add_u32 {vr(t0)}, {vr(t0)}, {vr(t2)}
    v_and_b32 {vr(t1)}, 2, {vr(t1)}
    v_bfe_u32 {vr(t2)}, {vr(L)}, 4, 1
    v_add_u32 {vr(t1)}, {vr(t1)}, {vr(t2)}
    v_lshlrev_b32 {vr(t1)}, 5, {vr(t1)}
    v_add_u32 {vr(t0)}, {vr(t0)}, {vr(t1)}
    v_and_b32 {vr(t1)}, 3, {vr(L)}
    v_lshlrev_b32 {vr(t1)}, 3, {vr(t1)}
    v_add_u32 {vr(V_T0)}, {vr(t0)}, {vr(t1)}
    v_xor_b32 {vr(V_T1)}, 64, {vr(V_T0)}
    v_add_u32 {vr(V_T2)}, 0x10000, {vr(V_T0)}
    v_add_u32 {vr(V_T3)}, 0x10000, {vr(V_T1)}
    v_and_b32 {vr(t0)}, 31, {vr(L)}
    v_bfe_u32 {vr(t1)}, {vr(L)}, 4, 1
    v_lshlrev_b32 {vr(t1)}, 3, {vr(t1)}
    v_xor_b32 {vr(t0)}, {vr(t0)}, {vr(t1)}
    v_lshlrev_b32 {vr(t0)}, 4, {vr(t0)}
    v_lshrrev_b32 {vr(t1)}, 5, {vr(L)}
    v_lshlrev_b32 {vr(t1)}, 9, {vr(t1)}
    v_add_u32 {vr(V_STK)}, {vr(t0)}, {vr(t1)}
    v_and_b32 {vr(t0)}, 31, {vr(L)}
    v_lshlrev_b32 {vr(t1)}, 10, {vr(t0)}
    v_and_b32 {vr(t0)}, 15, {vr(t0)}
    v_lshrrev_b32 {vr(t2)}, 5, {vr(L)}
    v_xor_b32 {vr(t0)}, {vr(t0)}, {vr(t2)}
    v_lshlrev_b32 {vr(t0)}, 4, {vr(t0)}
    v_add_u32 {vr(t0)}, {vr(t0)}, {vr(t1)}
    s_lshl_b32 s{S_T0}, s{S_W}, 15
    s_add_u32 s{S_T0}, s{S_T0}, 32768
    v_add_u32 {vr(V_XA)}, s{S_T0}, {vr(t0)}
''')

def emit_load_x(a):
    for tt in range(2):
        a(f'''
    s_lshl_b32 s{S_T0}, s{S_TB}, 8
    s_lshl_b32 s{S_T1}, s{S_W}, 6
    s_add_u32 s{S_T0}, s{S_T0}, s{S_T1}
    s_add_u32 s{S_T0}, s{S_T0}, {tt * 32}
    s_lshl_b32 s{S_T0}, s{S_T0}, 10
    s_lshl_b32 s{S_T1}, s{S_W}, 15
    s_add_u32 s{S_T1}, s{S_T1}, 32768
''')
        for t in range(32):
            a(f'''
    v_xor_b32 {vr(V_TMP)}, {(t & 15) << 4}, {vr(V_LIN16)}
    s_mov_b32 m0, s{S_T1}
    buffer_load_dwordx4 {vr(V_TMP)}, s[{SRD_X}:{SRD_X+3}], s{S_T0} offen lds
    s_add_u32 s{S_T0}, s{S_T0}, 1024
    s_add_u32 s{S_T1}, s{S_T1}, 1024
''')
        a('    s_waitcnt vmcnt(0)')
        for ks in range(32):
            a(f'    v_xor_b32 {vr(V_TMP + (ks & 1))}, {ks << 5}, {vr(V_XA)}')
            a(f'    ds_read_b128 {xf(tt, ks)}, {vr(V_TMP + (ks & 1))}')
        a('    s_waitcnt lgkmcnt(0)')

def emit_decode(a, cu, typ, out):
    a(f'''
    s_lshr_b32 s{S_T0}, s{cu}, 5            ; 0 K, 1 V, 2 Q, 3 F
    s_and_b32 s{S_T1}, s{cu}, 31            ; head / fb
    s_mov_b32 s{typ}, s{S_T0}
    s_cmp_eq_u32 s{S_T0}, 3
    s_cbranch_scc1 L_decF_%(id)s
    s_lshl_b32 s{S_COL}, s{S_T1}, 8
    s_mov_b32 s{S_STR8}, 65536
    v_mov_b32 {vr(V_DCUR)}, {vr(V_DQ)}
    ; select matrix
    s_cmp_eq_u32 s{S_T0}, 0
    s_cselect_b32 s{SRD_TA}, s{SRD_WK}, s{SRD_WV}
    s_cselect_b32 s{SRD_TA+1}, s{SRD_WK+1}, s{SRD_WV+1}
    s_mov_b32 s{S_T2}, {WS_V}
    s_cselect_b32 s{S_T2}, {WS_K}, s{S_T2}
    s_cmp_eq_u32 s{S_T0}, 2
    s_cselect_b32 s{SRD_TA}, s{SRD_WQ}, s{SRD_TA}
    s_cselect_b32 s{SRD_TA+1}, s{SRD_WQ+1}, s{SRD_TA+1}
    s_cselect_b32 s{S_T2}, {WS_Q}, s{S_T2}
    s_mov_b32 s{SRD_TA+2}, 0x400000
    s_mov_b32 s{SRD_TA+3}, 0x20000
    s_add_u32 s{SRD_TB}, s{SRD_TA}, 128
    s_addc_u32 s{SRD_TB+1}, s{SRD_TA+1}, 0
    s_mov_b32 s{SRD_TB+2}, {0x400000 - 128}
    s_mov_b32 s{SRD_TB+3}, 0x20000
    ; out = base + ((tb*8 + w*2)*32 + h)*8192
    s_lshl_b32 s{out}, s{S_TB}, 3
    s_lshl_b32 s{S_T0}, s{S_W}, 1
    s_add_u32 s{out}, s{out}, s{S_T0}
    s_lshl_b32 s{out}, s{out}, 5
    s_add_u32 s{out}, s{out}, s{S_T1}
    s_lshl_b32 s{out}, s{out}, 13
    s_add_u32 s{out}, s{out}, s{S_T2}
    s_branch L_decD_%(id)s
L_decF_%(id)s:
    s_lshl_b32 s{S_COL}, s{S_T1}, 7
    s_mov_b32 s{S_STR8}, {3584 * 8}
    v_mov_b32 {vr(V_DCUR)}, {vr(V_DF)}
    s_mov_b32 s{SRD_TA}, s{SRD_W1}
    s_mov_b32 s{SRD_TA+1}, s{SRD_W1+1}
    s_mov_b32 s{SRD_TA+2}, {512 * 3584}
    s_mov_b32 s{SRD_TA+3}, 0x20000
    s_mov_b32 s{SRD_TB}, s{SRD_W3}
    s_mov_b32 s{SRD_TB+1}, s{SRD_W3+1}
    s_mov_b32 s{SRD_TB+2}, {512 * 3584}
    s_mov_b32 s{SRD_TB+3}, 0x20000
    ; out = WS_H + (tb*8 + w*2)*H_SEG + fb*4096
    s_lshl_b32 s{out}, s{S_TB}, 3
    s_lshl_b32 s{S_T0}, s{S_W}, 1
    s_add_u32 s{out}, s{out}, s{S_T0}
    s_mul_i32 s{out}, s{out}, {H_SEG}
    s_lshl_b32 s{S_T1}, s{S_T1}, 12
    s_add_u32 s{out}, s{out}, s{S_T1}
    s_add_u32 s{out}, s{out}, {WS_H}
L_decD_%(id)s:
    ; running row offset for this wave: col + (2w)*8*stride
    s_mul_i32 s{S_ROW}, s{S_STR8}, s{S_W}
    s_lshl_b32 s{S_ROW}, s{S_ROW}, 1
    s_add_u32 s{S_ROW}, s{S_ROW}, s{S_COL}
''' % dict(id='u%d' % len(a.lines)))

def dma_chunk(a, slot):
    for hb, S in ((0, SRD_TA), (1, SRD_TB)):
        for j in range(2):
            a(f'''
    s_lshl_b32 s{S_T0}, s{S_W}, 11
    s_add_u32 m0, s{S_T0}, {LDS_RING + slot * 16384 + hb * 8192 + j * 1024}
''')
            if j == 0:
                a(f'    buffer_load_dwordx4 {vr(V_DCUR)}, s[{S}:{S+3}], s{S_ROW} offen lds')
            else:
                a(f'    s_add_u32 s{S_T1}, s{S_ROW}, s{S_STR8}')
                a(f'    buffer_load_dwordx4 {vr(V_DCUR)}, s[{S}:{S+3}], s{S_T1} offen lds')
    a(f'    s_lshl_b32 s{S_T0}, s{S_STR8}, 3')
    a(f'    s_add_u32 s{S_ROW}, s{S_ROW}, s{S_T0}')

def wreads(buf, slot, kk):
    out = []
    for ct in range(4):
        for rr in range(2):
            if slot < 4: addr = V_T1 if ct & 1 else V_T0
            else: addr = V_T3 if ct & 1 else V_T2
            off = LDS_RING + (slot % 4) * 16384 + (ct >> 1) * 8192 + kk * 2048 + rr * 512
            out.append(f'    ds_read_b64_tr_b16 {vr(V_WF + buf * 16 + ct * 4 + 2 * rr, 2)}, {vr(addr)} offset:{off}')
    return out


def dummies(a, n):
    for i in range(n):
        a(f'    buffer_load_dword {vr(V_JUNK)}, {vr(V_LIN16)}, s[{SRD_X}:{SRD_X+3}], 0 offen')

def emit_mainloop(a, vtype, tag, next_decode, midflag=None):
    a('    s_waitcnt vmcnt(36)')
    a('    s_barrier')
    for x in wreads(0, 0, 0): a(x)
    for c in range(8):
        slot = c % NSLOT
        for kk in range(4):
            ks = c * 4 + kk
            buf = ks & 1
            if kk < 3: nxt = wreads(buf ^ 1, slot, kk + 1)
            elif c < 7: nxt = wreads(buf ^ 1, (c + 1) % NSLOT, 0)
            else: nxt = []
            a('    s_waitcnt lgkmcnt(0)')
            if kk == 3 and c < 7:
                a(f'    s_waitcnt vmcnt({36 if c <= 4 else 20})')
                a('    s_barrier')
                if c == 5 and midflag: midflag()
            i = 0
            for ct in range(4):
                for tt in range(2):
                    C = '0' if ks == 0 else vr(acc(ct, tt), 16)
                    wf = vr(V_WF + buf * 16 + ct * 4, 4)
                    if vtype:
                        a(f'    v_mfma_f32_32x32x16_bf16 {vr(acc(ct,tt),16)}, {xf(tt, ks)}, {wf}, {C}')
                    else:
                        a(f'    v_mfma_f32_32x32x16_bf16 {vr(acc(ct,tt),16)}, {wf}, {xf(tt, ks)}, {C}')
                    for x in nxt[2*i:2*i+2]: a(x)
                    i += 1
                    if kk == 0 and i == 5:
                        if c == 2: next_decode()
                        dma_chunk(a, (c + PD) % NSLOT)

def epi_pack(a, lanereg, segstride, ST):
    k = 0
    for tt in range(2):
        a(f'    s_add_u32 s{S_O0}, s{S_OUT}, {tt * segstride}')
        a(f'    s_add_u32 s{S_O1}, s{S_O0}, 4096')
        for ct in range(4):
            A = acc(ct, tt)
            for cb in range(2):
                E = V_E + (k % 4) * 4; k += 1
                for i in range(4):
                    a(f'    v_cvt_pk_bf16_f32 {vr(E+i)}, {vr(A + 8*cb + 2*i)}, {vr(A + 8*cb + 2*i + 1)}')
                off = (4 * ct + 2 * cb) * 512
                so = S_O0 if off < 4096 else S_O1
                a(f'    buffer_store_dwordx4 {vr(E,4)}, {vr(lanereg)}, {WS}, s{so} offen offset:{off % 4096} {ST}')

def epi_ffn(a, ST):
    k = 0
    T = V_E + 16
    for tt in range(2):
        a(f'    s_add_u32 s{S_O0}, s{S_OUT}, {tt * H_SEG}')
        for ct in range(2):
            G, U = acc(ct, tt), acc(ct + 2, tt)
            for cb in range(2):
                E = V_E + (k % 4) * 4; k += 1
                for i in range(4):
                    g, u = G + 8 * cb + 2 * i, U + 8 * cb + 2 * i
                    t = T + 2 * i
                    a(f'    v_pk_mul_f32 {vr(t,2)}, {vr(g,2)}, s[{S_NLOG}:{S_NLOG+1}]')
                    a(f'    v_pk_mul_f32 {vr(g,2)}, {vr(g,2)}, {vr(u,2)}')
                    a(f'    v_exp_f32 {vr(t)}, {vr(t)}')
                    a(f'    v_exp_f32 {vr(t+1)}, {vr(t+1)}')
                for i in range(4):
                    t = T + 2 * i
                    a(f'    v_pk_add_f32 {vr(t,2)}, {vr(t,2)}, s[{S_ONE}:{S_ONE+1}]')
                for i in range(4):
                    t = T + 2 * i
                    a(f'    v_rcp_f32 {vr(t)}, {vr(t)}')
                    a(f'    v_rcp_f32 {vr(t+1)}, {vr(t+1)}')
                for i in range(4):
                    g = G + 8 * cb + 2 * i; t = T + 2 * i
                    a(f'    v_pk_mul_f32 {vr(g,2)}, {vr(g,2)}, {vr(t,2)}')
                    a(f'    v_cvt_pk_bf16_f32 {vr(E+i)}, {vr(g)}, {vr(g+1)}')
                off = (4 * ct + 2 * cb) * 512
                a(f'    buffer_store_dwordx4 {vr(E,4)}, {vr(V_LIN16)}, {WS}, s{S_O0} offen offset:{off} {ST}')

def emit_g1_kernel(a, cfg):
    ST = cfg.get('st_pub', '')
    a(f"""
    s_load_dwordx2 s[{SRD_WS}:{SRD_WS+1}], s[0:1], {KA_WS}
    s_load_dwordx2 s[{SRD_X}:{SRD_X+1}], s[0:1], {KA_X}
    s_load_dwordx2 s[{SRD_WQ}:{SRD_WQ+1}], s[0:1], {KA_WQ}
    s_load_dwordx2 s[{SRD_WK}:{SRD_WK+1}], s[0:1], {KA_WK}
    s_load_dwordx2 s[{SRD_WV}:{SRD_WV+1}], s[0:1], {KA_WV}
    s_load_dwordx2 s[{SRD_W1}:{SRD_W1+1}], s[0:1], {KA_W1}
    s_load_dwordx2 s[{SRD_W3}:{SRD_W3+1}], s[0:1], {KA_W3}
    s_load_dwordx2 s[60:61], s[0:1], {KA_GW}
    v_lshrrev_b32 v1, 6, v0
    s_nop 1
    v_readfirstlane_b32 s{S_W}, v1
    s_waitcnt lgkmcnt(0)
    s_mov_b32 s{SRD_WS+2}, {WS_SIZE}
    s_mov_b32 s{SRD_WS+3}, 0x20000
    s_mov_b32 s{SRD_X+2}, {2048 * 1024}
    s_mov_b32 s{SRD_X+3}, 0x20000
    s_mov_b32 s62, 1024
    s_mov_b32 s63, 0x20000
    s_mov_b32 s{S_NLOG}, {f2u(-1.4426950408889634):#x}
    s_mov_b32 s{S_NLOG+1}, {f2u(-1.4426950408889634):#x}
    s_mov_b32 s{S_ONE}, 1.0
    s_mov_b32 s{S_ONE+1}, 1.0
    s_lshr_b32 s{S_TB}, s2, 3
    s_and_b32 s{S_TB}, s{S_TB}, 7
    s_lshr_b32 s{S_CU}, s2, 6
    s_lshl_b32 s{S_CU}, s{S_CU}, 3
    s_and_b32 s{S_T0}, s2, 7
    s_add_u32 s{S_CU}, s{S_CU}, s{S_T0}
""")
    tm = cfg.get('timing')
    def TS(k):
        if tm: a(f'    s_memrealtime s[{70+2*k}:{70+2*k+1}]')
    TS(0)
    emit_setup(a)
    emit_gate(a, 2)
    TS(1)
    emit_load_x(a)
    a('    s_barrier')
    TS(2)
    if tm: a('    s_memtime s[82:83]')
    emit_decode(a, S_CU, S_TYPE, S_OUT)
    for c in range(PD): dma_chunk(a, c)
    dummies(a, 16)
    def next_decode():
        a(f"""
    s_add_u32 s{S_FIRST}, s{S_CU}, 32
    s_cmp_ge_u32 s{S_FIRST}, 124
    s_cselect_b32 s{S_FIRST+1}, s{S_CU}, s{S_FIRST}
""")
        emit_decode(a, S_FIRST + 1, S_NTYPE, S_NOUT)
    a('L_g1_unit:')
    a(f"""
    s_cmp_eq_u32 s{S_TYPE}, 1
    s_cbranch_scc1 L_g1_v
""")
    emit_mainloop(a, False, 'k', next_decode)
    a('    s_branch L_g1_next')
    a('L_g1_v:')
    emit_mainloop(a, True, 'v', next_decode)
    a('L_g1_next:')
    if tm:
        a(f"""
    s_lshr_b32 s{S_T0}, s{S_CU}, 5
    s_cmp_eq_u32 s{S_T0}, 0
    s_cbranch_scc0 L_ts1
    s_memrealtime s[76:77]
L_ts1:
    s_cmp_eq_u32 s{S_T0}, 2
    s_cbranch_scc0 L_ts2
    s_memrealtime s[78:79]
L_ts2:
""")
    a(f"""
    s_cmp_eq_u32 s{S_TYPE}, 3
    s_cbranch_scc1 L_g1_ef
    s_cmp_eq_u32 s{S_TYPE}, 1
    s_cbranch_scc1 L_g1_ev
""")
    epi_pack(a, V_STK, 262144, ST)
    a('    s_branch L_g1_ed')
    a('L_g1_ev:')
    epi_pack(a, V_LIN16, 262144, ST)
    a('    s_branch L_g1_ed')
    a('L_g1_ef:')
    epi_ffn(a, ST)
    dummies(a, 8)
    a('L_g1_ed:')
    a(f"""
    s_mov_b32 s{S_TYPE}, s{S_NTYPE}
    s_mov_b32 s{S_OUT}, s{S_NOUT}
    s_add_u32 s{S_CU}, s{S_CU}, 32
    s_cmp_lt_u32 s{S_CU}, 124
    s_cbranch_scc1 L_g1_unit
    s_waitcnt vmcnt(0)
""")
    if tm:
        a(f'''
    s_waitcnt vmcnt(0)
    s_memrealtime s[80:81]
    s_memtime s[84:85]
    s_waitcnt lgkmcnt(0)
    s_lshl_b32 s{S_T0}, s2, 2
    s_add_u32 s{S_T0}, s{S_T0}, s{S_W}
    s_lshl_b32 s{S_T0}, s{S_T0}, 5
    s_add_u32 s{S_T0}, s{S_T0}, 0x10000
    s_mov_b64 exec, 1
    v_mov_b32 v20, 0
''')
        for k in range(8):
            a(f'    v_mov_b32 v21, s{70+2*k}')
            a(f'    buffer_store_dword v21, v20, {WS}, s{S_T0} offen offset:{4*k}')


S_WID, S_DBG2 = 90, 68
S_STRIDE, S_URG, S_PEND, S_SESS = 70, 71, 72, 73
S_PTB = 74

def flag_add(a, lab):
    a(f"""
    s_cmp_eq_u32 s{S_PEND}, 0
    s_cbranch_scc1 {lab}
    s_cmp_lg_u32 s{S_W}, 0
    s_cbranch_scc1 {lab}_c
    s_cmp_lg_u32 s89, 0
    s_cbranch_scc1 {lab}_i
    v_mov_b32 {vr(V_TMP)}, {DB_INIT}
    s_mov_b32 s78, 0
{lab}_w:
    global_load_dword {vr(V_TMP+1)}, {vr(V_TMP)}, s[{S_DBG2}:{S_DBG2+1}] sc1
    s_waitcnt vmcnt(0)
    v_readfirstlane_b32 s89, {vr(V_TMP+1)}
    s_cmp_lg_u32 s89, 0
    s_cbranch_scc1 {lab}_i
    s_sleep 8
    s_add_u32 s78, s78, 1
    s_cmp_lt_u32 s78, 100000
    s_cbranch_scc1 {lab}_w
{lab}_i:
    s_lshl_b32 s{S_T0}, s{S_PTB}, 7
    s_add_u32 s{S_T0}, s{S_T0}, {FL_G1}
    v_mov_b32 {vr(V_TMP)}, 0
    v_mov_b32 {vr(V_TMP+1)}, s{S_PEND}
    s_mov_b64 exec, 1
    buffer_atomic_add {vr(V_TMP+1)}, {vr(V_TMP)}, {WS}, s{S_T0} offen sc1
    s_mov_b64 exec, -1
{lab}_c:
    s_mov_b32 s{S_PEND}, 0
{lab}:
""")

def emit_gate_mfma(a):
    G = V_WF
    D = V_ACC
    for tt in range(2):
        for b in range(4):
            for k in range(8):
                ks = b * 8 + k
                a(f'    buffer_load_dwordx4 {vr(G + 4*k - (0), 4)}, {vr(V_TMP)}, s[60:63], 0 offen offset:{ks * 32}')
            for k in range(8):
                ks = b * 8 + k
                a(f'    s_waitcnt vmcnt({7 - k})')
                a(f'    v_mfma_f32_32x32x16_bf16 {vr(D + 16*tt,16)}, {vr(G + 4*k, 4)}, {xf(tt, ks)}, {"0" if ks == 0 else vr(D + 16*tt,16)}')
    for tt in range(2):
        A = D + 16 * tt
        a(f"""
    v_cvt_pk_bf16_f32 {vr(A)}, {vr(A)}, {vr(A)}
    v_and_b32 {vr(A)}, 0xffff0000, {vr(A)}
    v_mul_f32 {vr(A)}, s{S_NLOG}, {vr(A)}
    v_exp_f32 {vr(A)}, {vr(A)}
    v_add_f32 {vr(A)}, 1.0, {vr(A)}
    v_rcp_f32 {vr(A)}, {vr(A)}
    v_cvt_pk_bf16_f32 {vr(A)}, {vr(A)}, {vr(A)}
    v_and_b32 {vr(A)}, 0xffff0000, {vr(A)}
""")
    a(f"""
    s_lshl_b32 s{S_T0}, s{S_TB}, 8
    s_lshl_b32 s{S_T1}, s{S_W}, 6
    s_add_u32 s{S_T0}, s{S_T0}, s{S_T1}
    s_lshl_b32 s{S_T0}, s{S_T0}, 2
    s_add_u32 s{S_T0}, s{S_T0}, {WS_G}
    v_lshlrev_b32 {vr(V_TMP)}, 2, {vr(V_L)}
    s_mov_b32 exec_hi, 0
    buffer_store_dword {vr(D)}, {vr(V_TMP)}, {WS}, s{S_T0} offen sc1
    buffer_store_dword {vr(D+16)}, {vr(V_TMP)}, {WS}, s{S_T0} offen offset:128 sc1
    s_mov_b64 exec, -1
    s_waitcnt vmcnt(0)
    s_barrier
    s_mov_b32 s{S_PEND}, {1 << 24}
    s_mov_b32 s{S_PTB}, s{S_TB}
""")
    flag_add(a, 'L_gfl')

def emit_worker_g1(a, cfg):
    ST = 'sc1'
    a(f"""
    s_load_dwordx2 s[{SRD_WS}:{SRD_WS+1}], s[0:1], {KA_WS}
    s_load_dwordx2 s[{SRD_X}:{SRD_X+1}], s[0:1], {KA_X}
    s_load_dwordx2 s[{SRD_WQ}:{SRD_WQ+1}], s[0:1], {KA_WQ}
    s_load_dwordx2 s[{SRD_WK}:{SRD_WK+1}], s[0:1], {KA_WK}
    s_load_dwordx2 s[{SRD_WV}:{SRD_WV+1}], s[0:1], {KA_WV}
    s_load_dwordx2 s[{SRD_W1}:{SRD_W1+1}], s[0:1], {KA_W1}
    s_load_dwordx2 s[{SRD_W3}:{SRD_W3+1}], s[0:1], {KA_W3}
    s_load_dwordx2 s[60:61], s[0:1], {KA_GW}
    s_load_dwordx2 s[{S_DBG2}:{S_DBG2+1}], s[0:1], {KA_DBG}
    s_waitcnt lgkmcnt(0)
    s_mov_b32 s{SRD_WS+2}, {WS_SIZE}
    s_mov_b32 s{SRD_WS+3}, 0x20000
    s_mov_b32 s{SRD_X+2}, {2048 * 1024}
    s_mov_b32 s{SRD_X+3}, 0x20000
    s_mov_b32 s62, 1024
    s_mov_b32 s63, 0x20000
    s_mov_b32 s{S_NLOG}, {f2u(-1.4426950408889634):#x}
    s_mov_b32 s{S_NLOG+1}, {f2u(-1.4426950408889634):#x}
    s_mov_b32 s{S_ONE}, 1.0
    s_mov_b32 s{S_ONE+1}, 1.0
    s_mov_b32 s{S_PEND}, 0
    s_mov_b32 s88, 0
    s_mov_b32 s89, 0
    s_mov_b32 s87, 0
""")
    emit_setup(a)
    a(f"""
    s_and_b32 s75, s{S_WID}, 7
    s_lshr_b32 s76, s{S_WID}, 3             ; group 0..27
    s_mov_b32 s{S_SESS}, 1
    s_cmp_lt_u32 s75, 5
    s_cbranch_scc1 L_g1w_sess
    s_cmp_ge_u32 s76, 12
    s_cbranch_scc1 L_g1w_sess
    s_mov_b32 s{S_SESS}, 0
L_g1w_sess:
    s_cmp_eq_u32 s{S_SESS}, 0
    s_cbranch_scc0 L_g1w_own
    s_mov_b32 s{S_TB}, 0
    s_sub_u32 s{S_T0}, s75, 5
    s_mul_i32 s{S_T0}, s{S_T0}, 12
    s_add_u32 s{S_CU}, s{S_T0}, s76
    s_add_u32 s{S_CU}, s{S_CU}, 28
    s_mov_b32 s{S_STRIDE}, 1000
    s_mov_b32 s77, s{S_CU}
    s_branch L_g1w_go
L_g1w_own:
    s_mov_b32 s{S_TB}, s75
    s_mov_b32 s{S_STRIDE}, 28
    s_cmp_eq_u32 s75, 0
    s_cbranch_scc0 L_g1w_n0
    s_mov_b32 s{S_CU}, s76
    s_add_u32 s77, s76, 64
    s_branch L_g1w_go
L_g1w_n0:
    s_cmp_lt_u32 s75, 5
    s_cbranch_scc0 L_g1w_late
    s_mov_b32 s{S_CU}, s76
    s_add_u32 s77, s76, 28
    s_branch L_g1w_go
L_g1w_late:
    s_add_u32 s77, s76, 16
    s_cmp_ge_u32 s76, 12
    s_cbranch_scc1 L_g1w_l2
    s_mov_b32 s{S_CU}, s77
    s_add_u32 s77, s77, 28
    s_branch L_g1w_go
L_g1w_l2:
    s_sub_u32 s{S_CU}, s76, 12
L_g1w_go:
    s_mov_b32 s{S_URG}, 1
""")
    if cfg.get('gate0'):
        a(f"""
    s_cmp_eq_u32 s{S_TB}, 0
    s_cbranch_scc1 L_g1w_ng
    s_cmp_lg_u32 s87, 0
    s_cbranch_scc1 L_g1w_ng
    s_mov_b32 s87, 1
    v_mov_b32 {vr(V_TMP)}, {DB_INIT}
    s_mov_b32 s78, 0
L_g1w_gi:
    global_load_dword {vr(V_TMP+1)}, {vr(V_TMP)}, s[{S_DBG2}:{S_DBG2+1}] sc1
    s_waitcnt vmcnt(0)
    v_readfirstlane_b32 s89, {vr(V_TMP+1)}
    s_cmp_lg_u32 s89, 0
    s_cbranch_scc1 L_g1w_gj
    s_sleep 16
    s_add_u32 s78, s78, 1
    s_cmp_lt_u32 s78, 100000
    s_cbranch_scc1 L_g1w_gi
L_g1w_gj:
    v_mov_b32 {vr(V_TMP)}, {FL_G1}
L_g1w_gk:
    buffer_load_dword {vr(V_TMP+1)}, {vr(V_TMP)}, {WS}, 0 offen sc1
    s_waitcnt vmcnt(0)
    v_readfirstlane_b32 s{S_T0}, {vr(V_TMP+1)}
    s_and_b32 s{S_T0}, s{S_T0}, 0xff
    s_cmp_ge_u32 s{S_T0}, {cfg.get('gate0')}
    s_cbranch_scc1 L_g1w_ng
    s_sleep 32
    s_add_u32 s78, s78, 1
    s_cmp_lt_u32 s78, 100000
    s_cbranch_scc1 L_g1w_gk
L_g1w_ng:
""")
    emit_decode(a, S_CU, S_TYPE, S_OUT)
    for c in range(2): dma_chunk(a, c)
    emit_load_x(a)
    if cfg.get('timing'): a(f'    s_cmp_eq_u32 s{S_URG}, 1\n    s_cbranch_scc0 L_tsa\n    s_cmp_eq_u32 s88, 0\n    s_cbranch_scc0 L_tsa\n    s_memrealtime s[80:81]\nL_tsa:')
    a('    s_barrier')
    a(f"""
    s_cmp_eq_u32 s{S_SESS}, 1
    s_cbranch_scc0 L_g1w_nog
    s_cmp_eq_u32 s76, 27
    s_cbranch_scc0 L_g1w_nog
    v_lshrrev_b32 {vr(V_TMP)}, 5, {vr(V_L)}
    v_lshlrev_b32 {vr(V_TMP)}, 4, {vr(V_TMP)}
""")
    emit_gate_mfma(a)
    a('L_g1w_nog:')
    for c in range(2, PD): dma_chunk(a, c)
    dummies(a, 16)
    def next_decode():
        a(f"""
    s_cmp_ge_u32 s77, 124
    s_cselect_b32 s{S_FIRST+1}, s{S_CU}, s77
    s_cmp_eq_u32 s{S_SESS}, 0
    s_cselect_b32 s{S_FIRST+1}, s{S_CU}, s{S_FIRST+1}
""")
        emit_decode(a, S_FIRST + 1, S_NTYPE, S_NOUT)
    def midflag():
        flag_add(a, 'L_mf_%d' % len(a.lines))
    a('L_g1w_unit:')
    a(f"""
    s_cmp_eq_u32 s{S_TYPE}, 1
    s_cbranch_scc1 L_g1w_v
""")
    emit_mainloop(a, False, 'k', next_decode, midflag)
    a('    s_branch L_g1w_next')
    a('L_g1w_v:')
    emit_mainloop(a, True, 'v', next_decode, midflag)
    a('L_g1w_next:')
    if cfg.get('timing'): a(f'    s_cmp_eq_u32 s88, 0\n    s_cbranch_scc0 L_tsb\n    s_memrealtime s[82:83]\nL_tsb:')
    a(f"""
    s_cmp_eq_u32 s{S_TYPE}, 3
    s_cbranch_scc1 L_g1w_ef
    s_cmp_eq_u32 s{S_TYPE}, 1
    s_cbranch_scc1 L_g1w_ev
""")
    epi_pack(a, V_STK, 262144, ST)
    a('    s_branch L_g1w_ed')
    a('L_g1w_ev:')
    epi_pack(a, V_LIN16, 262144, ST)
    a('    s_branch L_g1w_ed')
    a('L_g1w_ef:')
    epi_ffn(a, ST)
    dummies(a, 8)
    a('L_g1w_ed:')
    a(f"""
    s_mov_b32 s{S_PEND}, 1
    s_cmp_eq_u32 s{S_TYPE}, 2
    s_cselect_b32 s{S_PEND}, 0x100, s{S_PEND}
    s_cmp_eq_u32 s{S_TYPE}, 3
    s_cselect_b32 s{S_PEND}, 0x10000, s{S_PEND}
    s_mov_b32 s{S_PTB}, s{S_TB}
    s_mov_b32 s{S_T2}, 0
    s_cmp_ge_u32 s77, 124
    s_cselect_b32 s{S_T2}, 1, s{S_T2}
    s_cmp_eq_u32 s{S_SESS}, 0
    s_cselect_b32 s{S_T2}, 1, s{S_T2}
    s_or_b32 s{S_T1}, s{S_T2}, s{S_URG}
    s_cmp_eq_u32 s{S_T1}, 0
    s_cbranch_scc1 L_g1w_noflush
    s_waitcnt vmcnt(0)
    s_barrier
""")
    flag_add(a, 'L_fl0')
    if cfg.get('timing'): a(f'    s_cmp_eq_u32 s88, 0\n    s_cbranch_scc0 L_tsc\n    s_memrealtime s[84:85]\n    s_mov_b32 s88, 1\nL_tsc:')
    dummies(a, 16)
    a(f"""
L_g1w_noflush:
    s_mov_b32 s{S_URG}, 0
    s_cmp_eq_u32 s{S_T2}, 1
    s_cbranch_scc1 L_g1w_sessend
    s_mov_b32 s{S_TYPE}, s{S_NTYPE}
    s_mov_b32 s{S_OUT}, s{S_NOUT}
    s_mov_b32 s{S_CU}, s77
    s_add_u32 s77, s77, 28
    s_branch L_g1w_unit
L_g1w_sessend:
    s_waitcnt vmcnt(0)
    s_barrier
    s_cmp_eq_u32 s{S_SESS}, 0
    s_cbranch_scc0 L_g1w_done
    s_mov_b32 s{S_SESS}, 1
    s_branch L_g1w_own
L_g1w_done:
""")
```

```python
import sys
sys.path.insert(0, 'gen')
from asmlib import *
from layout import *
import kern, g1, attn, fin, chain2 as chain

NAME = 'gated_mix__memory_aug_recurrent_mem_tr__glu_gated_swiglu__prompt'
KNAME = NAME + '_kernel'

def emit_entry(a, cfg):
    MISC = chain.LDS_MISC
    a(f"""
    s_load_dwordx2 s[16:17], s[0:1], {KA_DBG}
    s_memrealtime s[92:93]
    s_getreg_b32 s33, hwreg(HW_REG_XCC_ID)
    s_and_b32 s33, s33, 7
    v_lshrrev_b32 v1, 6, v0
    s_nop 1
    v_readfirstlane_b32 s4, v1
    s_waitcnt lgkmcnt(0)
    v_cmp_eq_u32 vcc, 0, v0
    s_and_saveexec_b64 s[44:45], vcc
    s_cbranch_execz L_t1
""")
    if cfg.get('forcemix'):
        a(f"""
    s_lshr_b32 s34, s2, 3
    s_add_u32 s33, s33, s34
    s_and_b32 s33, s33, 7
""")
        if cfg['forcemix'] == 2:
            a("""
    s_cmp_eq_u32 s33, 0
    s_cselect_b32 s33, 3, s33
""")
    a(f"""
    s_lshr_b32 s34, s33, 1
    s_lshl_b32 s34, s34, 2
    s_and_b32 s35, s33, 1
    s_lshl_b32 s35, s35, 4
    s_lshl_b32 s36, 1, s35
    v_mov_b32 v1, s34
    v_mov_b32 v2, s36
    global_atomic_add v3, v1, v2, s[16:17] sc0 sc1
    v_mov_b32 v5, {DB_TOTAL}
    v_mov_b32 v6, 1
    global_atomic_add v5, v6, s[16:17] sc1
    s_waitcnt vmcnt(1)
    v_lshrrev_b32 v3, s35, v3
    v_and_b32 v3, 0xffff, v3
    s_nop 0
    v_readfirstlane_b32 s37, v3
    s_mov_b32 s46, {0x10001 if cfg.get('forcemix') else 1}
    s_cmp_lt_u32 s37, 32
    s_cbranch_scc1 L_t_pub
    v_mov_b32 v5, {DB_OVF}
    global_atomic_add v7, v5, v6, s[16:17] sc0 sc1
    s_waitcnt vmcnt(0)
    v_readfirstlane_b32 s39, v7
    s_mov_b32 s40, 0
L_t_wait:
    v_mov_b32 v5, {DB_TOTAL}
    global_load_dword v7, v5, s[16:17] sc1
    s_waitcnt vmcnt(0)
    v_readfirstlane_b32 s41, v7
    s_cmp_ge_u32 s41, 256
    s_cbranch_scc1 L_t_all
    s_sleep 8
    s_add_u32 s40, s40, 1
    s_cmp_lt_u32 s40, 200000
    s_cbranch_scc1 L_t_wait
L_t_all:
    v_mov_b32 v5, 0
    global_load_dwordx4 v[8:11], v5, s[16:17] sc1
    s_waitcnt vmcnt(0)
    v_readfirstlane_b32 s48, v8
    v_readfirstlane_b32 s49, v9
    v_readfirstlane_b32 s50, v10
    v_readfirstlane_b32 s51, v11
    s_mov_b32 s33, 8
    s_mov_b32 s46, 0x10001
""")
    for x in range(8):
        a(f"""
    s_lshr_b32 s42, s{48 + (x >> 1)}, {16 * (x & 1)}
    s_and_b32 s42, s42, 0xffff
    s_min_u32 s42, s42, 32
    s_sub_u32 s43, 32, s42
    s_cmp_lt_u32 s39, s43
    s_cbranch_scc0 L_t_n{x}
    s_mov_b32 s33, {x}
    s_add_u32 s37, s42, s39
    s_branch L_t_pub
L_t_n{x}:
    s_sub_u32 s39, s39, s43
""")
    a(f"""
L_t_pub:
    v_mov_b32 v4, {MISC}
    v_mov_b32 v8, s33
    v_mov_b32 v9, s37
    v_mov_b32 v10, s46
    ds_write_b64 v4, v[8:9]
    ds_write_b32 v4, v10 offset:8
    s_waitcnt lgkmcnt(0)
L_t1:
    s_mov_b64 exec, s[44:45]
    s_barrier
    v_mov_b32 v4, {MISC}
    ds_read_b64 v[8:9], v4
    ds_read_b32 v10, v4 offset:8
    s_waitcnt lgkmcnt(0)
    v_readfirstlane_b32 s33, v8
    v_readfirstlane_b32 s3, v9
    v_readfirstlane_b32 s72, v10
    s_barrier
    s_cmp_ge_u32 s33, 8
    s_cbranch_scc1 L_all_end
    s_cmp_lg_u32 s33, 0
    s_cbranch_scc1 L_worker
""")

def body(a, cfg):
    emit_entry(a, cfg)
    a('    s_mov_b32 s73, s92')
    chain.emit_chain(a, cfg)
    a('    s_branch L_all_end')
    a('L_worker:')
    a(f"""
    s_sub_u32 s90, s33, 1
    s_lshl_b32 s90, s90, 5
    s_add_u32 s90, s90, s3
    v_mov_b32 v15, v0
""")
    g1.emit_worker_g1(a, cfg)
    if cfg.get('timing'): a('    s_memrealtime s[94:95]')
    a(f"""
    v_mov_b32 v0, v15
    s_cmp_ge_u32 s90, {cfg.get('natt', 32)}
    s_cbranch_scc1 L_finrole
""")
    attn.emit_attn_worker(a, cfg)
    a('    s_branch L_wk_end')
    a('L_finrole:')
    a(f"    s_cmp_ge_u32 s90, {cfg.get('natt', 32) + 16 * cfg.get('nsets', (224 - cfg.get('natt', 32)) // 16)}")
    a('    s_cbranch_scc1 L_wk_end')
    fin.emit_fin_worker(a, cfg)
    a('L_wk_end:')
    if cfg.get('timing'):
        a(f"""
    s_memrealtime s[96:97]
    s_waitcnt lgkmcnt(0)
    s_lshl_b32 s28, s90, 5
    s_add_u32 s28, s28, 0x20000
    s_cmp_lg_u32 s4, 0
    s_cbranch_scc1 L_all_end
    s_mov_b64 exec, 1
    v_mov_b32 v1, 0
    v_mov_b32 v2, s92
    v_mov_b32 v3, s94
    v_mov_b32 v4, s96
    buffer_store_dword v2, v1, s[8:11], s28 offen
    buffer_store_dword v3, v1, s[8:11], s28 offen offset:4
    buffer_store_dword v4, v1, s[8:11], s28 offen offset:8
    v_mov_b32 v2, s80
    v_mov_b32 v3, s82
    v_mov_b32 v4, s84
    buffer_store_dword v2, v1, s[8:11], s28 offen offset:12
    buffer_store_dword v3, v1, s[8:11], s28 offen offset:16
    buffer_store_dword v4, v1, s[8:11], s28 offen offset:20
""")
    a('L_all_end:')

def gen(cfg):
    head = """; gated mix of recurrent-memory attention and SwiGLU FFN (single persistent kernel)
; @launch grid=(256,1,1) block=(256,1,1) lds=163840
.amdgcn_target "amdgcn-amd-amdhsa--gfx950"
.text
"""
    return head + kern.simple_kernel(KNAME, 256, body, cfg)

if __name__ == '__main__':
    cfg = dict(st='', d1=128, np1=2, g1=160, np2=2, g2=128, d2=160, maxpoll=20000, progress=True, fused=True, fallback=True)
    t = gen(cfg)
    open('cdna_kernels/%s.s' % NAME, 'w').write(t)
    print(len(t), 'bytes', len(t.splitlines()), 'lines')
```

```python
from asmlib import *
from layout import *
import struct

LDS_M, LDS_QK, LDS_OX, LDS_MISC, LDS_KB, LDS_W = 0, 8192, 12288, 14336, 16384, 32768

S_H, S_W, S_STEP, S_ERR, S_CNT = 3, 4, 5, 6, 7
SRD_WS, SRD_A = 8, 12
S_DBG, S_WSP = 16, 18
S_MCUR, S_MNXT, S_MOTH, S_MPOLL = 20, 21, 22, 47
S_PST, S_PL0, S_PL1, S_PR0, S_PR1 = 23, 24, 25, 26, 27
S_KSRC, S_KDST, S_VSRC, S_KMO, S_VMO = 28, 29, 30, 31, 32
S_T0, S_T1, S_T2 = 33, 34, 35
S_ARR, S_MODE = 72, 71
S_KMP, S_VMP = 62, 63
S_MASK_T = 36
S_MASK_ODD = 38
S_MASK_M = 40
S_MASK_PB = 42
S_EXEC = 44
S_C = 46
S_SEL = 48
S_TM0, S_TM1 = 56, 58
S_WBASE, S_WBASE_O, S_DBGM = 60, 61, 45
S_MASK_ODDL = 100
S_ST = 64
S_TS = 80
SRD_Q, SRD_K, SRD_V, SRD_O = 84, 88, 92, 96

V_LIN16, V_PLD, V_MST, V_QW, V_QR, V_K0, V_K1, V_OW, V_OR, V_VLD, V_IDX, V_WL = range(12)
V_VB = 12
V_VX = 16
V_ON16 = 24
R_X = 26
R_M, R_S, R_Q, R_K = 32, 64, 96, 112
V_WV = 128

def wq(ks, sel): return ar(0 + (ks * 2 + sel) * 8, 8)
def wk(ks, sel): return ar(96 + (ks * 2 + sel) * 8, 8)
def wo0(tau): return ar(192 + tau * 8, 8)
def wv(ks, sel): return vr(V_WV + (ks * 2 + sel) * 8, 8)

SOFT_C = (128 ** -0.5) * 1.4426950408889634
def f2u(x): return struct.unpack('<I', struct.pack('<f', x))[0]
WS = f's[{SRD_WS}:{SRD_WS+3}]'

class LG:
    def __init__(self, a):
        self.a = a; self.n = 0; self.tags = {}; self.done = 0
    def issue(self, text, tag=None):
        self.a(text); self.n += 1
        if tag is not None: self.tags[tag] = self.n
    def wait(self, tag):
        pos = self.tags[tag]
        if pos <= self.done: return
        k = self.n - pos
        self.a('    s_waitcnt lgkmcnt(%d)' % min(k, 15))
        self.done = self.n - min(k, 15)
    def wait_all(self):
        self.a('    s_waitcnt lgkmcnt(0)'); self.done = self.n

STAMP_RAW = 64
STAMP_ACC = 84
def stamp(a, cfg, k):
    if not cfg.get('stamp'): return
    a(f'    s_memtime s[{STAMP_RAW+2*k}:{STAMP_RAW+2*k+1}]')

def T(a, cfg, k):
    if 'trace' not in cfg: return
    if 'tmap' in cfg: return
    if k in cfg.get('tset', range(16)):
        a(f'    s_memtime s[{64+2*k}:{64+2*k+1}]')

def TN(a, cfg, name):
    tm = cfg.get('tmap')
    if tm and name in tm:
        k = tm[name]
        a(f'    s_memtime s[{64+2*k}:{64+2*k+1}]')

def trace_dump(a, cfg, w):
    if 'trace' not in cfg: return
    lab = f'L_trd{w}'
    a(f"""
    s_cmp_lg_u32 s{S_STEP}, {cfg['trace']}
    s_cbranch_scc1 {lab}
    s_waitcnt lgkmcnt(0)
    s_lshl_b32 s{S_T0}, s{S_H}, 2
    s_add_u32 s{S_T0}, s{S_T0}, {w}
    s_lshl_b32 s{S_T0}, s{S_T0}, 7
    s_add_u32 s{S_T0}, s{S_T0}, 0x8000
    s_mov_b64 exec, 1
    v_mov_b32 {vr(R_X)}, 0
""")
    for k in range(16):
        a(f'    v_mov_b32 {vr(R_X+1)}, s{64+2*k}')
        a(f'    buffer_store_dword {vr(R_X+1)}, {vr(R_X)}, {WS}, s{S_T0} offen offset:{4*k}')
    a(f'    s_mov_b64 exec, -1\n{lab}:')

def stamp_accum(a, cfg):
    if not cfg.get('stamp'): return
    a('    s_waitcnt lgkmcnt(0)')
    order = [9, 0, 1, 2, 3, 4, 5, 6, 7, 8]
    prev = 94
    for k in order:
        a(f'    s_sub_u32 s{S_T0}, s{STAMP_RAW+2*k}, s{prev}')
        a(f'    s_add_u32 s{STAMP_ACC+k}, s{STAMP_ACC+k}, s{S_T0}')
        prev = STAMP_RAW + 2 * k
    a(f'    s_mov_b32 s94, s{STAMP_RAW+2*8}')

DUMP_BASE = 0x0800_0000
_dumpn = [0]
def dump(a, cfg, w, slot, first, n):
    if 'dumpstep' not in cfg: return
    _dumpn[0] += 1
    lab = 'L_dmp%d' % _dumpn[0]
    a(f"""
    s_cmp_lg_u32 s{S_STEP}, {cfg['dumpstep']}
    s_cbranch_scc1 {lab}
    s_waitcnt lgkmcnt(0)
    s_nop 15
    s_lshl_b32 s{S_T0}, s{S_H}, 2
    s_add_u32 s{S_T0}, s{S_T0}, {w}
    s_lshl_b32 s{S_T0}, s{S_T0}, 15
    s_add_u32 s{S_T0}, s{S_T0}, {DUMP_BASE + slot * 0x400000}
""")
    for r in range(n):
        a(f'    buffer_store_dword {vr(first + r)}, {vr(V_LIN16)}, {WS}, s{S_T0} offen')
        a(f'    s_add_u32 s{S_T0}, s{S_T0}, 1024')
    a(f'{lab}:')

def smf(acc, A, B):
    return f'    v_smfmac_f32_16x16x64_bf16 {vr(acc,4)}, {vr(A,4)}, {B}, {vr(V_IDX)}'
def mf32(D, A, B, C):
    return f'    v_mfma_f32_16x16x32_bf16 {vr(D,4)}, {A}, {B}, {C}'
def pkadd(d, x, y):
    return f'    v_pk_add_f32 {vr(d,2)}, {vr(x,2)}, {vr(y,2)}'
def add2(d, x, y):
    return [f'    v_add_f32 {vr(d)}, {vr(x)}, {vr(y)}', f'    v_add_f32 {vr(d+1)}, {vr(x+1)}, {vr(y+1)}']
def cvt(d, x, y):
    return f'    v_cvt_pk_bf16_f32 {vr(d)}, {vr(x)}, {vr(y)}'

def emit_setup(a, cfg, w):
    t0, t1, t2 = R_X, R_X + 1, R_X + 2
    L = R_X + 5
    a(f'''
    v_and_b32 {vr(L)}, 63, v0
    v_lshlrev_b32 {vr(V_LIN16)}, 4, {vr(L)}
    s_lshl_b32 s{S_T0}, s{S_H}, 2
    s_add_u32 s{S_T0}, s{S_T0}, {w}          ; R
    v_lshrrev_b32 {vr(t0)}, 2, {vr(L)}
    v_lshlrev_b32 {vr(t0)}, 11, {vr(t0)}
    v_and_b32 {vr(t1)}, 3, {vr(L)}
    v_lshlrev_b32 {vr(t1)}, 4, {vr(t1)}
    v_add_u32 {vr(V_PLD)}, {vr(t0)}, {vr(t1)}
    s_lshr_b32 s{S_T1}, s{S_T0}, 4
    s_lshl_b32 s{S_T1}, s{S_T1}, 10
    s_and_b32 s{S_T2}, s{S_T0}, 3
    s_lshl_b32 s{S_T2}, s{S_T2}, 8
    s_add_u32 s{S_T1}, s{S_T1}, s{S_T2}
    s_and_b32 s{S_T2}, s{S_T0}, 12              ; gR*4
    s_lshl_b32 s{S_T2}, s{S_T2}, 4              ; 4 gR * 16
    s_add_u32 s{S_T1}, s{S_T1}, s{S_T2}
    v_bfe_u32 {vr(t0)}, {vr(L)}, 4, 1
    v_lshlrev_b32 {vr(t0)}, 5, {vr(t0)}
    v_bfe_u32 {vr(t1)}, {vr(L)}, 2, 1
    v_lshlrev_b32 {vr(t1)}, 4, {vr(t1)}
    v_and_b32 {vr(t2)}, 3, {vr(L)}
    v_lshlrev_b32 {vr(t2)}, 2, {vr(t2)}
    v_add3_u32 {vr(t0)}, {vr(t0)}, {vr(t1)}, {vr(t2)}
    v_add_u32 {vr(V_MST)}, s{S_T1}, {vr(t0)}
    v_and_b32 {vr(t0)}, 15, {vr(L)}
    v_lshlrev_b32 {vr(t0)}, 4, {vr(t0)}
    v_lshrrev_b32 {vr(t1)}, 4, {vr(L)}
    v_lshlrev_b32 {vr(t1)}, 2, {vr(t1)}
    v_add_u32 {vr(t0)}, {vr(t0)}, {vr(t1)}
    v_add_u32 {vr(V_QW)}, {LDS_QK + w * 1024}, {vr(t0)}
    v_lshrrev_b32 {vr(t0)}, 5, {vr(L)}
    v_lshlrev_b32 {vr(t0)}, 9, {vr(t0)}
    v_bfe_u32 {vr(t1)}, {vr(L)}, 4, 1
    v_lshlrev_b32 {vr(t1)}, 6, {vr(t1)}
    v_bfe_u32 {vr(t2)}, {vr(L)}, 2, 2
    v_lshlrev_b32 {vr(t2)}, 4, {vr(t2)}
    v_add3_u32 {vr(t0)}, {vr(t0)}, {vr(t1)}, {vr(t2)}
    v_bfe_u32 {vr(t1)}, {vr(L)}, 1, 1
    v_lshlrev_b32 {vr(t1)}, 3, {vr(t1)}
    v_add_u32 {vr(t0)}, {vr(t0)}, {vr(t1)}
    v_add_u32 {vr(V_QR)}, {LDS_QK}, {vr(t0)}
    v_lshrrev_b32 {vr(t0)}, 4, {vr(L)}
    v_lshlrev_b32 {vr(t0)}, 9, {vr(t0)}
    v_and_b32 {vr(t1)}, 15, {vr(L)}
    v_lshlrev_b32 {vr(t1)}, 4, {vr(t1)}
    v_add_u32 {vr(t0)}, {vr(t0)}, {vr(t1)}
    v_bfe_u32 {vr(t2)}, {vr(L)}, 3, 1
    v_lshlrev_b32 {vr(t2)}, 8, {vr(t2)}
    v_add_u32 {vr(V_K0)}, {vr(t0)}, {vr(t2)}
    v_add_u32 {vr(V_K0)}, {LDS_KB}, {vr(V_K0)}
    v_add_u32 {vr(V_K1)}, {LDS_KB + 128}, {vr(t0)}
    v_lshrrev_b32 {vr(t0)}, 4, {vr(L)}
    v_lshlrev_b32 {vr(t0)}, 7, {vr(t0)}
    v_bfe_u32 {vr(t1)}, {vr(L)}, 3, 1
    v_lshlrev_b32 {vr(t1)}, 6, {vr(t1)}
    v_and_b32 {vr(t2)}, 3, {vr(L)}
    v_lshlrev_b32 {vr(t2)}, 4, {vr(t2)}
    v_add3_u32 {vr(V_OW)}, {vr(t0)}, {vr(t1)}, {vr(t2)}
    v_lshrrev_b32 {vr(t0)}, 4, {vr(L)}
    v_lshlrev_b32 {vr(t0)}, 8, {vr(t0)}
    v_bfe_u32 {vr(t1)}, {vr(L)}, 1, 1
    v_lshlrev_b32 {vr(t1)}, 7, {vr(t1)}
    v_bfe_u32 {vr(t2)}, {vr(L)}, 2, 2
    v_lshlrev_b32 {vr(t2)}, 5, {vr(t2)}
    v_add3_u32 {vr(t0)}, {vr(t0)}, {vr(t1)}, {vr(t2)}
    v_and_b32 {vr(t1)}, 1, {vr(L)}
    v_lshlrev_b32 {vr(t1)}, 4, {vr(t1)}
    v_add_u32 {vr(t0)}, {vr(t0)}, {vr(t1)}
    v_add_u32 {vr(V_OR)}, {LDS_OX}, {vr(t0)}
    ; V_VLD = (g>>1)*1024 + (g&1)*512 + f16*16
    v_lshrrev_b32 {vr(t0)}, 5, {vr(L)}
    v_lshlrev_b32 {vr(t0)}, 10, {vr(t0)}
    v_bfe_u32 {vr(t1)}, {vr(L)}, 4, 1
    v_lshlrev_b32 {vr(t1)}, 9, {vr(t1)}
    v_and_b32 {vr(t2)}, 15, {vr(L)}
    v_lshlrev_b32 {vr(t2)}, 4, {vr(t2)}
    v_add3_u32 {vr(V_VLD)}, {vr(t0)}, {vr(t1)}, {vr(t2)}
    v_bfe_u32 {vr(t0)}, {vr(L)}, 1, 1
    v_mov_b32 {vr(t1)}, 0x4444
    v_mov_b32 {vr(t2)}, 0xeeee
    v_cmp_eq_u32 vcc, 1, {vr(t0)}
    v_cndmask_b32 {vr(V_IDX)}, {vr(t1)}, {vr(t2)}, vcc
    v_add_u32 {vr(V_WL)}, {LDS_W + w * 32768}, {vr(V_LIN16)}
    v_mov_b32 {vr(V_VB+1)}, 0
    v_mov_b32 {vr(V_VB+3)}, 0
    v_mov_b32 {vr(V_ON16)}, 0x3f803f80
    v_mov_b32 {vr(V_ON16+1)}, 0
    v_bfe_u32 {vr(t0)}, {vr(L)}, 1, 3
''')
    for u in range(4):
        a(f'    v_cmp_eq_u32 s[{S_SEL+2*u}:{S_SEL+2*u+1}], {u}, {vr(t0)}')
    a(f'''
    s_mov_b32 s{S_MASK_T}, 0x0f0f0f0f
    s_mov_b32 s{S_MASK_T+1}, 0x0f0f0f0f
    s_mov_b32 s{S_MASK_ODD}, 0xffff0000
    s_mov_b32 s{S_MASK_ODD+1}, 0xffff0000
    s_mov_b32 s{S_MASK_M}, 0x00ff00ff
    s_mov_b32 s{S_MASK_M+1}, 0
    s_mov_b32 s{S_MASK_PB}, 0xf0f0f0f0
    s_mov_b32 s{S_MASK_PB+1}, 0xf0f0f0f0
    s_mov_b32 s{S_C}, {f2u(SOFT_C):#x}
''')

def emit_init(a, cfg, w):
    t = R_S
    L = R_X + 5
    ST = 'sc1' if cfg.get('fallback') else cfg['st']
    a(f"""
    v_mov_b32 {vr(t)}, -1
    v_mov_b32 {vr(t+1)}, -1
    v_mov_b32 {vr(t+2)}, -1
    v_mov_b32 {vr(t+3)}, -1
""")
    a(f"""
    s_lshl_b32 s{S_T0}, s{S_H}, 13
    s_add_u32 s{S_T0}, s{S_T0}, {WS_P + w * 2048}
    buffer_store_dwordx4 {vr(t,4)}, {vr(V_LIN16)}, {WS}, s{S_T0} offen {ST}
    buffer_store_dwordx4 {vr(t,4)}, {vr(V_LIN16)}, {WS}, s{S_T0} offen offset:1024 {ST}
    s_add_u32 s{S_T0}, s{S_T0}, 262144
    buffer_store_dwordx4 {vr(t,4)}, {vr(V_LIN16)}, {WS}, s{S_T0} offen {ST}
    buffer_store_dwordx4 {vr(t,4)}, {vr(V_LIN16)}, {WS}, s{S_T0} offen offset:1024 {ST}
""")
    a(f"""
    s_lshl_b32 s{S_T0}, s{S_H}, 2
    s_add_u32 s{S_T0}, s{S_T0}, {w}
    s_lshr_b32 s{S_T1}, s{S_T0}, 4
    s_lshl_b32 s{S_T1}, s{S_T1}, 7
    s_and_b32 s{S_T2}, s{S_T0}, 3
    s_lshl_b32 s{S_T2}, s{S_T2}, 3          ; 4 ga * 2
    s_add_u32 s{S_T1}, s{S_T1}, s{S_T2}
    s_bfe_u32 s{S_T2}, s{S_T0}, 0x20002     ; gR
    s_lshl_b32 s{S_T2}, s{S_T2}, 11         ; 2 gR * 1024
    s_add_u32 s{S_T1}, s{S_T1}, s{S_T2}
    v_bfe_u32 {vr(t+4)}, {vr(L)}, 4, 1
    v_lshlrev_b32 {vr(t+4)}, 6, {vr(t+4)}    ; 32 half * 2
    v_bfe_u32 {vr(t+5)}, {vr(L)}, 2, 1
    v_lshlrev_b32 {vr(t+5)}, 10, {vr(t+5)}
    v_and_b32 {vr(t+6)}, 3, {vr(L)}
    v_lshlrev_b32 {vr(t+6)}, 1, {vr(t+6)}
    v_add3_u32 {vr(t+4)}, {vr(t+4)}, {vr(t+5)}, {vr(t+6)}
    v_add_u32 {vr(t+4)}, s{S_T1}, {vr(t+4)}
    buffer_load_ushort {vr(t+5)}, {vr(t+4)}, s[{SRD_A}:{SRD_A+3}], 0 offen
    buffer_load_ushort {vr(t+6)}, {vr(t+4)}, s[{SRD_A}:{SRD_A+3}], 0 offen offset:32
    s_waitcnt vmcnt(0)
    v_lshl_or_b32 {vr(t+5)}, {vr(t+6)}, 16, {vr(t+5)}
    v_min_u32 {vr(t+5)}, -2, {vr(t+5)}
    s_mov_b64 exec, s[{S_MASK_M}:{S_MASK_M+1}]
    s_mov_b32 s{S_T0}, {WS_M}
    buffer_store_dword {vr(t+5)}, {vr(V_MST)}, {WS}, s{S_T0} offen {ST}
    s_mov_b32 s{S_T0}, {WS_M + 8192}
    buffer_store_dword {vr(t)}, {vr(V_MST)}, {WS}, s{S_T0} offen {ST}
    s_mov_b32 s{S_T0}, {WS_M + 16384}
    buffer_store_dword {vr(t)}, {vr(V_MST)}, {WS}, s{S_T0} offen {ST}
""")
    if cfg.get('dbgm'):
        a(f"""
    s_mov_b32 s{S_T0}, {WS_DBGM}
    buffer_store_dword {vr(t+5)}, {vr(V_MST)}, {WS}, s{S_T0} offen
""")
    a(f"""
    s_mov_b64 exec, -1
    s_waitcnt vmcnt(0)
""")

def emit_weight_prologue(a, cfg, w, hook=None, hook2=None, hookA=None, hookB=None):
    L = R_X + 5
    vq0, vq1, vo0, vo1 = R_Q, R_Q + 1, R_Q + 2, R_Q + 3
    t0, t1, t2 = R_X, R_X + 1, R_X + 2
    tA, tB, tA2, tB2, tO = R_Q + 4, R_Q + 5, R_Q + 6, R_Q + 7, R_Q + 8
    for gb1, (vq, vo) in enumerate(((vq0, vo0), (vq1, vo1))):
        a(f'''
    v_lshrrev_b32 {vr(t0)}, 4, {vr(L)}                ; r
    v_bfe_u32 {vr(t1)}, {vr(L)}, 1, 3                 ; pp
    v_add_u32 {vr(t2)}, {gb1*4}, {vr(t0)}
    v_xor_b32 {vr(t1)}, {vr(t1)}, {vr(t2)}
    v_lshlrev_b32 {vr(t1)}, 5, {vr(t1)}
    v_and_b32 {vr(t2)}, 1, {vr(L)}
    v_lshlrev_b32 {vr(t2)}, 4, {vr(t2)}
    v_add_u32 {vr(t1)}, {vr(t1)}, {vr(t2)}
    v_and_b32 {vr(t2)}, 1, {vr(t0)}
    v_lshlrev_b32 {vr(t2)}, 17, {vr(t2)}
    v_add_u32 {vr(vq)}, {vr(t1)}, {vr(t2)}
    v_lshrrev_b32 {vr(t2)}, 1, {vr(t0)}
    v_lshlrev_b32 {vr(t2)}, 18, {vr(t2)}
    v_add_u32 {vr(vq)}, {vr(vq)}, {vr(t2)}
    v_and_b32 {vr(t2)}, 1, {vr(t0)}
    v_lshlrev_b32 {vr(t2)}, 10, {vr(t2)}
    v_add_u32 {vr(vo)}, {vr(t1)}, {vr(t2)}
    v_lshrrev_b32 {vr(t2)}, 1, {vr(t0)}
    v_lshlrev_b32 {vr(t2)}, 12, {vr(t2)}
    v_add_u32 {vr(vo)}, {vr(vo)}, {vr(t2)}
''')
    a(f'''
    v_lshrrev_b32 {vr(t0)}, 2, {vr(L)}
    v_lshlrev_b32 {vr(t1)}, 8, {vr(t0)}
    v_and_b32 {vr(t0)}, 7, {vr(t0)}
    v_lshlrev_b32 {vr(t0)}, 5, {vr(t0)}
    v_and_b32 {vr(t2)}, 3, {vr(L)}
    v_lshlrev_b32 {vr(t2)}, 3, {vr(t2)}
    v_add3_u32 {vr(t0)}, {vr(t0)}, {vr(t1)}, {vr(t2)}
    v_add_u32 {vr(tO)}, {LDS_W}, {vr(t0)}
    v_xor_b32 {vr(tA)}, {(2*w) << 5}, {vr(tO)}
    v_xor_b32 {vr(tB)}, 32, {vr(tA)}
    v_add_u32 {vr(tA2)}, 0x10000, {vr(tA)}
    v_add_u32 {vr(tB2)}, 0x10000, {vr(tB)}
    s_lshl_b32 s{S_WBASE}, s{S_H}, 8
    s_add_u32 s{S_WBASE}, s{S_WBASE}, {(8 * (w >> 1) + (w & 1)) * 8192}
    s_lshl_b32 s{S_WBASE_O}, s{S_H}, 17
    s_add_u32 s{S_WBASE_O}, s{S_WBASE_O}, {(32 * (w >> 1) + 2 * (w & 1)) * 1024}
''')
    units = []
    for m in ('q', 'k'):
        for ks in range(6): units.append((m, ks))
    for ks in range(8): units.append(('v', ks))
    for p in range(4): units.append(('o0', p))
    units += [('q', 6), ('o1', 0), ('q', 7), ('o1', 1), ('k', 6), ('o1', 2), ('k', 7), ('o1', 3)]
    srd = {'q': SRD_Q, 'k': SRD_K, 'v': SRD_V, 'o0': SRD_O, 'o1': SRD_O}
    def issue(u):
        m, x = units[u]
        slot = u % 8
        S = srd[m]
        for gb in range(4):
            if m in ('q', 'k', 'v'):
                uni = (64 * x + 4 * (gb >> 1) + 2 * (gb & 1)) * 8192
                vo = vq1 if gb & 1 else vq0
                base = S_WBASE
            else:
                kap = 0 if m == 'o0' else 1
                uni = (64 * kap + 16 * (gb & 1) + 8 * (gb >> 1)) * 1024 + x * 256
                vo = vo1 if gb & 1 else vo0
                base = S_WBASE_O
            a(f'''
    s_mov_b32 m0, {LDS_W + slot * 16384 + w * 4096 + gb * 1024}
    s_add_u32 s{S_T1}, s{base}, {uni}
    buffer_load_dwordx4 {vr(vo)}, s[{S}:{S+3}], s{S_T1} offen lds
''')
    def qkv_reads(slot, dsts):
        for sel in range(2):
            addr = (tA, tB)[sel] if slot < 4 else (tA2, tB2)[sel]
            off = (slot % 4) * 16384
            for U in range(4):
                a(f'    ds_read_b64_tr_b16 {dsts(sel, U)}, {vr(addr)} offset:{off + U * 4096}')
    def wo_reads(slot, dsts):
        a(f'    v_add_u32 {vr(tO+1)}, {slot * 16384}, {vr(tO)}')
        for tau in range(8):
            a(f'    v_xor_b32 {vr(tO+2)}, {tau << 5}, {vr(tO+1)}')
            for U in range(4):
                a(f'    ds_read_b64_tr_b16 {dsts(tau, U)}, {vr(tO+2)} offset:{U * 4096}')
            if tau % 2 == 1: a('    s_waitcnt lgkmcnt(0)')
    NIF = 7
    for u in range(NIF): issue(u)
    if hook: hook()
    for u in range(24):
        m, x = units[u]
        slot = u % 8
        a(f'    s_waitcnt vmcnt({4 * (NIF - 1)}) lgkmcnt(0)')
        a('    s_barrier')
        if m == 'v':
            qkv_reads(slot, lambda sel, U: vr(V_WV + (x * 2 + sel) * 8 + 2 * U, 2))
        elif m in ('q', 'k'):
            qkv_reads(slot, lambda sel, U: ar((0 if m == 'q' else 96) + (x * 2 + sel) * 8 + 2 * U, 2))
        elif x == w:
            wo_reads(slot, lambda tau, U: ar(192 + tau * 8 + 2 * U, 2))
        issue(u + NIF)
        if u == 14 and hookB: hookB()
    a('    s_waitcnt lgkmcnt(0)')
    a('    s_barrier')
    if hookA: hookA()
    issue(31)
    a('    s_waitcnt vmcnt(0)')
    a('    s_barrier')
    if hook2: hook2()
    for f2, slot in enumerate((0, 2, 4, 6)):
        qkv_reads(slot, lambda sel, U: vr(R_M + (f2 * 2 + sel) * 8 + 2 * U, 2))
        a('    s_waitcnt lgkmcnt(0)')
    a('    s_barrier')
    for f in range(8):
        for hh in range(2):
            a(f'    ds_write_b128 {vr(V_WL)}, {vr(R_M + f * 8 + 4 * hh, 4)} offset:{f * 2048 + hh * 1024}')
    a('    s_waitcnt lgkmcnt(0)')
    wo_reads(2 * w + 1, lambda tau, U: vr(R_M + tau * 8 + 2 * U, 2))
    a('    s_waitcnt lgkmcnt(0)')
    for f in range(8):
        for hh in range(2):
            a(f'    ds_write_b128 {vr(V_WL)}, {vr(R_M + f * 8 + 4 * hh, 4)} offset:{16384 + f * 2048 + hh * 1024}')
    a('    s_waitcnt lgkmcnt(0)')
    a('    s_barrier')

def stage(lg, dst, f, tag=None):
    return [(lambda hh=hh: lg.issue(f'    ds_read_b128 {vr(dst + 4*hh, 4)}, {vr(V_WL)} offset:{f * 2048 + hh * 1024}', tag if hh == 1 else None)) for hh in range(2)]

def poll_check(a, regs, retry):
    a(f"""
    v_max3_u32 {vr(R_X)}, {vr(regs)}, {vr(regs+1)}, {vr(regs+2)}
    v_max3_u32 {vr(R_X+1)}, {vr(regs+3)}, {vr(regs+4)}, {vr(regs+5)}
    v_max3_u32 {vr(R_X)}, {vr(R_X)}, {vr(regs+6)}, {vr(regs+7)}
    v_max_u32 {vr(R_X)}, {vr(R_X)}, {vr(R_X+1)}
    v_cmp_eq_u32 vcc, -1, {vr(R_X)}
    s_cbranch_vccnz {retry}
""")

def retry_block(a, name, back, done, loads):
    a(f"""
{name}:
    s_add_u32 s{S_CNT}, s{S_CNT}, 1
    s_cmp_lt_u32 s{S_CNT}, s{S_ERR}
    s_cbranch_scc0 {name}_to
{loads}
    s_branch {back}
{name}_to:
    s_mov_b32 s{S_ERR}, 0
    s_branch {done}
""")

HOP2_BOTH = [False]
def hop2_loads(w):
    if HOP2_BOTH[0]:
        PM = R_M + 8 * w
        return (f'    s_mov_b32 m0, {LDS_M + w * 2048}\n'
                f'    buffer_load_dwordx4 {vr(PM,4)}, {vr(V_LIN16)}, {WS}, s{S_MPOLL} offen sc1\n'
                f'    buffer_load_dwordx4 {vr(PM+4,4)}, {vr(V_LIN16)}, {WS}, s{S_MPOLL} offen offset:1024 sc1\n'
                f'    buffer_load_dwordx4 {vr(V_LIN16)}, {WS}, s{S_MPOLL} offen sc1 lds\n'
                f'    buffer_load_dwordx4 {vr(V_LIN16)}, {WS}, s{S_MPOLL} offen offset:1024 sc1 lds\n')
    return (f'    s_mov_b32 m0, {LDS_M + w * 2048}\n'
            f'    buffer_load_dwordx4 {vr(V_LIN16)}, {WS}, s{S_MPOLL} offen sc1 lds\n'
            f'    buffer_load_dwordx4 {vr(V_LIN16)}, {WS}, s{S_MPOLL} offen offset:1024 sc1 lds\n')
def own_reads(w):
    if HOP2_BOTH[0]: return '    s_waitcnt lgkmcnt(0)\n'
    PM = R_M + 8 * w
    return (f'    ds_read_b128 {vr(PM,4)}, {vr(V_LIN16)} offset:{LDS_M + w * 2048}\n'
            f'    ds_read_b128 {vr(PM+4,4)}, {vr(V_LIN16)} offset:{LDS_M + w * 2048 + 1024}\n'
            f'    s_waitcnt lgkmcnt(0)\n')
def hop1_loads():
    PA = R_Q
    return (f'    buffer_load_dwordx4 {vr(PA,4)}, {vr(V_LIN16)}, {WS}, s{S_PL0} offen sc1\n'
            f'    buffer_load_dwordx4 {vr(PA+4,4)}, {vr(V_LIN16)}, {WS}, s{S_PL0} offen offset:1024 sc1\n')

def idle_prep(a, lg):
    for f in range(4):
        for th in stage(lg, R_S + f * 8, f, f'wq{f}'): th()
    for r in range(16):
        a(f'    v_mov_b32 {vr(R_K + r)}, 0')

def weave(a, mf, fill):
    for i, m in enumerate(mf):
        if callable(m): m()
        else: a(m)
        for f in fill.get(i, []):
            if callable(f): f()
            else: a(f)

def mov64(r, src='0'):
    return f'    v_mov_b64 {vr(r,2)}, {src}'

class Sched:
    def __init__(self, a): self.a = a; self.mf = []; self.ds = {}; self.va = {}; self.pre = {}
    def add(self, m): self.mf.append(m); return len(self.mf) - 1
    def D(self, i, x): self.ds.setdefault(i, []).append(x)
    def V(self, i, x): self.va.setdefault(i, []).append(x)
    def P(self, i, x): self.pre.setdefault(i, []).append(x)
    def emit(self):
        run = lambda x: x() if callable(x) else self.a(x)
        for i, m in enumerate(self.mf):
            for x in self.pre.get(i, []): run(x)
            run(m)
            for x in self.ds.get(i, []): run(x)
            for x in self.va.get(i, []): run(x)

S_CC = 96
S_ONE2 = 98

def emit_step(a, cfg, w, last, ool):
    lg = LG(a)
    ST = cfg['st']
    tag = f'{w}' + ('l' if last else 'm') + cfg.get('sfx', '')
    own = (2 * w, 2 * w + 1)
    PM = R_M + 8 * w
    accQ, accK = R_K, R_K + 8
    X = R_X
    np2 = cfg.get('np2', 1)
    NRES = 2 if cfg.get('rstend') else 0
    tn = lambda n: (lambda: TN(a, cfg, n))
    NL2 = 4 if HOP2_BOTH[0] else 2
    a(f"    s_waitcnt vmcnt({NL2 * (np2 - 1) + NRES})")
    a(own_reads(w))
    poll_check(a, PM, f'L_p2r_{tag}')
    a(f'L_p2d_{tag}:')
    T(a, cfg, 0)
    def ool2():
        a(f"""
L_p2r_{tag}:
    s_add_u32 s{S_CNT}, s{S_CNT}, 1
    s_cmp_lt_u32 s{S_CNT}, s{S_ERR}
    s_cbranch_scc0 L_p2r_{tag}_to
""")
        a(hop2_loads(w))
        a(f"    s_waitcnt vmcnt({NL2 * (np2 - 1)})")
        a(own_reads(w))
        poll_check(a, PM, f'L_p2r_{tag}')
        a(f"""
    s_branch L_p2d_{tag}
L_p2r_{tag}_to:
    s_mov_b32 s{S_ERR}, 0
    s_branch L_p2d_{tag}
""")
    ool.append(ool2)
    stamp(a, cfg, 9)
    lg.n = 8; lg.done = 8
    for f in range(4): lg.tags[f'wq{f}'] = 2 * f + 2
    a('    s_barrier')
    T(a, cfg, 2)
    def Wq(ks, sel): return wq(ks, sel) if ks < 6 else vr(R_S + ((ks - 6) * 2 + sel) * 8, 8)
    def Wk(ks, sel): return wk(ks, sel) if ks < 6 else vr(R_S + ((ks - 6) * 2 + sel) * 8, 8)
    def Qs(ks, sel): return smf(accQ + 4 * sel, R_M + 4 * ks, Wq(ks, sel))
    def Ks(ks, sel): return smf(accK + 4 * sel, R_M + 4 * ks, Wk(ks, sel))
    accV = R_S + 16
    def Vs(ks, sel): return smf(accV + 4 * sel, R_M + 4 * ks, wv(ks, sel))
    others = [ks for ks in (6, 7, 0, 1, 2, 3, 4, 5) if ks not in own]
    mread = {ks: (lambda ks=ks: lg.issue(f'    ds_read_b128 {vr(R_M + 4*ks, 4)}, {vr(V_LIN16)} offset:{LDS_M + ks * 1024}', f'm{ks}')) for ks in others}
    wkst = []
    for f in range(4): wkst += stage(lg, R_S + f * 8, 4 + f, f'wk{f}')
    def waits(*tags):
        def f():
            for t in tags:
                if t in lg.tags: lg.wait(t)
        return f
    S = Sched(a)
    if not last:
        for ks in own:
            for sel in range(2): S.add(Qs(ks, sel))
    if w < 3:
        for ks in own:
            for sel in range(2): S.add(Ks(ks, sel))
    nE = len(S.mf)
    rd = list(others)
    mread[rd.pop(0)](); mread[rd.pop(0)]()
    stamp(a, cfg, 0)
    nvm = 0
    KP = X + 2
    pub_rd = [lambda: lg.issue(f'    ds_read_b64_tr_b16 {vr(KP, 2)}, {vr(V_QR)} offset:{256 + w * 1024}'),
              lambda: lg.issue(f'    ds_read_b64_tr_b16 {vr(KP + 2, 2)}, {vr(V_QR)} offset:{256 + w * 1024 + 128}', 'kp')]
    vmp = f'    buffer_store_dwordx4 {vr(V_VB,4)}, {vr(V_LIN16)}, {WS}, s{S_VMP} offen offset:{w * 1024} sc1'
    kmp = [waits('kp'), f'    s_mov_b64 exec, s[{S_MASK_T}:{S_MASK_T+1}]',
           f'    buffer_store_dwordx4 {vr(KP,4)}, {vr(V_OW)}, {WS}, s{S_KMP} offen offset:{w * 512} sc1', '    s_mov_b64 exec, -1']
    rst = [f'    buffer_store_dwordx4 {vr(R_Q+8,4)}, {vr(V_LIN16)}, {WS}, s{S_PR0} offen {ST}',
           f'    buffer_store_dwordx4 {vr(R_Q+8,4)}, {vr(V_LIN16)}, {WS}, s{S_PR0} offen offset:1024 {ST}']
    nvm += 2
    if not last:
        bg = [[f'    s_mov_b32 m0, s{S_KDST}', f'    buffer_load_dwordx4 {vr(V_LIN16)}, {WS}, s{S_KSRC} offen lds'],
              [f'    buffer_load_dwordx4 {vr(V_LIN16)}, {WS}, s{S_KSRC} offen offset:1024 lds'],
              [f'    s_mov_b32 m0, {LDS_MISC + w * 512}', f'    buffer_load_dword {vr(V_VLD)}, {WS}, s{S_VSRC} offen lds'],
              [f'    buffer_load_dword {vr(V_VLD)}, {WS}, s{S_VSRC} offen offset:256 lds']]
        nvm += 4
        if cfg.get('progress') and w == 0:
            bg.append([f'    s_lshl_b32 s{S_T0}, s{S_H}, 7', f'    s_add_u32 s{S_T0}, s{S_T0}, {FL_P}',
                       f'    s_sub_u32 s{S_T1}, s{S_STEP}, 1', f'    s_max_i32 s{S_T1}, s{S_T1}, 0', f'    v_mov_b32 {vr(X)}, s{S_T1}', f'    v_mov_b32 {vr(X+1)}, 0', f'    s_mov_b64 exec, 1',
                       f'    buffer_store_dword {vr(X)}, {vr(X+1)}, {WS}, s{S_T0} offen sc1', f'    s_mov_b64 exec, -1'])
            nvm += 1
        laststagedQ = None
        for ks in others:
            for sel in range(2):
                i = S.add(Qs(ks, sel))
                if sel == 0: S.P(i, waits(f'm{ks}'))
                if ks >= 6: laststagedQ = i
        if laststagedQ is None: laststagedQ = 3
        g = 0
        while rd:
            S.D(g, mread[rd.pop(0)]); g += 1
        S.D(g, pub_rd[0]); S.D(g + 1, pub_rd[1]); g += 2
        for gi, grp in zip((1, 4, 6, 9, 11), bg):
            for x in grp: S.V(gi, x)
        if cfg.get('rstE'):
            S.V(cfg.get('rp0', 2), rst[0]); S.V(cfg.get('rp1', 13), rst[1]); nvm += 2
        g = max(g, laststagedQ)
        k = 0
        while k < 8 and g < len(S.mf):
            S.D(g, wkst[k]); k += 1; g += 1
        S.emit()
        while k < 8: wkst[k](); k += 1
    else:
        for ks in rd: mread[ks]()
        for th in pub_rd: th()
        a(vmp)
        for x in kmp: x() if callable(x) else a(x)
        if nE > 0: S.emit()
        for th in wkst: th()
    stamp(a, cfg, 1); T(a, cfg, 3); TN(a, cfg, 'Qend')
    nonst = [ks for ks in others if ks < 6]
    if w < 3: kord = [6, nonst[0], 7] + nonst[1:]
    else: kord = [0, 6, 1, 7, 2, 3, 4, 5]
    S = Sched(a)
    pos6 = pos7 = None
    for ks in kord:
        for sel in range(2):
            i = S.add(Ks(ks, sel))
            if sel == 0:
                t = [f'm{ks}']
                if ks >= 6: t.append(f'wk{(ks - 6) * 2 + 1}')
                S.P(i, waits(*t))
            if ks == 6: pos6 = i
            if ks == 7: pos7 = i
    nk = len(S.mf)
    accV = R_K
    def Vs(ks, sel): return smf(accV + 4 * sel, R_M + 4 * ks, wv(ks, sel))
    Sx, KA, Sm, ON, Pq, PM16, Lx, Ox = R_K + 8, R_M, R_M + 16, R_M + 20, R_M + 24, R_M + 28, X, R_K
    kx = {(tau, k2): (lambda tau=tau, k2=k2: lg.issue(f'    ds_read_b128 {vr(R_S + tau*16 + 4*k2, 4)}, {vr((V_K0, V_K1)[tau])} offset:{k2 * 2048}', f'kx{tau}{k2}'))
          for tau in range(2) for k2 in range(4)}
    if not last:
        qa, qb_ = add2(accQ, accQ, accQ + 2), add2(accQ + 4, accQ + 4, accQ + 6)
        S.V(1, qa[0]); S.V(2, qa[1]); S.V(2, qb_[0]); S.V(3, qb_[1]); S.V(3, cvt(accQ, accQ, accQ + 1)); S.V(4, cvt(accQ + 4, accQ + 4, accQ + 5))
        S.D(5, lambda: lg.issue(f'    ds_write2_b32 {vr(V_QW)}, {vr(accQ)}, {vr(accQ+4)} offset0:0 offset1:128', 'qw'))
        g = max(pos6 + 1, 2)
        for k2 in range(4):
            S.D(g, kx[(0, k2)]); g += 1
        g = max(g, pos7 + 1, 6)
        kx1 = [kx[(1, k2)] for k2 in range(4)]
        while kx1 and g < nk:
            S.D(g, kx1.pop(0)); g += 1
        S.V(7, vmp)
        S.P(nk - 3, waits('qw'))
        S.V(nk - 3, mov64(accV)); S.V(nk - 2, mov64(accV + 2)); S.V(nk - 1, mov64(accV + 4)); S.V(nk - 1, mov64(accV + 6))
        S.V(3, tn('k3')); S.V(7, tn('k7'))
        S.emit()
        for th in kx1: th()
    else:
        S.emit()
        for r in range(0, 8, 2): a(mov64(accV + r))
    stamp(a, cfg, 2); T(a, cfg, 5); TN(a, cfg, 'Kend')
    kf = add2(accK, accK, accK + 2) + add2(accK + 4, accK + 4, accK + 6) + [cvt(accK, accK, accK + 1), cvt(accK + 4, accK + 4, accK + 5)]
    kw = lambda: lg.issue(f'    ds_write2_b32 {vr(V_QW)}, {vr(accK)}, {vr(accK+4)} offset0:64 offset1:192', 'kw')
    qb = [(lambda k2=k2, hh=hh: lg.issue(f'    ds_read_b64_tr_b16 {vr(R_Q + 4*k2 + 2*hh, 2)}, {vr(V_QR)} offset:{k2 * 1024 + hh * 128}', f'q{k2}'))
          for k2 in range(4) for hh in range(2)]
    kar = [(lambda k2=k2, hh=hh: lg.issue(f'    ds_read_b64_tr_b16 {vr(KA + 4*k2 + 2*hh, 2)}, {vr(V_QR)} offset:{256 + k2 * 1024 + hh * 128}', f'k{k2}'))
           for k2 in range(4) for hh in range(2)]
    vm = [Vs(ks, sel) for ks in range(8) for sel in range(2)]
    MX, T1, NEG, al = X, X + 1, X + 2, X + 4
    S = Sched(a)
    for x in vm: S.add(x)
    S.V(1, kf[0]); S.V(1, kf[1]); S.V(2, kf[2]); S.V(2, kf[3]); S.V(3, kf[4]); S.V(3, kf[5]); S.D(4, kw)
    gb = cfg.get('gb2', 8)
    if not last:
        for x in kmp: S.D(gb, x)
    S.D(gb, waits('kw')); S.D(gb, '    s_barrier'); S.D(gb, tn('B2'))
    if not last:
        for k, th in enumerate(qb): S.D(min(gb + k, 15), th)
    S.V(3, tn('v3')); S.V(7, tn('v7'))
    S.emit()
    if last:
        kmst = [f'    s_mov_b64 exec, s[{S_MASK_T}:{S_MASK_T+1}]',
                f'    buffer_store_dwordx4 {vr(KA + 4*w,4)}, {vr(V_OW)}, {WS}, s{S_KMO} offen offset:{w * 512} sc1',
                f'    s_mov_b64 exec, -1']
        for th in kar: th()
        a(pkadd(accV, accV, accV + 2)); a(pkadd(accV + 4, accV + 4, accV + 6))
        a(cvt(V_VB, accV, accV + 1)); a(cvt(V_VB + 2, accV + 4, accV + 5))
        a(f'    buffer_store_dwordx4 {vr(V_VB,4)}, {vr(V_LIN16)}, {WS}, s{S_VMO} offen offset:{w * 1024} sc1')
        lg.wait('k3')
        for x in kmst: a(x)
        return
    stamp(a, cfg, 3); T(a, cfg, 6); TN(a, cfg, 'Vend')
    a(f'    s_waitcnt vmcnt({nvm})')
    for th in kar[:4]: th()
    S = Sched(a)
    for tau in range(2):
        for k2 in range(4):
            i = S.add(mf32(Sx + 4 * tau, vr(R_S + tau * 16 + 4 * k2, 4), vr(R_Q + 4 * k2, 4), '0' if k2 == 0 else vr(Sx + 4 * tau, 4)))
            S.P(i, waits(f'q{k2}', f'kx{tau}{k2}'))
    for k, th in enumerate(kar[4:]): S.D(k, th)
    va, vb_ = add2(accV, accV, accV + 2), add2(accV + 4, accV + 4, accV + 6)
    S.V(1, va[0]); S.V(1, va[1]); S.V(2, vb_[0]); S.V(2, vb_[1])
    S.V(4, cvt(V_VB, accV, accV + 1)); S.V(4, cvt(V_VB + 2, accV + 4, accV + 5))
    S.V(3, mov64(ON, f's[{S_ONE2}:{S_ONE2+1}]')); S.V(3, mov64(ON + 2, f's[{S_ONE2}:{S_ONE2+1}]'))
    S.V(6, f'    v_max3_f32 {vr(MX)}, {vr(Sx)}, {vr(Sx+1)}, {vr(Sx+2)}')
    S.V(7, f'    v_max_f32 {vr(MX)}, {vr(MX)}, {vr(Sx+3)}')
    b = len(S.mf)
    for k2 in range(4):
        i = S.add(mf32(Sm, vr(KA + 4 * k2, 4), vr(R_Q + 4 * k2, 4), '0' if k2 == 0 else vr(Sm, 4)))
        S.P(i, waits(f'k{k2}'))
    stg = []
    for tau in range(4): stg += stage(lg, R_S + tau * 8, 8 + tau, f'wo{tau}')
    S.D(4, stg[0]); S.D(5, stg[1]); S.D(6, stg[2]); S.D(7, stg[3])
    S.D(b, stg[4]); S.D(b + 1, stg[5]); S.D(b + 2, stg[6]); S.D(b + 3, stg[7])
    S.V(b + 1, f'    v_max3_f32 {vr(T1)}, {vr(Sx+4)}, {vr(Sx+5)}, {vr(Sx+6)}')
    S.V(b + 1, mov64(R_Q)); S.V(b + 2, mov64(R_Q + 2)); S.V(b + 3, mov64(R_Q + 4)); S.V(b + 3, mov64(R_Q + 6))
    S.V(b + 2, f'    v_max3_f32 {vr(MX)}, {vr(MX)}, {vr(Sx+7)}, {vr(T1)}')
    S.V(0, tn('sx0')); S.V(3, tn('sx3')); S.V(7, tn('sx7')); S.V(b, tn('smm0')); S.V(b + 3, tn('smm3'))
    S.emit()
    stamp(a, cfg, 4); T(a, cfg, 8)
    stg2 = []
    for tau in range(4, 6): stg2 += stage(lg, R_M + (tau - 4) * 8, 8 + tau, f'wo{tau}')
    seq = [mov64(R_Q + 8), mov64(R_Q + 10), mov64(R_Q + 12), mov64(R_Q + 14), stg2[0], stg2[1],
           f'    v_max3_f32 {vr(MX)}, {vr(MX)}, {vr(Sm)}, {vr(Sm+1)}',
           f'    v_max3_f32 {vr(MX)}, {vr(MX)}, {vr(Sm+2)}, {vr(Sm+3)}',
           f'    v_cndmask_b32 {vr(Sm)}, {vr(Sm)}, {vr(Sm+2)}, s[{S_MASK_ODD}:{S_MASK_ODD+1}]',
           f'    v_mov_b32 {vr(T1)}, {vr(MX)}',
           f'    v_cndmask_b32 {vr(Sm+1)}, {vr(Sm+1)}, {vr(Sm+3)}, s[{S_MASK_ODD}:{S_MASK_ODD+1}]',
           stg2[2],
           f'    v_permlane16_swap_b32 {vr(MX)}, {vr(T1)}',
           f'    v_max_f32 {vr(MX)}, {vr(MX)}, {vr(T1)}',
           f'    v_mov_b32 {vr(T1)}, {vr(MX)}',
           stg2[3], f'    v_mov_b32 {vr(PM16+1)}, 0',
           f'    v_permlane32_swap_b32 {vr(MX)}, {vr(T1)}',
           f'    v_max_f32 {vr(MX)}, {vr(MX)}, {vr(T1)}',
           f'    v_mul_f32 {vr(NEG)}, s{S_C}, {vr(MX)}']
    for r in [Sx, Sx + 2, Sx + 4, Sx + 6, Sm]:
        seq.append(f'    v_pk_fma_f32 {vr(r,2)}, {vr(r,2)}, s[{S_CC}:{S_CC+1}], {vr(NEG,2)} op_sel_hi:[1,1,0] neg_lo:[0,0,1] neg_hi:[0,0,1]')
    for r in list(range(Sx, Sx + 8)) + [Sm, Sm + 1]:
        seq.append(f'    v_exp_f32 {vr(r)}, {vr(r)}')
    for r in range(4):
        seq.append(cvt(Pq + r, Sx + 2 * r, Sx + 2 * r + 1))
    seq.append(cvt(PM16, Sm, Sm + 1))
    for x in seq: x() if callable(x) else a(x)
    TN(a, cfg, 'pvx')
    S = Sched(a)
    S.add(mf32(Ox, vr(V_VX, 4), vr(Pq, 4), '0'))
    S.add(mf32(Ox + 4, vr(V_VX + 4, 4), vr(Pq, 4), '0'))
    S.add(mf32(Lx, vr(ON, 4), vr(Pq, 4), '0'))
    S.add(f'    v_mfma_f32_16x16x16_bf16 {vr(Lx, 4)}, {vr(V_ON16, 2)}, {vr(PM16, 2)}, {vr(Lx, 4)}')
    for phi in range(2):
        S.add(f'    v_mfma_f32_16x16x16_bf16 {vr(Ox + 4*phi, 4)}, {vr(V_VB + 2*phi, 2)}, {vr(PM16, 2)}, {vr(Ox + 4*phi, 4)}')
    S.V(1, mov64(Sx)); S.V(1, mov64(Sx + 2)); S.V(2, mov64(Sx + 4)); S.V(2, mov64(Sx + 6))
    S.V(2, f'    buffer_load_dwordx4 {vr(V_VX,4)}, {vr(V_VLD)}, {WS}, s{S_VSRC} offen')
    S.V(3, f'    buffer_load_dwordx4 {vr(V_VX+4,4)}, {vr(V_VLD)}, {WS}, s{S_VSRC} offen offset:256')
    S.emit()
    TN(a, cfg, 'pvm')
    a(f'    v_rcp_f32 {vr(al)}, {vr(Lx)}')
    TN(a, cfg, 'rcp')
    dump(a, cfg, w, 2, Ox, 8)
    O4 = Pq
    if cfg.get('pkm'):
        for r in range(4):
            a(f'    v_pk_mul_f32 {vr(Ox+2*r,2)}, {vr(Ox+2*r,2)}, {vr(al,2)} op_sel_hi:[1,0]')
        for r in range(4): a(cvt(O4 + r, Ox + 2 * r, Ox + 2 * r + 1))
    else:
        for r in range(4):
            a(f'    v_mul_f32 {vr(Ox+2*r)}, {vr(Ox+2*r)}, {vr(al)}')
            a(f'    v_mul_f32 {vr(Ox+2*r+1)}, {vr(Ox+2*r+1)}, {vr(al)}')
            a(cvt(O4 + r, Ox + 2 * r, Ox + 2 * r + 1))
    a(f'    s_mov_b64 exec, s[{S_MASK_T}:{S_MASK_T+1}]')
    lg.issue(f'    ds_write_b128 {vr(V_OW)}, {vr(O4,4)} offset:{LDS_OX + w * 512}', 'ow')
    a('    s_mov_b64 exec, -1')
    stg6 = stage(lg, R_M + 16, 8 + 6, 'wo6')
    stg6[0](); stg6[1]()
    if not cfg.get('rstE'):
        a(mov64(X + 2, '-1')); a(mov64(X + 4, '-1'))
        a(f'    buffer_store_dwordx4 {vr(X+2,4)}, {vr(V_LIN16)}, {WS}, s{S_PR0} offen {ST}')
    T(a, cfg, 9); TN(a, cfg, 'ow')
    lg.wait('ow')
    a('    s_barrier')
    T(a, cfg, 10); TN(a, cfg, 'B3')
    OA = R_M + 24
    for kap in range(2):
        lg.issue(f'    ds_read_b128 {vr(OA + 4*kap, 4)}, {vr(V_OR)} offset:{kap * 1024}', f'oa{kap}')
    if not cfg.get('rstE'):
        a(f'    buffer_store_dwordx4 {vr(X+2,4)}, {vr(V_LIN16)}, {WS}, s{S_PR0} offen offset:1024 {ST}')
    stamp(a, cfg, 5)
    dump(a, cfg, w, 4, OA, 8)
    accO = [R_Q + 4 * i for i in range(4)] + [R_K + 4 * i for i in range(4)]
    def src1(tau): return R_S + tau * 8 if tau < 4 else (R_M + (tau - 4) * 8 if tau < 7 else R_S)
    last7 = stage(lg, R_S, 8 + 7, 'wo7')
    S = Sched(a)
    order = [(0,0),(1,0),(2,0),(3,0),(0,1),(1,1),(2,1),(3,1),(4,0),(5,0),(6,0),(7,0),(4,1),(5,1),(6,1),(7,1)]
    idx = {}
    for tau, kap in order:
        if kap == 0:
            i = S.add(smf(accO[tau], OA, wo0(tau))); S.P(i, waits('oa0'))
        else:
            i = S.add(smf(accO[tau], OA + 4, vr(src1(tau), 8))); S.P(i, waits('oa1', f'wo{tau}'))
        idx[(tau, kap)] = i
    S.D(idx[(0, 1)] + 1, last7[0]); S.D(idx[(0, 1)] + 2, last7[1])
    for k in range(4): S.V(k, mov64(R_K + 2 * k))
    def fold(tau): return pkadd(accO[tau], accO[tau], accO[tau] + 2)
    def pack(q, t):
        T0_ = accO[4 * q]
        return cvt(T0_ + t, accO[4 * q + t], accO[4 * q + t] + 1)
    def pstore(q): return f'    buffer_store_dwordx4 {vr(accO[4*q],4)}, {vr(V_PLD)}, {WS}, s{S_PST if q == 0 else S_PL1} offen {ST}'
    f2 = lambda tau: add2(accO[tau], accO[tau], accO[tau] + 2)
    for x in f2(0): S.V(7, x)
    for x in f2(1): S.V(8, x)
    S.V(9, pack(0, 0)); S.V(9, f2(2)[0]); S.V(10, f2(2)[1]); S.V(10, pack(0, 1)); S.V(11, f2(3)[0]); S.V(11, f2(3)[1])
    S.V(12, pack(0, 2)); S.V(12, pack(0, 3)); S.V(13, pstore(0))
    S.V(15, f2(4)[0]); S.V(15, f2(4)[1])
    S.V(0, tn('wo0')); S.V(7, tn('wo7')); S.V(15, tn('wo15'))
    S.emit()
    for x in [pack(1, 0)] + f2(5) + [pack(1, 1)] + f2(6) + [pack(1, 2)] + f2(7) + [pack(1, 3), pstore(1)]: a(x)
    stamp(a, cfg, 6); T(a, cfg, 11); TN(a, cfg, 'Woend')
    PA, D, SEL = R_Q, R_Q + 8, R_Q + 12
    lg2 = LG(a)
    a(f'    v_mov_b32 {vr(X)}, 0x3f80')
    a(f'    v_mov_b32 {vr(X+1)}, 0x3f800000')
    a(f'    v_cndmask_b32 {vr(X)}, {vr(X)}, {vr(X+1)}, s[{S_MASK_ODDL}:{S_MASK_ODDL+1}]')
    for u in range(4):
        a(f'    v_cndmask_b32 {vr(SEL+u)}, 0, {vr(X)}, s[{S_SEL+2*u}:{S_SEL+2*u+1}]')
    for f in range(4):
        for th in stage(lg2, R_S + f * 8, f): th()
    for r in range(0, 16, 2): a(mov64(R_K + r))
    a(mov64(X + 2, '-1')); a(mov64(X + 4, '-1'))
    a(f'    s_mov_b32 s{S_CNT}, 0')
    delay(a, cfg.get('d1', 0))
    a(hop1_loads())
    T(a, cfg, 12)
    np1 = cfg.get('np1', 1)
    for i in range(np1 - 1):
        delay(a, cfg.get('g1', 0))
        a(hop1_loads())
    if cfg.get('fused'):
        a(f"""
    s_and_b32 s{S_T0}, s{S_STEP}, 7
    s_cmp_eq_u32 s{S_T0}, 6
    s_cbranch_scc0 L_nkv_{tag}
    s_add_u32 s{S_T0}, s{S_STEP}, 2
    s_lshr_b32 s{S_T0}, s{S_T0}, 3
    s_lshl_b32 s{S_T0}, s{S_T0}, 7
    s_add_u32 s{S_T0}, s{S_T0}, {FL_G1}
    v_mov_b32 {vr(X)}, s{S_T0}
    buffer_load_dword {vr(X+1)}, {vr(X)}, {WS}, 0 offen sc1
    s_waitcnt vmcnt(0)
L_nkv_{tag}:
""")
    a(f'L_p1w_{tag}:')
    a(f'    s_waitcnt vmcnt({2 * (np1 - 1)})')
    a(mf32(D, vr(SEL, 4), vr(PA, 4), '0'))
    a(mf32(D, vr(SEL, 4), vr(PA + 4, 4), vr(D, 4)))
    a(f'    v_cmp_u_f32 vcc, {vr(D)}, {vr(D)}')
    a(f'    s_cbranch_vccnz L_p1r_{tag}')
    a(f'L_p1d_{tag}:')
    ool.append(lambda: retry_block(a, f'L_p1r_{tag}', f'L_p1w_{tag}', f'L_p1d_{tag}', hop1_loads()))
    stamp(a, cfg, 7); T(a, cfg, 13)
    for r in range(4):
        a(f'    v_add_f32_dpp {vr(D+r)}, {vr(D+r)}, {vr(D+r)} row_ror:8 row_mask:0xf bank_mask:0xf')
    for r in range(4):
        a(f'    v_add_f32_dpp {vr(D+r)}, {vr(D+r)}, {vr(D+r)} row_ror:4 row_mask:0xf bank_mask:0xf')
    a(f"""
    v_cvt_pk_bf16_f32 {vr(D)}, {vr(D)}, {vr(D+2)}
    v_cvt_pk_bf16_f32 {vr(D+1)}, {vr(D+1)}, {vr(D+3)}
    s_mov_b64 exec, s[{S_MASK_M}:{S_MASK_M+1}]
    v_cndmask_b32 {vr(D)}, {vr(D)}, {vr(D+1)}, s[{S_MASK_PB}:{S_MASK_PB+1}]
    v_min_u32 {vr(D)}, -2, {vr(D)}
    buffer_store_dword {vr(D)}, {vr(V_MST)}, {WS}, s{S_MNXT} offen {ST}
""")
    if cfg.get('dbgm'):
        a(f"""
    s_add_u32 s{S_DBGM}, s{S_DBGM}, 8192
    buffer_store_dword {vr(D)}, {vr(V_MST)}, {WS}, s{S_DBGM} offen
""")
    a(f"""
    buffer_store_dword {vr(X+2)}, {vr(V_MST)}, {WS}, s{S_MCUR} offen {ST}
    s_mov_b64 exec, -1
""")
    stamp(a, cfg, 8); T(a, cfg, 14)
    a(f"""
    s_add_u32 s{S_MPOLL}, s{S_MNXT}, {w * 2048}
    s_mov_b32 s{S_CNT}, 0
    s_add_u32 s{S_STEP}, s{S_STEP}, 1
""")
    if cfg.get('fused'):
        a(f"""
    s_and_b32 s{S_T0}, s{S_STEP}, 7
    s_cmp_eq_u32 s{S_T0}, 7
    s_cbranch_scc0 L_ckv_{tag}
    s_cmp_ge_u32 s{S_STEP}, 57
    s_cbranch_scc1 L_ckv_{tag}
L_ckvl_{tag}:
    v_readfirstlane_b32 s{S_T0}, {vr(X+1)}
    s_and_b32 s{S_T0}, s{S_T0}, 0xff
    s_cmp_eq_u32 s{S_T0}, 128
    s_cbranch_scc1 L_ckv_{tag}
    s_add_u32 s{S_CNT}, s{S_CNT}, 1
    s_cmp_lt_u32 s{S_CNT}, 400000
    s_cbranch_scc0 L_ckv_{tag}
    s_sleep 2
    buffer_load_dword {vr(X+1)}, {vr(X)}, {WS}, 0 offen sc1
    s_waitcnt vmcnt(0)
    s_branch L_ckvl_{tag}
L_ckv_{tag}:
    s_mov_b32 s{S_CNT}, 0
""")
    delay(a, cfg.get('d2', 0))
    a(hop2_loads(w))
    a(f"""
    s_mov_b32 s{S_T0}, s{S_MCUR}
    s_mov_b32 s{S_MCUR}, s{S_MNXT}
    s_mov_b32 s{S_MNXT}, s{S_MOTH}
    s_mov_b32 s{S_MOTH}, s{S_T0}
    s_xor_b32 s{S_PST}, s{S_PST}, 0x40000
    s_mov_b32 s{S_PR0}, s{S_PL0}
    s_xor_b32 s{S_PL0}, s{S_PL0}, 0x40000
    s_xor_b32 s{S_PL1}, s{S_PL1}, 0x40000
    s_add_u32 s{S_KSRC}, s{S_KSRC}, 0x40000
    s_xor_b32 s{S_KDST}, s{S_KDST}, 8192
    s_add_u32 s{S_VSRC}, s{S_VSRC}, 0x40000
    s_mov_b32 s{S_KMP}, s{S_KMO}
    s_mov_b32 s{S_VMP}, s{S_VMO}
    s_add_u32 s{S_KMO}, s{S_KMO}, 65536
    s_add_u32 s{S_VMO}, s{S_VMO}, 131072
    v_xor_b32 {vr(V_K0)}, 0x2000, {vr(V_K0)}
    v_xor_b32 {vr(V_K1)}, 0x2000, {vr(V_K1)}
""")
    if cfg.get('clk') and w == 0:
        a(f"""
    s_and_b32 s{S_T0}, s{S_STEP}, 7
    s_cmp_eq_u32 s{S_T0}, 0
    s_cbranch_scc0 L_clk_{tag}
    s_cmp_eq_u32 s{S_H}, 0
    s_cbranch_scc0 L_clk_{tag}
    s_memtime s[64:65]
    s_memrealtime s[66:67]
    s_waitcnt lgkmcnt(0)
    s_lshl_b32 s{S_T0}, s{S_STEP}, 1
    s_add_u32 s{S_T0}, s{S_T0}, 0x30000
    s_mov_b64 exec, 1
    v_mov_b32 {vr(X)}, s64
    v_mov_b32 {vr(X+1)}, 0
    buffer_store_dword {vr(X)}, {vr(X+1)}, {WS}, s{S_T0} offen
    v_mov_b32 {vr(X)}, s66
    buffer_store_dword {vr(X)}, {vr(X+1)}, {WS}, s{S_T0} offen offset:4
    s_mov_b64 exec, -1
L_clk_{tag}:
""")
    T(a, cfg, 15)
    stamp_accum(a, cfg)
    trace_dump(a, cfg, w)
    for i in range(np2 - 1):
        delay(a, cfg.get('g2', 0))
        a(hop2_loads(w))
    if cfg.get('rstend'):
        delay(a, cfg.get('d3', 0))
        a(f'    buffer_store_dwordx4 {vr(X+2,4)}, {vr(V_LIN16)}, {WS}, s{S_PR0} offen {ST}')
        a(f'    buffer_store_dwordx4 {vr(X+2,4)}, {vr(V_LIN16)}, {WS}, s{S_PR0} offen offset:1024 {ST}')
    else:
        a(mov64(R_Q + 8, '-1')); a(mov64(R_Q + 10, '-1'))

def emit_wave(a, cfg, w):
    ool = []
    emit_setup(a, cfg, w)
    def hook():
        if cfg.get('fused'):
            a(f"""
    s_cmp_lg_u32 s{S_H}, 0
    s_cbranch_scc1 L_nofi_{w}
    v_mov_b64 {vr(R_S,2)}, 0
    v_mov_b64 {vr(R_S+2,2)}, 0
    s_mov_b32 s{S_T0}, {WS_FL + w * 4096}
""")
            for i in range(4):
                a(f'    buffer_store_dwordx4 {vr(R_S,4)}, {vr(V_LIN16)}, {WS}, s{S_T0} offen offset:{i * 1024} sc1')
            a(f"""
L_nofi_{w}:
""")
        emit_init(a, cfg, w)
        a('    s_barrier')
        if w == 0:
            if cfg.get('fused'):
                a(f"""
    s_cmp_lg_u32 s{S_H}, 0
    s_cbranch_scc1 L_nofj
    s_mov_b64 exec, 1
    v_mov_b32 {vr(R_S)}, {DB_INIT}
    v_mov_b32 {vr(R_S+1)}, 1
    global_store_dword {vr(R_S)}, {vr(R_S+1)}, s[{S_DBG}:{S_DBG+1}] sc1
    s_mov_b64 exec, -1
L_nofj:
""")
            a(f"""
    s_mov_b64 exec, 1
    v_mov_b32 {vr(R_S)}, {DB_CBAR}
    v_mov_b32 {vr(R_S+1)}, s{S_ARR}
    global_atomic_add {vr(R_S)}, {vr(R_S+1)}, s[{S_DBG}:{S_DBG+1}] sc1
    s_mov_b64 exec, -1
    s_waitcnt vmcnt(0)
""")
    def hookB():
        a(f"""
    v_mov_b32 {vr(V_VX+3)}, {DB_INIT}
    global_load_dword {vr(V_VX)}, {vr(V_VX+3)}, s[{S_DBG}:{S_DBG+1}] sc1
    v_mov_b32 {vr(V_VX+4)}, {DB_CBAR}
    global_load_dword {vr(V_VX+1)}, {vr(V_VX+4)}, s[{S_DBG}:{S_DBG+1}] sc1
""")
    def hookA():
        a(f"""
    v_mov_b32 {vr(V_VX+5)}, {FL_G1}
    buffer_load_dword {vr(V_VX+2)}, {vr(V_VX+5)}, {WS}, 0 offen sc1
""")
    def hook2():
        a(f"""
    v_readfirstlane_b32 s{S_T0}, {vr(V_VX+1)}
    s_lshr_b32 s{S_MODE}, s{S_T0}, 16
    s_and_b32 s{S_T0}, s{S_T0}, 0xffff
    s_cmp_ge_u32 s{S_T0}, 32
    s_cbranch_scc1 L_cbd{w}
    v_mov_b32 {vr(R_X)}, {DB_CBAR}
    s_mov_b32 s{S_CNT}, 0
L_cb{w}:
    global_load_dword {vr(R_X+1)}, {vr(R_X)}, s[{S_DBG}:{S_DBG+1}] sc1
    s_waitcnt vmcnt(0)
    v_readfirstlane_b32 s{S_T0}, {vr(R_X+1)}
    s_lshr_b32 s{S_MODE}, s{S_T0}, 16
    s_and_b32 s{S_T0}, s{S_T0}, 0xffff
    s_cmp_ge_u32 s{S_T0}, 32
    s_cbranch_scc1 L_cbd{w}
    s_add_u32 s{S_CNT}, s{S_CNT}, 1
    s_cmp_lt_u32 s{S_CNT}, s{S_ERR}
    s_cbranch_scc1 L_cb{w}
    s_mov_b32 s{S_ERR}, 0
L_cbd{w}:
""")
        if cfg.get('fused'):
            a(f"""
    v_readfirstlane_b32 s{S_T0}, {vr(V_VX)}
    v_readfirstlane_b32 s{S_T1}, {vr(V_VX+2)}
    s_and_b32 s{S_T1}, s{S_T1}, 0xff
    s_cmp_eq_u32 s{S_T1}, 128
    s_cselect_b32 s{S_T1}, s{S_T0}, 0
    s_cmp_lg_u32 s{S_T1}, 0
    s_cbranch_scc1 L_kv0d_{w}
    v_mov_b32 {vr(R_X)}, {DB_INIT}
    s_mov_b32 s{S_CNT}, 0
L_ini_{w}:
    global_load_dword {vr(R_X+1)}, {vr(R_X)}, s[{S_DBG}:{S_DBG+1}] sc1
    s_waitcnt vmcnt(0)
    v_readfirstlane_b32 s{S_T0}, {vr(R_X+1)}
    s_cmp_lg_u32 s{S_T0}, 0
    s_cbranch_scc1 L_inid_{w}
    s_add_u32 s{S_CNT}, s{S_CNT}, 1
    s_cmp_lt_u32 s{S_CNT}, 100000
    s_cbranch_scc1 L_ini_{w}
L_inid_{w}:
    v_mov_b32 {vr(R_X)}, {FL_G1}
    s_mov_b32 s{S_CNT}, 0
L_kv0_{w}:
    buffer_load_dword {vr(R_X+1)}, {vr(R_X)}, {WS}, 0 offen sc1
    s_waitcnt vmcnt(0)
    v_readfirstlane_b32 s{S_T0}, {vr(R_X+1)}
    s_and_b32 s{S_T0}, s{S_T0}, 0xff
    s_cmp_eq_u32 s{S_T0}, 128
    s_cbranch_scc1 L_kv0d_{w}
    s_sleep 2
    s_add_u32 s{S_CNT}, s{S_CNT}, 1
    s_cmp_lt_u32 s{S_CNT}, 400000
    s_cbranch_scc1 L_kv0_{w}
L_kv0d_{w}:
""")
        a(f"""
    s_lshl_b32 s{S_T0}, s{S_H}, 13
    s_add_u32 s{S_T0}, s{S_T0}, {w * 2048}
    s_add_u32 s{S_KSRC}, s{S_T0}, {WS_K}
    s_mov_b32 s{S_KDST}, {LDS_KB + w * 2048}
    s_mov_b32 m0, s{S_KDST}
    s_add_u32 s{S_VSRC}, s{S_T0}, {WS_V}
    buffer_load_dwordx4 {vr(V_LIN16)}, {WS}, s{S_KSRC} offen lds
    buffer_load_dwordx4 {vr(V_LIN16)}, {WS}, s{S_KSRC} offen offset:1024 lds
    buffer_load_dwordx4 {vr(V_VX,4)}, {vr(V_VLD)}, {WS}, s{S_VSRC} offen
    buffer_load_dwordx4 {vr(V_VX+4,4)}, {vr(V_VLD)}, {WS}, s{S_VSRC} offen offset:256
    s_add_u32 s{S_KSRC}, s{S_KSRC}, 0x40000
    s_xor_b32 s{S_KDST}, s{S_KDST}, 8192
    s_add_u32 s{S_VSRC}, s{S_VSRC}, 0x40000
    s_mov_b32 s{S_STEP}, 0
    s_mov_b32 s{S_MCUR}, {WS_M}
    s_mov_b32 s{S_MNXT}, {WS_M + 8192}
    s_mov_b32 s{S_MOTH}, {WS_M + 16384}
    s_lshl_b32 s{S_T0}, s{S_H}, 6
    s_add_u32 s{S_PST}, s{S_T0}, {WS_P + (2 * w) * 32768}
    s_add_u32 s{S_PL1}, s{S_PST}, 32768
    s_lshl_b32 s{S_T0}, s{S_H}, 13
    s_add_u32 s{S_PL0}, s{S_T0}, {WS_P + w * 2048}
    s_add_u32 s{S_PR0}, s{S_PL0}, 262144
    s_lshl_b32 s{S_T0}, s{S_H}, 11
    s_add_u32 s{S_KMO}, s{S_T0}, {WS_KM}
    s_lshl_b32 s{S_T0}, s{S_H}, 12
    s_add_u32 s{S_VMO}, s{S_T0}, {WS_VM}
    s_mov_b32 s{S_DBGM}, {WS_DBGM}
    s_mov_b32 s{S_KMP}, 0x0F000000
    s_mov_b32 s{S_VMP}, 0x0F000000
    s_mov_b32 s96, {f2u(SOFT_C):#x}
    s_mov_b32 s97, {f2u(SOFT_C):#x}
    s_mov_b32 s98, 0x3f803f80
    s_mov_b32 s99, 0x3f803f80
    s_mov_b32 s{S_MASK_ODDL}, 0xaaaaaaaa
    s_mov_b32 s{S_MASK_ODDL+1}, 0xaaaaaaaa
""")

    if cfg.get('timing'): a('    s_memrealtime s[78:79]')
    emit_weight_prologue(a, cfg, w, hook, hook2, hookA, hookB)
    if cfg.get('timing'): a('    s_memrealtime s[80:81]')
    for k in range(10):
        a(f'    s_mov_b32 s{STAMP_ACC+k}, 0')
    a('    s_waitcnt vmcnt(0)')
    a('    s_barrier')
    lg = LG(a)
    idle_prep(a, lg)
    a(mov64(R_X + 2, '-1')); a(mov64(R_X + 4, '-1')); a(mov64(R_Q + 8, '-1')); a(mov64(R_Q + 10, '-1'))
    a(f"""
    s_add_u32 s{S_MPOLL}, s{S_MCUR}, {w * 2048}
    s_mov_b32 s{S_CNT}, 0
""")
    a(hop2_loads(w))
    a(f"""
    s_memtime s[{S_TM0}:{S_TM0+1}]
    s_memrealtime s[74:75]
    s_waitcnt vmcnt(0) lgkmcnt(0)
    s_mov_b32 s94, s{S_TM0}
""")
    modes = [('', cfg)]
    if cfg.get('fallback'):
        slow = dict(cfg); slow['st'] = 'sc1'; slow['sfx'] = 's'; slow.pop('trace', None); slow.pop('stamp', None); slow.pop('clk', None)
        modes.append(('s', slow))
        a(f'    s_cmp_lg_u32 s{S_MODE}, 0\n    s_cbranch_scc1 L_step{w}s')
    for sfx, c in modes:
        a(f'L_step{w}{sfx}:')
        emit_step(a, c, w, False, ool)
        a(f"""
    s_cmp_lt_u32 s{S_STEP}, {cfg.get('nsteps', 63)}
    s_cbranch_scc1 L_step{w}{sfx}
""")
        emit_step(a, c, w, True, ool)
        if sfx == '' and len(modes) > 1: a(f'    s_branch L_cfin{w}')
    a(f'L_cfin{w}:')
    a(f"""
    s_waitcnt vmcnt(0)
    s_barrier
    s_memtime s[{S_TM1}:{S_TM1+1}]
    s_memrealtime s[76:77]
    s_waitcnt lgkmcnt(0)
""")
    if cfg.get('progress') and w == 0:
        a(f"""
    s_mov_b64 exec, 1
    v_mov_b32 {vr(R_X)}, 64
    s_lshl_b32 s{S_T0}, s{S_H}, 7
    s_add_u32 s{S_T0}, s{S_T0}, {FL_P}
    v_mov_b32 {vr(R_X+1)}, 0
    buffer_store_dword {vr(R_X)}, {vr(R_X+1)}, {WS}, s{S_T0} offen sc1
    s_mov_b64 exec, -1
""")
    if cfg.get('timing'):
        a(f"""
    s_sub_u32 s{S_TM1}, s{S_TM1}, s{S_TM0}
    s_lshl_b32 s{S_T0}, s{S_H}, 2
    s_add_u32 s{S_T0}, s{S_T0}, {w}
    s_lshl_b32 s{S_T0}, s{S_T0}, 7
    s_add_u32 s{S_T0}, s{S_T0}, 0x1000
    s_mov_b64 exec, 1
    v_mov_b32 {vr(R_X)}, 0
    v_mov_b32 {vr(R_X+1)}, s{S_TM1}
    buffer_store_dword {vr(R_X+1)}, {vr(R_X)}, {WS}, s{S_T0} offen
    v_mov_b32 {vr(R_X+1)}, s{S_ERR}
    buffer_store_dword {vr(R_X+1)}, {vr(R_X)}, {WS}, s{S_T0} offen offset:4
""")
        for k in range(15):
            a(f'    v_mov_b32 {vr(R_X+1)}, s{(STAMP_ACC+k) if k < 10 else {10: 74, 11: 76, 12: 73, 13: 78, 14: 80}[k]}')
            a(f'    buffer_store_dword {vr(R_X+1)}, {vr(R_X)}, {WS}, s{S_T0} offen offset:{8+4*k}')
        a('    s_mov_b64 exec, -1')
    a('    s_branch L_chain_end')
    for f in ool: f()

class Filt:
    def __init__(self, a, cfg): self.a = a; self.cfg = cfg; self.lines = a.lines
    def __call__(self, text):
        out = []
        for ln in text.split('\n'):
            if self.cfg.get('nopub') and ('sc1' in ln and 'store_dwordx4' in ln): continue
            if self.cfg.get('nokv') and (' lds' in ln and f's{S_KSRC}' in ln): continue
            if self.cfg.get('nokv') and (f's{S_VSRC} offen' in ln): continue
            if self.cfg.get('noreset') and (f's{S_PR0} offen' in ln or f's{S_PR1} offen' in ln):
                continue
            out.append(ln)
        self.a('\n'.join(out))
    def label(self, n): self.a.label(n)

def emit_chain(a, cfg):
    HOP2_BOTH[0] = bool(cfg.get('both'))
    a = Filt(a, cfg)
    a(f"""
    s_load_dwordx2 s[{S_WSP}:{S_WSP+1}], s[0:1], {KA_WS}
    s_load_dwordx2 s[{S_DBG}:{S_DBG+1}], s[0:1], {KA_DBG}
    s_load_dwordx2 s[{SRD_Q}:{SRD_Q+1}], s[0:1], {KA_WQ}
    s_load_dwordx2 s[{SRD_K}:{SRD_K+1}], s[0:1], {KA_WK}
    s_load_dwordx2 s[{SRD_V}:{SRD_V+1}], s[0:1], {KA_WV}
    s_load_dwordx2 s[{SRD_O}:{SRD_O+1}], s[0:1], {KA_WO}
    s_load_dwordx2 s[{SRD_A}:{SRD_A+1}], s[0:1], {KA_MEM0}
    s_waitcnt lgkmcnt(0)
    s_mov_b32 s{SRD_WS}, s{S_WSP}
    s_mov_b32 s{SRD_WS+1}, s{S_WSP+1}
    s_mov_b32 s{SRD_WS+2}, {WS_SIZE}
    s_mov_b32 s{SRD_WS+3}, 0x20000
    s_mov_b32 s{SRD_A+2}, 8192
    s_mov_b32 s{SRD_A+3}, 0x20000
""")
    for S in (SRD_Q, SRD_K, SRD_V, SRD_O):
        a(f'    s_mov_b32 s{S+2}, 0x400000\n    s_mov_b32 s{S+3}, 0x20000')
    a(f'    s_mov_b32 s{S_ERR}, {cfg.get("maxpoll", 20000)}')
    for w in range(1, 4):
        a(f'    s_cmp_eq_u32 s{S_W}, {w}\n    s_cbranch_scc1 L_wave{w}')
    for w in range(4):
        a(f'L_wave{w}:')
        emit_wave(a, cfg, w)
    a('L_chain_end:')
```

```python
from asmlib import *
from layout import *
import struct
def f2u(x): return struct.unpack('<I', struct.pack('<f', x))[0]

S_W = 4
SRD_WS, SRD_X = 8, 12
S_TB, S_CU, S_NU = 5, 6, 7
SRD_TA, SRD_TB = 16, 20
SRD_WQ, SRD_WK, SRD_WV, SRD_W1, SRD_W3 = 24, 28, 32, 36, 40
S_COL, S_STR8 = 44, 45
S_T0, S_T1, S_T2 = 46, 47, 48
S_TYPE, S_OUT = 49, 50
S_NTYPE, S_NOUT = 51, 52
S_ROW = 53
S_NLOG = 54
S_ISF = 56
S_ONE = 58
S_O0, S_O1, S_FIRST = 64, 65, 66
V_LIN16, V_DQ, V_DF, V_DCUR, V_T0, V_T1, V_STK, V_XA, V_L, V_TMP = 0, 1, 2, 3, 4, 5, 6, 7, 8, 9
V_T2, V_T3, V_JUNK = 12, 13, 14
V_WF = 64
V_E = 16
V_ACC = 128
LDS_RING = 0
WS = f's[{SRD_WS}:{SRD_WS+3}]'
NSLOT = 8
PD = 6

def acc(ct, tt): return V_ACC + (ct * 2 + tt) * 16
def xf(tt, ks): return ar((tt * 32 + ks) * 4, 4)

def emit_gate(a, wg_sgpr):
    t = V_E
    a(f'''
    s_lshl_b32 s{S_T0}, s{wg_sgpr}, 3
    s_lshl_b32 s{S_T1}, s{S_W}, 1
    s_add_u32 s{S_T0}, s{S_T0}, s{S_T1}           ; token0
    s_lshl_b32 s{S_T1}, s{S_T0}, 10
    buffer_load_dwordx4 {vr(t,4)}, {vr(V_LIN16)}, s[60:63], 0 offen
    buffer_load_dwordx4 {vr(t+4,4)}, {vr(V_LIN16)}, s[{SRD_X}:{SRD_X+3}], s{S_T1} offen
    buffer_load_dwordx4 {vr(t+8,4)}, {vr(V_LIN16)}, s[{SRD_X}:{SRD_X+3}], s{S_T1} offen offset:1024
    s_waitcnt vmcnt(0)
''')
    G = t + 12
    for i in range(4):
        a(f'    v_lshlrev_b32 {vr(G+2*i)}, 16, {vr(t+i)}')
        a(f'    v_and_b32 {vr(G+2*i+1)}, 0xffff0000, {vr(t+i)}')
    for tk in range(2):
        x = t + 4 + 4 * tk
        A = t + 20 + tk
        u = t + 24
        for i in range(4):
            a(f'    v_lshlrev_b32 {vr(u)}, 16, {vr(x+i)}')
            a(f'    v_and_b32 {vr(u+1)}, 0xffff0000, {vr(x+i)}')
            if i == 0:
                a(f'    v_mul_f32 {vr(A)}, {vr(u)}, {vr(G)}')
            else:
                a(f'    v_fmac_f32 {vr(A)}, {vr(u)}, {vr(G+2*i)}')
            a(f'    v_fmac_f32 {vr(A)}, {vr(u+1)}, {vr(G+2*i+1)}')
        for sh in (1, 2, 4, 8):
            a(f'    v_add_f32_dpp {vr(A)}, {vr(A)}, {vr(A)} row_ror:{sh} row_mask:0xf bank_mask:0xf')
        a(f'    v_mov_b32 {vr(u)}, {vr(A)}')
        a(f'    v_permlane16_swap_b32 {vr(A)}, {vr(u)}')
        a(f'    v_add_f32 {vr(A)}, {vr(A)}, {vr(u)}')
        a(f'    v_mov_b32 {vr(u)}, {vr(A)}')
        a(f'    v_permlane32_swap_b32 {vr(A)}, {vr(u)}')
        a(f'    v_add_f32 {vr(A)}, {vr(A)}, {vr(u)}')
        a(f'    v_cvt_pk_bf16_f32 {vr(A)}, {vr(A)}, {vr(A)}')
        a(f'    v_and_b32 {vr(A)}, 0xffff0000, {vr(A)}')
        a(f'    v_mul_f32 {vr(A)}, s{S_NLOG}, {vr(A)}')
        a(f'    v_exp_f32 {vr(A)}, {vr(A)}')
        a(f'    v_add_f32 {vr(A)}, 1.0, {vr(A)}')
        a(f'    v_rcp_f32 {vr(A)}, {vr(A)}')
        a(f'    v_cvt_pk_bf16_f32 {vr(A)}, {vr(A)}, {vr(A)}')
        a(f'    v_and_b32 {vr(A)}, 0xffff0000, {vr(A)}')
    a(f'''
    s_lshl_b32 s{S_T0}, s{S_T0}, 2
    s_add_u32 s{S_T0}, s{S_T0}, {WS_G}
    v_mov_b32 {vr(t)}, 0
    s_mov_b64 exec, 1
    buffer_store_dword {vr(t+20)}, {vr(t)}, {WS}, s{S_T0} offen
    buffer_store_dword {vr(t+21)}, {vr(t)}, {WS}, s{S_T0} offen offset:4
    s_mov_b64 exec, -1
''')

def emit_setup(a):
    L = V_L
    t0, t1, t2 = V_E, V_E + 1, V_E + 2
    a(f'''
    v_and_b32 {vr(L)}, 63, v0
    v_lshlrev_b32 {vr(V_LIN16)}, 4, {vr(L)}
    v_lshrrev_b32 {vr(t0)}, 3, {vr(L)}
    v_bfe_u32 {vr(t1)}, {vr(L)}, 1, 2
    v_and_b32 {vr(t2)}, 2, {vr(t0)}
    v_xor_b32 {vr(t1)}, {vr(t1)}, {vr(t2)}
    v_lshlrev_b32 {vr(t1)}, 5, {vr(t1)}
    v_and_b32 {vr(t2)}, 1, {vr(L)}
    v_lshlrev_b32 {vr(t2)}, 4, {vr(t2)}
    v_add_u32 {vr(t1)}, {vr(t1)}, {vr(t2)}
    v_lshlrev_b32 {vr(t2)}, 13, {vr(t0)}
    v_add_u32 {vr(V_DQ)}, {vr(t1)}, {vr(t2)}
    v_mul_u32_u24 {vr(t2)}, 3584, {vr(t0)}
    v_add_u32 {vr(V_DF)}, {vr(t1)}, {vr(t2)}
    v_lshrrev_b32 {vr(t0)}, 5, {vr(L)}
    v_lshlrev_b32 {vr(t0)}, 10, {vr(t0)}
    v_bfe_u32 {vr(t1)}, {vr(L)}, 2, 2
    v_lshlrev_b32 {vr(t2)}, 7, {vr(t1)}
    v_add_u32 {vr(t0)}, {vr(t0)}, {vr(t2)}
    v_and_b32 {vr(t1)}, 2, {vr(t1)}
    v_bfe_u32 {vr(t2)}, {vr(L)}, 4, 1
    v_add_u32 {vr(t1)}, {vr(t1)}, {vr(t2)}
    v_lshlrev_b32 {vr(t1)}, 5, {vr(t1)}
    v_add_u32 {vr(t0)}, {vr(t0)}, {vr(t1)}
    v_and_b32 {vr(t1)}, 3, {vr(L)}
    v_lshlrev_b32 {vr(t1)}, 3, {vr(t1)}
    v_add_u32 {vr(V_T0)}, {vr(t0)}, {vr(t1)}
    v_xor_b32 {vr(V_T1)}, 64, {vr(V_T0)}
    v_add_u32 {vr(V_T2)}, 0x10000, {vr(V_T0)}
    v_add_u32 {vr(V_T3)}, 0x10000, {vr(V_T1)}
    v_and_b32 {vr(t0)}, 31, {vr(L)}
    v_bfe_u32 {vr(t1)}, {vr(L)}, 4, 1
    v_lshlrev_b32 {vr(t1)}, 3, {vr(t1)}
    v_xor_b32 {vr(t0)}, {vr(t0)}, {vr(t1)}
    v_lshlrev_b32 {vr(t0)}, 4, {vr(t0)}
    v_lshrrev_b32 {vr(t1)}, 5, {vr(L)}
    v_lshlrev_b32 {vr(t1)}, 9, {vr(t1)}
    v_add_u32 {vr(V_STK)}, {vr(t0)}, {vr(t1)}
    v_and_b32 {vr(t0)}, 31, {vr(L)}
    v_lshlrev_b32 {vr(t1)}, 10, {vr(t0)}
    v_and_b32 {vr(t0)}, 15, {vr(t0)}
    v_lshrrev_b32 {vr(t2)}, 5, {vr(L)}
    v_xor_b32 {vr(t0)}, {vr(t0)}, {vr(t2)}
    v_lshlrev_b32 {vr(t0)}, 4, {vr(t0)}
    v_add_u32 {vr(t0)}, {vr(t0)}, {vr(t1)}
    s_lshl_b32 s{S_T0}, s{S_W}, 15
    s_add_u32 s{S_T0}, s{S_T0}, 32768
    v_add_u32 {vr(V_XA)}, s{S_T0}, {vr(t0)}
''')

def emit_load_x(a, half=None):
    for tt in range(2 if half is None else 1):
        if half is None:
            a(f'''
    s_lshl_b32 s{S_T0}, s{S_TB}, 8
    s_lshl_b32 s{S_T1}, s{S_W}, 6
    s_add_u32 s{S_T0}, s{S_T0}, s{S_T1}
    s_add_u32 s{S_T0}, s{S_T0}, {tt * 32}''')
        else:
            a(f'''
    s_lshl_b32 s{S_T0}, s{S_TB}, 8
    s_lshl_b32 s{S_T1}, s{half}, 7
    s_add_u32 s{S_T0}, s{S_T0}, s{S_T1}
    s_lshl_b32 s{S_T1}, s{S_W}, 5
    s_add_u32 s{S_T0}, s{S_T0}, s{S_T1}''')
        a(f'''
    s_lshl_b32 s{S_T0}, s{S_T0}, 10
    s_lshl_b32 s{S_T1}, s{S_W}, 15
    s_add_u32 s{S_T1}, s{S_T1}, 32768
''')
        for t in range(32):
            a(f'''
    v_xor_b32 {vr(V_TMP)}, {(t & 15) << 4}, {vr(V_LIN16)}
    s_mov_b32 m0, s{S_T1}
    buffer_load_dwordx4 {vr(V_TMP)}, s[{SRD_X}:{SRD_X+3}], s{S_T0} offen lds
    s_add_u32 s{S_T0}, s{S_T0}, 1024
    s_add_u32 s{S_T1}, s{S_T1}, 1024
''')
        a('    s_waitcnt vmcnt(0)')
        for ks in range(32):
            a(f'    v_xor_b32 {vr(V_TMP + (ks & 1))}, {ks << 5}, {vr(V_XA)}')
            a(f'    ds_read_b128 {xf(tt, ks)}, {vr(V_TMP + (ks & 1))}')
        a('    s_waitcnt lgkmcnt(0)')

def emit_decode(a, cu, typ, out):
    a(f'''
    s_lshr_b32 s{S_T0}, s{cu}, 5            ; 0 K, 1 V, 2 Q, 3 F
    s_and_b32 s{S_T1}, s{cu}, 31            ; head / fb
    s_mov_b32 s{typ}, s{S_T0}
    s_cmp_eq_u32 s{S_T0}, 3
    s_cbranch_scc1 L_decF_%(id)s
    s_lshl_b32 s{S_COL}, s{S_T1}, 8
    s_mov_b32 s{S_STR8}, 65536
    v_mov_b32 {vr(V_DCUR)}, {vr(V_DQ)}
    ; select matrix
    s_cmp_eq_u32 s{S_T0}, 0
    s_cselect_b32 s{SRD_TA}, s{SRD_WK}, s{SRD_WV}
    s_cselect_b32 s{SRD_TA+1}, s{SRD_WK+1}, s{SRD_WV+1}
    s_mov_b32 s{S_T2}, {WS_V}
    s_cselect_b32 s{S_T2}, {WS_K}, s{S_T2}
    s_cmp_eq_u32 s{S_T0}, 2
    s_cselect_b32 s{SRD_TA}, s{SRD_WQ}, s{SRD_TA}
    s_cselect_b32 s{SRD_TA+1}, s{SRD_WQ+1}, s{SRD_TA+1}
    s_cselect_b32 s{S_T2}, {WS_Q}, s{S_T2}
    s_mov_b32 s{SRD_TA+2}, 0x400000
    s_mov_b32 s{SRD_TA+3}, 0x20000
    s_add_u32 s{SRD_TB}, s{SRD_TA}, 128
    s_addc_u32 s{SRD_TB+1}, s{SRD_TA+1}, 0
    s_mov_b32 s{SRD_TB+2}, {0x400000 - 128}
    s_mov_b32 s{SRD_TB+3}, 0x20000
    ; out = base + ((tb*8 + w*2)*32 + h)*8192
    s_lshl_b32 s{out}, s{S_TB}, 3
    s_lshl_b32 s{S_T0}, s{S_W}, 1
    s_add_u32 s{out}, s{out}, s{S_T0}
    s_lshl_b32 s{out}, s{out}, 5
    s_add_u32 s{out}, s{out}, s{S_T1}
    s_lshl_b32 s{out}, s{out}, 13
    s_add_u32 s{out}, s{out}, s{S_T2}
    s_branch L_decD_%(id)s
L_decF_%(id)s:
    s_lshl_b32 s{S_COL}, s{S_T1}, 7
    s_mov_b32 s{S_STR8}, {3584 * 8}
    v_mov_b32 {vr(V_DCUR)}, {vr(V_DF)}
    s_mov_b32 s{SRD_TA}, s{SRD_W1}
    s_mov_b32 s{SRD_TA+1}, s{SRD_W1+1}
    s_mov_b32 s{SRD_TA+2}, {512 * 3584}
    s_mov_b32 s{SRD_TA+3}, 0x20000
    s_mov_b32 s{SRD_TB}, s{SRD_W3}
    s_mov_b32 s{SRD_TB+1}, s{SRD_W3+1}
    s_mov_b32 s{SRD_TB+2}, {512 * 3584}
    s_mov_b32 s{SRD_TB+3}, 0x20000
    ; out = WS_H + (tb*8 + w*2)*H_SEG + fb*4096
    s_lshl_b32 s{out}, s{S_TB}, 3
    s_lshl_b32 s{S_T0}, s{S_W}, 1
    s_add_u32 s{out}, s{out}, s{S_T0}
    s_mul_i32 s{out}, s{out}, {H_SEG}
    s_lshl_b32 s{S_T1}, s{S_T1}, 12
    s_add_u32 s{out}, s{out}, s{S_T1}
    s_add_u32 s{out}, s{out}, {WS_H}
L_decD_%(id)s:
    ; running row offset for this wave: col + (2w)*8*stride
    s_mul_i32 s{S_ROW}, s{S_STR8}, s{S_W}
    s_lshl_b32 s{S_ROW}, s{S_ROW}, 1
    s_add_u32 s{S_ROW}, s{S_ROW}, s{S_COL}
''' % dict(id='u%d' % len(a.lines)))

def dma_chunk(a, slot):
    for hb, S in ((0, SRD_TA), (1, SRD_TB)):
        for j in range(2):
            a(f'''
    s_lshl_b32 s{S_T0}, s{S_W}, 11
    s_add_u32 m0, s{S_T0}, {LDS_RING + slot * 16384 + hb * 8192 + j * 1024}
''')
            if j == 0:
                a(f'    buffer_load_dwordx4 {vr(V_DCUR)}, s[{S}:{S+3}], s{S_ROW} offen lds')
            else:
                a(f'    s_add_u32 s{S_T1}, s{S_ROW}, s{S_STR8}')
                a(f'    buffer_load_dwordx4 {vr(V_DCUR)}, s[{S}:{S+3}], s{S_T1} offen lds')
    a(f'    s_lshl_b32 s{S_T0}, s{S_STR8}, 3')
    a(f'    s_add_u32 s{S_ROW}, s{S_ROW}, s{S_T0}')

def wreads(buf, slot, kk):
    out = []
    for ct in range(4):
        for rr in range(2):
            if slot < 4: addr = V_T1 if ct & 1 else V_T0
            else: addr = V_T3 if ct & 1 else V_T2
            off = LDS_RING + (slot % 4) * 16384 + (ct >> 1) * 8192 + kk * 2048 + rr * 512
            out.append(f'    ds_read_b64_tr_b16 {vr(V_WF + buf * 16 + ct * 4 + 2 * rr, 2)}, {vr(addr)} offset:{off}')
    return out


def dummies(a, n):
    for i in range(n):
        a(f'    buffer_load_dword {vr(V_JUNK)}, {vr(V_LIN16)}, s[{SRD_X}:{SRD_X+3}], 0 offen')

def emit_mainloop(a, vtype, tag, next_decode, midflag=None, ntt=2):
    a('    s_waitcnt vmcnt(36)')
    a('    s_barrier')
    for x in wreads(0, 0, 0): a(x)
    for c in range(8):
        slot = c % NSLOT
        for kk in range(4):
            ks = c * 4 + kk
            buf = ks & 1
            if kk < 3: nxt = wreads(buf ^ 1, slot, kk + 1)
            elif c < 7: nxt = wreads(buf ^ 1, (c + 1) % NSLOT, 0)
            else: nxt = []
            a('    s_waitcnt lgkmcnt(0)')
            if kk == 3 and c < 7:
                a(f'    s_waitcnt vmcnt({36 if c <= 4 else 20})')
                a('    s_barrier')
                if c == 5 and midflag: midflag()
            i = 0
            for ct in range(4):
                for tt in range(ntt):
                    C = '0' if ks == 0 else vr(acc(ct, tt), 16)
                    wf = vr(V_WF + buf * 16 + ct * 4, 4)
                    if vtype:
                        a(f'    v_mfma_f32_32x32x16_bf16 {vr(acc(ct,tt),16)}, {xf(tt, ks)}, {wf}, {C}')
                    else:
                        a(f'    v_mfma_f32_32x32x16_bf16 {vr(acc(ct,tt),16)}, {wf}, {xf(tt, ks)}, {C}')
                    for x in nxt[2*i:2*i+2]: a(x)
                    i += 1
                    if kk == 0 and i == (5 if ntt == 2 else 4):
                        if c == 2: next_decode()
                        dma_chunk(a, (c + PD) % NSLOT)

def epi_pack(a, lanereg, segstride, ST, ntt=2):
    k = 0
    for tt in range(ntt):
        a(f'    s_add_u32 s{S_O0}, s{S_OUT}, {tt * segstride}')
        a(f'    s_add_u32 s{S_O1}, s{S_O0}, 4096')
        for ct in range(4):
            A = acc(ct, tt)
            for cb in range(2):
                E = V_E + (k % 4) * 4; k += 1
                for i in range(4):
                    a(f'    v_cvt_pk_bf16_f32 {vr(E+i)}, {vr(A + 8*cb + 2*i)}, {vr(A + 8*cb + 2*i + 1)}')
                off = (4 * ct + 2 * cb) * 512
                so = S_O0 if off < 4096 else S_O1
                a(f'    buffer_store_dwordx4 {vr(E,4)}, {vr(lanereg)}, {WS}, s{so} offen offset:{off % 4096} {ST}')

def epi_ffn(a, ST):
    k = 0
    T = V_E + 16
    for tt in range(2):
        a(f'    s_add_u32 s{S_O0}, s{S_OUT}, {tt * H_SEG}')
        for ct in range(2):
            G, U = acc(ct, tt), acc(ct + 2, tt)
            for cb in range(2):
                E = V_E + (k % 4) * 4; k += 1
                for i in range(4):
                    g, u = G + 8 * cb + 2 * i, U + 8 * cb + 2 * i
                    t = T + 2 * i
                    a(f'    v_pk_mul_f32 {vr(t,2)}, {vr(g,2)}, s[{S_NLOG}:{S_NLOG+1}]')
                    a(f'    v_pk_mul_f32 {vr(g,2)}, {vr(g,2)}, {vr(u,2)}')
                    a(f'    v_exp_f32 {vr(t)}, {vr(t)}')
                    a(f'    v_exp_f32 {vr(t+1)}, {vr(t+1)}')
                for i in range(4):
                    t = T + 2 * i
                    a(f'    v_pk_add_f32 {vr(t,2)}, {vr(t,2)}, s[{S_ONE}:{S_ONE+1}]')
                for i in range(4):
                    t = T + 2 * i
                    a(f'    v_rcp_f32 {vr(t)}, {vr(t)}')
                    a(f'    v_rcp_f32 {vr(t+1)}, {vr(t+1)}')
                for i in range(4):
                    g = G + 8 * cb + 2 * i; t = T + 2 * i
                    a(f'    v_pk_mul_f32 {vr(g,2)}, {vr(g,2)}, {vr(t,2)}')
                    a(f'    v_cvt_pk_bf16_f32 {vr(E+i)}, {vr(g)}, {vr(g+1)}')
                off = (4 * ct + 2 * cb) * 512
                a(f'    buffer_store_dwordx4 {vr(E,4)}, {vr(V_LIN16)}, {WS}, s{S_O0} offen offset:{off} {ST}')

def emit_g1_kernel(a, cfg):
    ST = cfg.get('st_pub', '')
    a(f"""
    s_load_dwordx2 s[{SRD_WS}:{SRD_WS+1}], s[0:1], {KA_WS}
    s_load_dwordx2 s[{SRD_X}:{SRD_X+1}], s[0:1], {KA_X}
    s_load_dwordx2 s[{SRD_WQ}:{SRD_WQ+1}], s[0:1], {KA_WQ}
    s_load_dwordx2 s[{SRD_WK}:{SRD_WK+1}], s[0:1], {KA_WK}
    s_load_dwordx2 s[{SRD_WV}:{SRD_WV+1}], s[0:1], {KA_WV}
    s_load_dwordx2 s[{SRD_W1}:{SRD_W1+1}], s[0:1], {KA_W1}
    s_load_dwordx2 s[{SRD_W3}:{SRD_W3+1}], s[0:1], {KA_W3}
    s_load_dwordx2 s[60:61], s[0:1], {KA_GW}
    v_lshrrev_b32 v1, 6, v0
    s_nop 1
    v_readfirstlane_b32 s{S_W}, v1
    s_waitcnt lgkmcnt(0)
    s_mov_b32 s{SRD_WS+2}, {WS_SIZE}
    s_mov_b32 s{SRD_WS+3}, 0x20000
    s_mov_b32 s{SRD_X+2}, {2048 * 1024}
    s_mov_b32 s{SRD_X+3}, 0x20000
    s_mov_b32 s62, 1024
    s_mov_b32 s63, 0x20000
    s_mov_b32 s{S_NLOG}, {f2u(-1.4426950408889634):#x}
    s_mov_b32 s{S_NLOG+1}, {f2u(-1.4426950408889634):#x}
    s_mov_b32 s{S_ONE}, 1.0
    s_mov_b32 s{S_ONE+1}, 1.0
    s_lshr_b32 s{S_TB}, s2, 3
    s_and_b32 s{S_TB}, s{S_TB}, 7
    s_lshr_b32 s{S_CU}, s2, 6
    s_lshl_b32 s{S_CU}, s{S_CU}, 3
    s_and_b32 s{S_T0}, s2, 7
    s_add_u32 s{S_CU}, s{S_CU}, s{S_T0}
""")
    tm = cfg.get('timing')
    def TS(k):
        if tm: a(f'    s_memrealtime s[{70+2*k}:{70+2*k+1}]')
    TS(0)
    emit_setup(a)
    emit_gate(a, 2)
    TS(1)
    emit_load_x(a)
    a('    s_barrier')
    TS(2)
    if tm: a('    s_memtime s[82:83]')
    emit_decode(a, S_CU, S_TYPE, S_OUT)
    for c in range(PD): dma_chunk(a, c)
    dummies(a, 16)
    def next_decode():
        a(f"""
    s_add_u32 s{S_FIRST}, s{S_CU}, 32
    s_cmp_ge_u32 s{S_FIRST}, 124
    s_cselect_b32 s{S_FIRST+1}, s{S_CU}, s{S_FIRST}
""")
        emit_decode(a, S_FIRST + 1, S_NTYPE, S_NOUT)
    a('L_g1_unit:')
    a(f"""
    s_cmp_eq_u32 s{S_TYPE}, 1
    s_cbranch_scc1 L_g1_v
""")
    emit_mainloop(a, False, 'k', next_decode)
    a('    s_branch L_g1_next')
    a('L_g1_v:')
    emit_mainloop(a, True, 'v', next_decode)
    a('L_g1_next:')
    if tm:
        a(f"""
    s_lshr_b32 s{S_T0}, s{S_CU}, 5
    s_cmp_eq_u32 s{S_T0}, 0
    s_cbranch_scc0 L_ts1
    s_memrealtime s[76:77]
L_ts1:
    s_cmp_eq_u32 s{S_T0}, 2
    s_cbranch_scc0 L_ts2
    s_memrealtime s[78:79]
L_ts2:
""")
    a(f"""
    s_cmp_eq_u32 s{S_TYPE}, 3
    s_cbranch_scc1 L_g1_ef
    s_cmp_eq_u32 s{S_TYPE}, 1
    s_cbranch_scc1 L_g1_ev
""")
    epi_pack(a, V_STK, 262144, ST)
    a('    s_branch L_g1_ed')
    a('L_g1_ev:')
    epi_pack(a, V_LIN16, 262144, ST)
    a('    s_branch L_g1_ed')
    a('L_g1_ef:')
    epi_ffn(a, ST)
    dummies(a, 8)
    a('L_g1_ed:')
    a(f"""
    s_mov_b32 s{S_TYPE}, s{S_NTYPE}
    s_mov_b32 s{S_OUT}, s{S_NOUT}
    s_add_u32 s{S_CU}, s{S_CU}, 32
    s_cmp_lt_u32 s{S_CU}, 124
    s_cbranch_scc1 L_g1_unit
    s_waitcnt vmcnt(0)
""")
    if tm:
        a(f'''
    s_waitcnt vmcnt(0)
    s_memrealtime s[80:81]
    s_memtime s[84:85]
    s_waitcnt lgkmcnt(0)
    s_lshl_b32 s{S_T0}, s2, 2
    s_add_u32 s{S_T0}, s{S_T0}, s{S_W}
    s_lshl_b32 s{S_T0}, s{S_T0}, 5
    s_add_u32 s{S_T0}, s{S_T0}, 0x10000
    s_mov_b64 exec, 1
    v_mov_b32 v20, 0
''')
        for k in range(8):
            a(f'    v_mov_b32 v21, s{70+2*k}')
            a(f'    buffer_store_dword v21, v20, {WS}, s{S_T0} offen offset:{4*k}')


S_WID, S_DBG2 = 90, 68
S_STRIDE, S_URG, S_PEND, S_SESS = 70, 71, 72, 73
S_PTB = 74

def flag_add(a, lab):
    a(f"""
    s_cmp_eq_u32 s{S_PEND}, 0
    s_cbranch_scc1 {lab}
    s_cmp_lg_u32 s{S_W}, 0
    s_cbranch_scc1 {lab}_c
    s_cmp_lg_u32 s89, 0
    s_cbranch_scc1 {lab}_i
    v_mov_b32 {vr(V_TMP)}, {DB_INIT}
    s_mov_b32 s78, 0
{lab}_w:
    global_load_dword {vr(V_TMP+1)}, {vr(V_TMP)}, s[{S_DBG2}:{S_DBG2+1}] sc1
    s_waitcnt vmcnt(0)
    v_readfirstlane_b32 s89, {vr(V_TMP+1)}
    s_cmp_lg_u32 s89, 0
    s_cbranch_scc1 {lab}_i
    s_sleep 8
    s_add_u32 s78, s78, 1
    s_cmp_lt_u32 s78, 100000
    s_cbranch_scc1 {lab}_w
{lab}_i:
    s_lshl_b32 s{S_T0}, s{S_PTB}, 7
    s_add_u32 s{S_T0}, s{S_T0}, {FL_G1}
    v_mov_b32 {vr(V_TMP)}, 0
    v_mov_b32 {vr(V_TMP+1)}, s{S_PEND}
    s_mov_b64 exec, 1
    buffer_atomic_add {vr(V_TMP+1)}, {vr(V_TMP)}, {WS}, s{S_T0} offen sc1
    s_mov_b64 exec, -1
{lab}_c:
    s_mov_b32 s{S_PEND}, 0
{lab}:
""")

def emit_gate_mfma(a):
    G = V_WF
    D = V_ACC
    for tt in range(2):
        for b in range(4):
            for k in range(8):
                ks = b * 8 + k
                a(f'    buffer_load_dwordx4 {vr(G + 4*k - (0), 4)}, {vr(V_TMP)}, s[60:63], 0 offen offset:{ks * 32}')
            for k in range(8):
                ks = b * 8 + k
                a(f'    s_waitcnt vmcnt({7 - k})')
                a(f'    v_mfma_f32_32x32x16_bf16 {vr(D + 16*tt,16)}, {vr(G + 4*k, 4)}, {xf(tt, ks)}, {"0" if ks == 0 else vr(D + 16*tt,16)}')
    for tt in range(2):
        A = D + 16 * tt
        a(f"""
    v_cvt_pk_bf16_f32 {vr(A)}, {vr(A)}, {vr(A)}
    v_and_b32 {vr(A)}, 0xffff0000, {vr(A)}
    v_mul_f32 {vr(A)}, s{S_NLOG}, {vr(A)}
    v_exp_f32 {vr(A)}, {vr(A)}
    v_add_f32 {vr(A)}, 1.0, {vr(A)}
    v_rcp_f32 {vr(A)}, {vr(A)}
    v_cvt_pk_bf16_f32 {vr(A)}, {vr(A)}, {vr(A)}
    v_and_b32 {vr(A)}, 0xffff0000, {vr(A)}
""")
    a(f"""
    s_lshl_b32 s{S_T0}, s{S_TB}, 8
    s_lshl_b32 s{S_T1}, s{S_W}, 6
    s_add_u32 s{S_T0}, s{S_T0}, s{S_T1}
    s_lshl_b32 s{S_T0}, s{S_T0}, 2
    s_add_u32 s{S_T0}, s{S_T0}, {WS_G}
    v_lshlrev_b32 {vr(V_TMP)}, 2, {vr(V_L)}
    s_mov_b32 exec_hi, 0
    buffer_store_dword {vr(D)}, {vr(V_TMP)}, {WS}, s{S_T0} offen sc1
    buffer_store_dword {vr(D+16)}, {vr(V_TMP)}, {WS}, s{S_T0} offen offset:128 sc1
    s_mov_b64 exec, -1
    s_waitcnt vmcnt(0)
    s_barrier
    s_mov_b32 s{S_PEND}, {1 << 24}
    s_mov_b32 s{S_PTB}, s{S_TB}
""")
    flag_add(a, 'L_gfl')

def emit_worker_g1(a, cfg):
    ST = 'sc1'
    a(f"""
    s_load_dwordx2 s[{SRD_WS}:{SRD_WS+1}], s[0:1], {KA_WS}
    s_load_dwordx2 s[{SRD_X}:{SRD_X+1}], s[0:1], {KA_X}
    s_load_dwordx2 s[{SRD_WQ}:{SRD_WQ+1}], s[0:1], {KA_WQ}
    s_load_dwordx2 s[{SRD_WK}:{SRD_WK+1}], s[0:1], {KA_WK}
    s_load_dwordx2 s[{SRD_WV}:{SRD_WV+1}], s[0:1], {KA_WV}
    s_load_dwordx2 s[{SRD_W1}:{SRD_W1+1}], s[0:1], {KA_W1}
    s_load_dwordx2 s[{SRD_W3}:{SRD_W3+1}], s[0:1], {KA_W3}
    s_load_dwordx2 s[60:61], s[0:1], {KA_GW}
    s_load_dwordx2 s[{S_DBG2}:{S_DBG2+1}], s[0:1], {KA_DBG}
    s_waitcnt lgkmcnt(0)
    s_mov_b32 s{SRD_WS+2}, {WS_SIZE}
    s_mov_b32 s{SRD_WS+3}, 0x20000
    s_mov_b32 s{SRD_X+2}, {2048 * 1024}
    s_mov_b32 s{SRD_X+3}, 0x20000
    s_mov_b32 s62, 1024
    s_mov_b32 s63, 0x20000
    s_mov_b32 s{S_NLOG}, {f2u(-1.4426950408889634):#x}
    s_mov_b32 s{S_NLOG+1}, {f2u(-1.4426950408889634):#x}
    s_mov_b32 s{S_ONE}, 1.0
    s_mov_b32 s{S_ONE+1}, 1.0
    s_mov_b32 s{S_PEND}, 0
    s_mov_b32 s88, 0
    s_mov_b32 s89, 0
    s_mov_b32 s87, 0
""")
    emit_setup(a)
    a(f"""
    s_and_b32 s75, s{S_WID}, 7
    s_lshr_b32 s76, s{S_WID}, 3             ; group 0..27
    s_mov_b32 s{S_URG}, 1
    s_cmp_ge_u32 s{S_WID}, 192
    s_cbranch_scc1 L_g1w_own
    s_cmp_ge_u32 s{S_WID}, 128
    s_cbranch_scc1 L_g1w_f1
    s_mov_b32 s{S_TB}, 0
    s_lshr_b32 s{S_CU}, s{S_WID}, 1
    s_and_b32 s79, s{S_WID}, 1
""")
    emit_decode(a, S_CU, S_TYPE, S_OUT)
    a(f"""
    s_lshl_b32 s{S_T0}, s79, 2
    s_sub_u32 s{S_T0}, s{S_T0}, s{S_W}
    s_ashr_i32 s{S_T1}, s{S_T0}, 31
    s_lshl_b32 s{S_T0}, s{S_T0}, 18
    s_add_u32 s{S_OUT}, s{S_OUT}, s{S_T0}
""")
    for c in range(2): dma_chunk(a, c)
    emit_load_x(a, half=79)
    if cfg.get('timing'): a('    s_memrealtime s[80:81]')
    a('    s_barrier')
    for c in range(2, PD): dma_chunk(a, c)
    dummies(a, 16)
    def same_decode():
        a(f'    s_mov_b32 s{S_FIRST+1}, s{S_CU}')
        emit_decode(a, S_FIRST + 1, S_NTYPE, S_NOUT)
    a(f"""
    s_cmp_eq_u32 s{S_TYPE}, 1
    s_cbranch_scc1 L_g1h_v
""")
    emit_mainloop(a, False, 'hk', same_decode, None, 1)
    if cfg.get('timing'): a('    s_memrealtime s[82:83]')
    epi_pack(a, V_STK, 262144, ST, 1)
    a('    s_branch L_g1h_d')
    a('L_g1h_v:')
    emit_mainloop(a, True, 'hv', same_decode, None, 1)
    if cfg.get('timing'): a('    s_memrealtime s[82:83]')
    epi_pack(a, V_LIN16, 262144, ST, 1)
    a(f"""
L_g1h_d:
    s_waitcnt vmcnt(0)
    s_barrier
    s_mov_b32 s{S_PEND}, 1
    s_mov_b32 s{S_PTB}, 0
""")
    flag_add(a, 'L_flh')
    if cfg.get('timing'): a('    s_memrealtime s[84:85]\n    s_mov_b32 s88, 1')
    a(f"""
    s_branch L_g1w_own
L_g1w_f1:
    s_mov_b32 s{S_SESS}, 0
    s_mov_b32 s{S_TB}, 1
    s_sub_u32 s{S_CU}, s{S_WID}, 128
    s_mov_b32 s77, s{S_CU}
    s_mov_b32 s{S_URG}, 1
    s_branch L_g1w_go
L_g1w_own:
    s_mov_b32 s{S_SESS}, 1
    s_mov_b32 s{S_TB}, s75
    s_mov_b32 s{S_CU}, s76
    s_cmp_lt_u32 s75, 2
    s_cselect_b32 s{S_T0}, 64, 0
    s_add_u32 s{S_CU}, s{S_CU}, s{S_T0}
    s_add_u32 s77, s{S_CU}, 28
    s_mov_b32 s{S_URG}, 0
L_g1w_go:
""")
    if cfg.get('gate0'):
        a(f"""
    s_cmp_eq_u32 s{S_TB}, 0
    s_cbranch_scc1 L_g1w_ng
    s_cmp_lg_u32 s87, 0
    s_cbranch_scc1 L_g1w_ng
    s_mov_b32 s87, 1
    v_mov_b32 {vr(V_TMP)}, {DB_INIT}
    s_mov_b32 s78, 0
L_g1w_gi:
    global_load_dword {vr(V_TMP+1)}, {vr(V_TMP)}, s[{S_DBG2}:{S_DBG2+1}] sc1
    s_waitcnt vmcnt(0)
    v_readfirstlane_b32 s89, {vr(V_TMP+1)}
    s_cmp_lg_u32 s89, 0
    s_cbranch_scc1 L_g1w_gj
    s_sleep 16
    s_add_u32 s78, s78, 1
    s_cmp_lt_u32 s78, 100000
    s_cbranch_scc1 L_g1w_gi
L_g1w_gj:
    v_mov_b32 {vr(V_TMP)}, {FL_G1}
L_g1w_gk:
    buffer_load_dword {vr(V_TMP+1)}, {vr(V_TMP)}, {WS}, 0 offen sc1
    s_waitcnt vmcnt(0)
    v_readfirstlane_b32 s{S_T0}, {vr(V_TMP+1)}
    s_and_b32 s{S_T0}, s{S_T0}, 0xff
    s_cmp_ge_u32 s{S_T0}, {cfg.get('gate0')}
    s_cbranch_scc1 L_g1w_ng
    s_sleep 32
    s_add_u32 s78, s78, 1
    s_cmp_lt_u32 s78, 100000
    s_cbranch_scc1 L_g1w_gk
L_g1w_ng:
""")
    emit_decode(a, S_CU, S_TYPE, S_OUT)
    for c in range(2): dma_chunk(a, c)
    emit_load_x(a)
    if cfg.get('timing'): a(f'    s_cmp_eq_u32 s{S_URG}, 1\n    s_cbranch_scc0 L_tsa\n    s_cmp_eq_u32 s88, 0\n    s_cbranch_scc0 L_tsa\n    s_memrealtime s[80:81]\nL_tsa:')
    a('    s_barrier')
    a(f"""
    s_cmp_eq_u32 s{S_SESS}, 1
    s_cbranch_scc0 L_g1w_nog
    s_cmp_eq_u32 s76, 27
    s_cbranch_scc0 L_g1w_nog
    v_lshrrev_b32 {vr(V_TMP)}, 5, {vr(V_L)}
    v_lshlrev_b32 {vr(V_TMP)}, 4, {vr(V_TMP)}
""")
    emit_gate_mfma(a)
    a('L_g1w_nog:')
    for c in range(2, PD): dma_chunk(a, c)
    dummies(a, 16)
    def next_decode():
        a(f"""
    s_cmp_ge_u32 s77, 124
    s_cselect_b32 s{S_FIRST+1}, s{S_CU}, s77
    s_cmp_eq_u32 s{S_SESS}, 0
    s_cselect_b32 s{S_FIRST+1}, s{S_CU}, s{S_FIRST+1}
""")
        emit_decode(a, S_FIRST + 1, S_NTYPE, S_NOUT)
    def midflag():
        flag_add(a, 'L_mf_%d' % len(a.lines))
    a('L_g1w_unit:')
    a(f"""
    s_cmp_eq_u32 s{S_TYPE}, 1
    s_cbranch_scc1 L_g1w_v
""")
    emit_mainloop(a, False, 'k', next_decode, midflag)
    a('    s_branch L_g1w_next')
    a('L_g1w_v:')
    emit_mainloop(a, True, 'v', next_decode, midflag)
    a('L_g1w_next:')
    if cfg.get('timing'): a(f'    s_cmp_eq_u32 s88, 0\n    s_cbranch_scc0 L_tsb\n    s_memrealtime s[82:83]\nL_tsb:')
    a(f"""
    s_cmp_eq_u32 s{S_TYPE}, 3
    s_cbranch_scc1 L_g1w_ef
    s_cmp_eq_u32 s{S_TYPE}, 1
    s_cbranch_scc1 L_g1w_ev
""")
    epi_pack(a, V_STK, 262144, ST)
    a('    s_branch L_g1w_ed')
    a('L_g1w_ev:')
    epi_pack(a, V_LIN16, 262144, ST)
    a('    s_branch L_g1w_ed')
    a('L_g1w_ef:')
    epi_ffn(a, ST)
    dummies(a, 8)
    a('L_g1w_ed:')
    a(f"""
    s_mov_b32 s{S_PEND}, 2
    s_cmp_eq_u32 s{S_TYPE}, 2
    s_cselect_b32 s{S_PEND}, 0x100, s{S_PEND}
    s_cmp_eq_u32 s{S_TYPE}, 3
    s_cselect_b32 s{S_PEND}, 0x10000, s{S_PEND}
    s_mov_b32 s{S_PTB}, s{S_TB}
    s_mov_b32 s{S_T2}, 0
    s_cmp_ge_u32 s77, 124
    s_cselect_b32 s{S_T2}, 1, s{S_T2}
    s_cmp_eq_u32 s{S_SESS}, 0
    s_cselect_b32 s{S_T2}, 1, s{S_T2}
    s_or_b32 s{S_T1}, s{S_T2}, s{S_URG}
    s_cmp_eq_u32 s{S_T1}, 0
    s_cbranch_scc1 L_g1w_noflush
    s_waitcnt vmcnt(0)
    s_barrier
""")
    flag_add(a, 'L_fl0')
    if cfg.get('timing'): a(f'    s_cmp_eq_u32 s88, 0\n    s_cbranch_scc0 L_tsc\n    s_memrealtime s[84:85]\n    s_mov_b32 s88, 1\nL_tsc:')
    dummies(a, 16)
    a(f"""
L_g1w_noflush:
    s_mov_b32 s{S_URG}, 0
    s_cmp_eq_u32 s{S_T2}, 1
    s_cbranch_scc1 L_g1w_sessend
    s_mov_b32 s{S_TYPE}, s{S_NTYPE}
    s_mov_b32 s{S_OUT}, s{S_NOUT}
    s_mov_b32 s{S_CU}, s77
    s_add_u32 s77, s77, 28
    s_branch L_g1w_unit
L_g1w_sessend:
    s_waitcnt vmcnt(0)
    s_barrier
    s_cmp_eq_u32 s{S_SESS}, 0
    s_cbranch_scc0 L_g1w_done
    s_mov_b32 s{S_SESS}, 1
    s_branch L_g1w_own
L_g1w_done:
""")
```

```python
from asmlib import *
from layout import *
import struct

LDS_M, LDS_QK, LDS_OX, LDS_MISC, LDS_KB, LDS_W = 0, 8192, 12288, 14336, 16384, 32768

S_H, S_W, S_STEP, S_ERR, S_CNT = 3, 4, 5, 6, 7
SRD_WS, SRD_A = 8, 12
S_DBG, S_WSP = 16, 18
S_MCUR, S_MNXT, S_MOTH, S_MPOLL = 20, 21, 22, 47
S_PST, S_PL0, S_PL1, S_PR0, S_PR1 = 23, 24, 25, 26, 27
S_KSRC, S_KDST, S_VSRC, S_KMO, S_VMO = 28, 29, 30, 31, 32
S_T0, S_T1, S_T2 = 33, 34, 35
S_ARR, S_MODE = 72, 71
S_KMP, S_VMP = 62, 63
S_MASK_T = 36
S_MASK_ODD = 38
S_MASK_M = 40
S_MASK_PB = 42
S_EXEC = 44
S_C = 46
S_SEL = 48
S_TM0, S_TM1 = 56, 58
S_WBASE, S_WBASE_O, S_DBGM = 60, 61, 45
S_MASK_ODDL = 100
S_ST = 64
S_TS = 80
SRD_Q, SRD_K, SRD_V, SRD_O = 84, 88, 92, 96

V_LIN16, V_PLD, V_MST, V_QW, V_QR, V_K0, V_K1, V_OW, V_OR, V_VLD, V_IDX, V_WL = range(12)
V_VB = 12
V_VX = 16
V_ON16 = 24
R_X = 26
R_M, R_S, R_Q, R_K = 32, 64, 96, 112
V_WV = 128

def wq(ks, sel): return ar(0 + (ks * 2 + sel) * 8, 8)
def wk(ks, sel): return ar(96 + (ks * 2 + sel) * 8, 8)
def wo0(tau): return ar(192 + tau * 8, 8)
def wv(ks, sel): return vr(V_WV + (ks * 2 + sel) * 8, 8)

SOFT_C = (128 ** -0.5) * 1.4426950408889634
def f2u(x): return struct.unpack('<I', struct.pack('<f', x))[0]
WS = f's[{SRD_WS}:{SRD_WS+3}]'

class LG:
    def __init__(self, a):
        self.a = a; self.n = 0; self.tags = {}; self.done = 0
    def issue(self, text, tag=None):
        self.a(text); self.n += 1
        if tag is not None: self.tags[tag] = self.n
    def wait(self, tag):
        pos = self.tags[tag]
        if pos <= self.done: return
        k = self.n - pos
        self.a('    s_waitcnt lgkmcnt(%d)' % min(k, 15))
        self.done = self.n - min(k, 15)
    def wait_all(self):
        self.a('    s_waitcnt lgkmcnt(0)'); self.done = self.n

STAMP_RAW = 64
STAMP_ACC = 84
def stamp(a, cfg, k):
    if not cfg.get('stamp'): return
    a(f'    s_memtime s[{STAMP_RAW+2*k}:{STAMP_RAW+2*k+1}]')

def T(a, cfg, k):
    if 'trace' not in cfg: return
    if 'tmap' in cfg: return
    if k in cfg.get('tset', range(16)):
        a(f'    s_memtime s[{64+2*k}:{64+2*k+1}]')

def TN(a, cfg, name):
    tm = cfg.get('tmap')
    if tm and name in tm:
        k = tm[name]
        a(f'    s_memtime s[{64+2*k}:{64+2*k+1}]')

def trace_dump(a, cfg, w):
    if 'trace' not in cfg: return
    lab = f'L_trd{w}'
    a(f"""
    s_cmp_lg_u32 s{S_STEP}, {cfg['trace']}
    s_cbranch_scc1 {lab}
    s_waitcnt lgkmcnt(0)
    s_lshl_b32 s{S_T0}, s{S_H}, 2
    s_add_u32 s{S_T0}, s{S_T0}, {w}
    s_lshl_b32 s{S_T0}, s{S_T0}, 7
    s_add_u32 s{S_T0}, s{S_T0}, 0x8000
    s_mov_b64 exec, 1
    v_mov_b32 {vr(R_X)}, 0
""")
    for k in range(16):
        a(f'    v_mov_b32 {vr(R_X+1)}, s{64+2*k}')
        a(f'    buffer_store_dword {vr(R_X+1)}, {vr(R_X)}, {WS}, s{S_T0} offen offset:{4*k}')
    a(f'    s_mov_b64 exec, -1\n{lab}:')

def stamp_accum(a, cfg):
    if not cfg.get('stamp'): return
    a('    s_waitcnt lgkmcnt(0)')
    order = [9, 0, 1, 2, 3, 4, 5, 6, 7, 8]
    prev = 94
    for k in order:
        a(f'    s_sub_u32 s{S_T0}, s{STAMP_RAW+2*k}, s{prev}')
        a(f'    s_add_u32 s{STAMP_ACC+k}, s{STAMP_ACC+k}, s{S_T0}')
        prev = STAMP_RAW + 2 * k
    a(f'    s_mov_b32 s94, s{STAMP_RAW+2*8}')

DUMP_BASE = 0x0800_0000
_dumpn = [0]
def dump(a, cfg, w, slot, first, n):
    if 'dumpstep' not in cfg: return
    _dumpn[0] += 1
    lab = 'L_dmp%d' % _dumpn[0]
    a(f"""
    s_cmp_lg_u32 s{S_STEP}, {cfg['dumpstep']}
    s_cbranch_scc1 {lab}
    s_waitcnt lgkmcnt(0)
    s_nop 15
    s_lshl_b32 s{S_T0}, s{S_H}, 2
    s_add_u32 s{S_T0}, s{S_T0}, {w}
    s_lshl_b32 s{S_T0}, s{S_T0}, 15
    s_add_u32 s{S_T0}, s{S_T0}, {DUMP_BASE + slot * 0x400000}
""")
    for r in range(n):
        a(f'    buffer_store_dword {vr(first + r)}, {vr(V_LIN16)}, {WS}, s{S_T0} offen')
        a(f'    s_add_u32 s{S_T0}, s{S_T0}, 1024')
    a(f'{lab}:')

def smf(acc, A, B):
    return f'    v_smfmac_f32_16x16x64_bf16 {vr(acc,4)}, {vr(A,4)}, {B}, {vr(V_IDX)}'
def mf32(D, A, B, C):
    return f'    v_mfma_f32_16x16x32_bf16 {vr(D,4)}, {A}, {B}, {C}'
def pkadd(d, x, y):
    return f'    v_pk_add_f32 {vr(d,2)}, {vr(x,2)}, {vr(y,2)}'
def add2(d, x, y):
    return [f'    v_add_f32 {vr(d)}, {vr(x)}, {vr(y)}', f'    v_add_f32 {vr(d+1)}, {vr(x+1)}, {vr(y+1)}']
def cvt(d, x, y):
    return f'    v_cvt_pk_bf16_f32 {vr(d)}, {vr(x)}, {vr(y)}'

def emit_setup(a, cfg, w):
    t0, t1, t2 = R_X, R_X + 1, R_X + 2
    L = R_X + 5
    a(f'''
    v_and_b32 {vr(L)}, 63, v0
    v_lshlrev_b32 {vr(V_LIN16)}, 4, {vr(L)}
    s_lshl_b32 s{S_T0}, s{S_H}, 2
    s_add_u32 s{S_T0}, s{S_T0}, {w}          ; R
    v_lshrrev_b32 {vr(t0)}, 2, {vr(L)}
    v_lshlrev_b32 {vr(t0)}, 11, {vr(t0)}
    v_and_b32 {vr(t1)}, 3, {vr(L)}
    v_lshlrev_b32 {vr(t1)}, 4, {vr(t1)}
    v_add_u32 {vr(V_PLD)}, {vr(t0)}, {vr(t1)}
    s_lshr_b32 s{S_T1}, s{S_T0}, 4
    s_lshl_b32 s{S_T1}, s{S_T1}, 10
    s_and_b32 s{S_T2}, s{S_T0}, 3
    s_lshl_b32 s{S_T2}, s{S_T2}, 8
    s_add_u32 s{S_T1}, s{S_T1}, s{S_T2}
    s_and_b32 s{S_T2}, s{S_T0}, 12              ; gR*4
    s_lshl_b32 s{S_T2}, s{S_T2}, 4              ; 4 gR * 16
    s_add_u32 s{S_T1}, s{S_T1}, s{S_T2}
    v_bfe_u32 {vr(t0)}, {vr(L)}, 4, 1
    v_lshlrev_b32 {vr(t0)}, 5, {vr(t0)}
    v_bfe_u32 {vr(t1)}, {vr(L)}, 2, 1
    v_lshlrev_b32 {vr(t1)}, 4, {vr(t1)}
    v_and_b32 {vr(t2)}, 3, {vr(L)}
    v_lshlrev_b32 {vr(t2)}, 2, {vr(t2)}
    v_add3_u32 {vr(t0)}, {vr(t0)}, {vr(t1)}, {vr(t2)}
    v_add_u32 {vr(V_MST)}, s{S_T1}, {vr(t0)}
    v_and_b32 {vr(t0)}, 15, {vr(L)}
    v_lshlrev_b32 {vr(t0)}, 4, {vr(t0)}
    v_lshrrev_b32 {vr(t1)}, 4, {vr(L)}
    v_lshlrev_b32 {vr(t1)}, 2, {vr(t1)}
    v_add_u32 {vr(t0)}, {vr(t0)}, {vr(t1)}
    v_add_u32 {vr(V_QW)}, {LDS_QK + w * 1024}, {vr(t0)}
    v_lshrrev_b32 {vr(t0)}, 5, {vr(L)}
    v_lshlrev_b32 {vr(t0)}, 9, {vr(t0)}
    v_bfe_u32 {vr(t1)}, {vr(L)}, 4, 1
    v_lshlrev_b32 {vr(t1)}, 6, {vr(t1)}
    v_bfe_u32 {vr(t2)}, {vr(L)}, 2, 2
    v_lshlrev_b32 {vr(t2)}, 4, {vr(t2)}
    v_add3_u32 {vr(t0)}, {vr(t0)}, {vr(t1)}, {vr(t2)}
    v_bfe_u32 {vr(t1)}, {vr(L)}, 1, 1
    v_lshlrev_b32 {vr(t1)}, 3, {vr(t1)}
    v_add_u32 {vr(t0)}, {vr(t0)}, {vr(t1)}
    v_add_u32 {vr(V_QR)}, {LDS_QK}, {vr(t0)}
    v_lshrrev_b32 {vr(t0)}, 4, {vr(L)}
    v_lshlrev_b32 {vr(t0)}, 9, {vr(t0)}
    v_and_b32 {vr(t1)}, 15, {vr(L)}
    v_lshlrev_b32 {vr(t1)}, 4, {vr(t1)}
    v_add_u32 {vr(t0)}, {vr(t0)}, {vr(t1)}
    v_bfe_u32 {vr(t2)}, {vr(L)}, 3, 1
    v_lshlrev_b32 {vr(t2)}, 8, {vr(t2)}
    v_add_u32 {vr(V_K0)}, {vr(t0)}, {vr(t2)}
    v_add_u32 {vr(V_K0)}, {LDS_KB}, {vr(V_K0)}
    v_add_u32 {vr(V_K1)}, {LDS_KB + 128}, {vr(t0)}
    v_lshrrev_b32 {vr(t0)}, 4, {vr(L)}
    v_lshlrev_b32 {vr(t0)}, 7, {vr(t0)}
    v_bfe_u32 {vr(t1)}, {vr(L)}, 3, 1
    v_lshlrev_b32 {vr(t1)}, 6, {vr(t1)}
    v_and_b32 {vr(t2)}, 3, {vr(L)}
    v_lshlrev_b32 {vr(t2)}, 4, {vr(t2)}
    v_add3_u32 {vr(V_OW)}, {vr(t0)}, {vr(t1)}, {vr(t2)}
    v_lshrrev_b32 {vr(t0)}, 4, {vr(L)}
    v_lshlrev_b32 {vr(t0)}, 8, {vr(t0)}
    v_bfe_u32 {vr(t1)}, {vr(L)}, 1, 1
    v_lshlrev_b32 {vr(t1)}, 7, {vr(t1)}
    v_bfe_u32 {vr(t2)}, {vr(L)}, 2, 2
    v_lshlrev_b32 {vr(t2)}, 5, {vr(t2)}
    v_add3_u32 {vr(t0)}, {vr(t0)}, {vr(t1)}, {vr(t2)}
    v_and_b32 {vr(t1)}, 1, {vr(L)}
    v_lshlrev_b32 {vr(t1)}, 4, {vr(t1)}
    v_add_u32 {vr(t0)}, {vr(t0)}, {vr(t1)}
    v_add_u32 {vr(V_OR)}, {LDS_OX}, {vr(t0)}
    ; V_VLD = (g>>1)*1024 + (g&1)*512 + f16*16
    v_lshrrev_b32 {vr(t0)}, 5, {vr(L)}
    v_lshlrev_b32 {vr(t0)}, 10, {vr(t0)}
    v_bfe_u32 {vr(t1)}, {vr(L)}, 4, 1
    v_lshlrev_b32 {vr(t1)}, 9, {vr(t1)}
    v_and_b32 {vr(t2)}, 15, {vr(L)}
    v_lshlrev_b32 {vr(t2)}, 4, {vr(t2)}
    v_add3_u32 {vr(V_VLD)}, {vr(t0)}, {vr(t1)}, {vr(t2)}
    v_bfe_u32 {vr(t0)}, {vr(L)}, 1, 1
    v_mov_b32 {vr(t1)}, 0x4444
    v_mov_b32 {vr(t2)}, 0xeeee
    v_cmp_eq_u32 vcc, 1, {vr(t0)}
    v_cndmask_b32 {vr(V_IDX)}, {vr(t1)}, {vr(t2)}, vcc
    v_add_u32 {vr(V_WL)}, {LDS_W + w * 32768}, {vr(V_LIN16)}
    v_mov_b32 {vr(V_VB+1)}, 0
    v_mov_b32 {vr(V_VB+3)}, 0
    v_mov_b32 {vr(V_ON16)}, 0x3f803f80
    v_mov_b32 {vr(V_ON16+1)}, 0
    v_bfe_u32 {vr(t0)}, {vr(L)}, 1, 3
''')
    for u in range(4):
        a(f'    v_cmp_eq_u32 s[{S_SEL+2*u}:{S_SEL+2*u+1}], {u}, {vr(t0)}')
    a(f'''
    s_mov_b32 s{S_MASK_T}, 0x0f0f0f0f
    s_mov_b32 s{S_MASK_T+1}, 0x0f0f0f0f
    s_mov_b32 s{S_MASK_ODD}, 0xffff0000
    s_mov_b32 s{S_MASK_ODD+1}, 0xffff0000
    s_mov_b32 s{S_MASK_M}, 0x00ff00ff
    s_mov_b32 s{S_MASK_M+1}, 0
    s_mov_b32 s{S_MASK_PB}, 0xf0f0f0f0
    s_mov_b32 s{S_MASK_PB+1}, 0xf0f0f0f0
    s_mov_b32 s{S_C}, {f2u(SOFT_C):#x}
''')

def emit_init(a, cfg, w):
    t = R_S
    L = R_X + 5
    ST = 'sc1' if cfg.get('fallback') else cfg['st']
    a(f"""
    v_mov_b32 {vr(t)}, -1
    v_mov_b32 {vr(t+1)}, -1
    v_mov_b32 {vr(t+2)}, -1
    v_mov_b32 {vr(t+3)}, -1
""")
    a(f"""
    s_lshl_b32 s{S_T0}, s{S_H}, 13
    s_add_u32 s{S_T0}, s{S_T0}, {WS_P + w * 2048}
    buffer_store_dwordx4 {vr(t,4)}, {vr(V_LIN16)}, {WS}, s{S_T0} offen {ST}
    buffer_store_dwordx4 {vr(t,4)}, {vr(V_LIN16)}, {WS}, s{S_T0} offen offset:1024 {ST}
    s_add_u32 s{S_T0}, s{S_T0}, 262144
    buffer_store_dwordx4 {vr(t,4)}, {vr(V_LIN16)}, {WS}, s{S_T0} offen {ST}
    buffer_store_dwordx4 {vr(t,4)}, {vr(V_LIN16)}, {WS}, s{S_T0} offen offset:1024 {ST}
""")
    a(f"""
    s_lshl_b32 s{S_T0}, s{S_H}, 2
    s_add_u32 s{S_T0}, s{S_T0}, {w}
    s_lshr_b32 s{S_T1}, s{S_T0}, 4
    s_lshl_b32 s{S_T1}, s{S_T1}, 7
    s_and_b32 s{S_T2}, s{S_T0}, 3
    s_lshl_b32 s{S_T2}, s{S_T2}, 3          ; 4 ga * 2
    s_add_u32 s{S_T1}, s{S_T1}, s{S_T2}
    s_bfe_u32 s{S_T2}, s{S_T0}, 0x20002     ; gR
    s_lshl_b32 s{S_T2}, s{S_T2}, 11         ; 2 gR * 1024
    s_add_u32 s{S_T1}, s{S_T1}, s{S_T2}
    v_bfe_u32 {vr(t+4)}, {vr(L)}, 4, 1
    v_lshlrev_b32 {vr(t+4)}, 6, {vr(t+4)}    ; 32 half * 2
    v_bfe_u32 {vr(t+5)}, {vr(L)}, 2, 1
    v_lshlrev_b32 {vr(t+5)}, 10, {vr(t+5)}
    v_and_b32 {vr(t+6)}, 3, {vr(L)}
    v_lshlrev_b32 {vr(t+6)}, 1, {vr(t+6)}
    v_add3_u32 {vr(t+4)}, {vr(t+4)}, {vr(t+5)}, {vr(t+6)}
    v_add_u32 {vr(t+4)}, s{S_T1}, {vr(t+4)}
    buffer_load_ushort {vr(t+5)}, {vr(t+4)}, s[{SRD_A}:{SRD_A+3}], 0 offen
    buffer_load_ushort {vr(t+6)}, {vr(t+4)}, s[{SRD_A}:{SRD_A+3}], 0 offen offset:32
    s_waitcnt vmcnt(0)
    v_lshl_or_b32 {vr(t+5)}, {vr(t+6)}, 16, {vr(t+5)}
    v_min_u32 {vr(t+5)}, -2, {vr(t+5)}
    s_mov_b64 exec, s[{S_MASK_M}:{S_MASK_M+1}]
    s_mov_b32 s{S_T0}, {WS_M}
    buffer_store_dword {vr(t+5)}, {vr(V_MST)}, {WS}, s{S_T0} offen {ST}
    s_mov_b32 s{S_T0}, {WS_M + 8192}
    buffer_store_dword {vr(t)}, {vr(V_MST)}, {WS}, s{S_T0} offen {ST}
    s_mov_b32 s{S_T0}, {WS_M + 16384}
    buffer_store_dword {vr(t)}, {vr(V_MST)}, {WS}, s{S_T0} offen {ST}
""")
    if cfg.get('dbgm'):
        a(f"""
    s_mov_b32 s{S_T0}, {WS_DBGM}
    buffer_store_dword {vr(t+5)}, {vr(V_MST)}, {WS}, s{S_T0} offen
""")
    a(f"""
    s_mov_b64 exec, -1
    s_waitcnt vmcnt(0)
""")

def emit_weight_prologue(a, cfg, w, hook=None, hook2=None, hookA=None, hookB=None):
    L = R_X + 5
    vq0, vq1, vo0, vo1 = R_Q, R_Q + 1, R_Q + 2, R_Q + 3
    t0, t1, t2 = R_X, R_X + 1, R_X + 2
    tA, tB, tA2, tB2, tO = R_Q + 4, R_Q + 5, R_Q + 6, R_Q + 7, R_Q + 8
    for gb1, (vq, vo) in enumerate(((vq0, vo0), (vq1, vo1))):
        a(f'''
    v_lshrrev_b32 {vr(t0)}, 4, {vr(L)}                ; r
    v_bfe_u32 {vr(t1)}, {vr(L)}, 1, 3                 ; pp
    v_add_u32 {vr(t2)}, {gb1*4}, {vr(t0)}
    v_xor_b32 {vr(t1)}, {vr(t1)}, {vr(t2)}
    v_lshlrev_b32 {vr(t1)}, 5, {vr(t1)}
    v_and_b32 {vr(t2)}, 1, {vr(L)}
    v_lshlrev_b32 {vr(t2)}, 4, {vr(t2)}
    v_add_u32 {vr(t1)}, {vr(t1)}, {vr(t2)}
    v_and_b32 {vr(t2)}, 1, {vr(t0)}
    v_lshlrev_b32 {vr(t2)}, 17, {vr(t2)}
    v_add_u32 {vr(vq)}, {vr(t1)}, {vr(t2)}
    v_lshrrev_b32 {vr(t2)}, 1, {vr(t0)}
    v_lshlrev_b32 {vr(t2)}, 18, {vr(t2)}
    v_add_u32 {vr(vq)}, {vr(vq)}, {vr(t2)}
    v_and_b32 {vr(t2)}, 1, {vr(t0)}
    v_lshlrev_b32 {vr(t2)}, 10, {vr(t2)}
    v_add_u32 {vr(vo)}, {vr(t1)}, {vr(t2)}
    v_lshrrev_b32 {vr(t2)}, 1, {vr(t0)}
    v_lshlrev_b32 {vr(t2)}, 12, {vr(t2)}
    v_add_u32 {vr(vo)}, {vr(vo)}, {vr(t2)}
''')
    a(f'''
    v_lshrrev_b32 {vr(t0)}, 2, {vr(L)}
    v_lshlrev_b32 {vr(t1)}, 8, {vr(t0)}
    v_and_b32 {vr(t0)}, 7, {vr(t0)}
    v_lshlrev_b32 {vr(t0)}, 5, {vr(t0)}
    v_and_b32 {vr(t2)}, 3, {vr(L)}
    v_lshlrev_b32 {vr(t2)}, 3, {vr(t2)}
    v_add3_u32 {vr(t0)}, {vr(t0)}, {vr(t1)}, {vr(t2)}
    v_add_u32 {vr(tO)}, {LDS_W}, {vr(t0)}
    v_xor_b32 {vr(tA)}, {(2*w) << 5}, {vr(tO)}
    v_xor_b32 {vr(tB)}, 32, {vr(tA)}
    v_add_u32 {vr(tA2)}, 0x10000, {vr(tA)}
    v_add_u32 {vr(tB2)}, 0x10000, {vr(tB)}
    s_lshl_b32 s{S_WBASE}, s{S_H}, 8
    s_add_u32 s{S_WBASE}, s{S_WBASE}, {(8 * (w >> 1) + (w & 1)) * 8192}
    s_lshl_b32 s{S_WBASE_O}, s{S_H}, 17
    s_add_u32 s{S_WBASE_O}, s{S_WBASE_O}, {(32 * (w >> 1) + 2 * (w & 1)) * 1024}
''')
    units = []
    for m in ('q', 'k'):
        for ks in range(6): units.append((m, ks))
    for ks in range(8): units.append(('v', ks))
    for p in range(4): units.append(('o0', p))
    units += [('q', 6), ('o1', 0), ('q', 7), ('o1', 1), ('k', 6), ('o1', 2), ('k', 7), ('o1', 3)]
    srd = {'q': SRD_Q, 'k': SRD_K, 'v': SRD_V, 'o0': SRD_O, 'o1': SRD_O}
    def slot_of(u): return (u % 10) if u < 24 else (u - 24)
    def slot_addr(sl): return LDS_W + sl * 16384 if sl < 8 else (sl - 8) * 16384
    def issue(u):
        m, x = units[u]
        S = srd[m]
        for gb in range(4):
            if m in ('q', 'k', 'v'):
                uni = (64 * x + 4 * (gb >> 1) + 2 * (gb & 1)) * 8192
                vo = vq1 if gb & 1 else vq0
                base = S_WBASE
            else:
                kap = 0 if m == 'o0' else 1
                uni = (64 * kap + 16 * (gb & 1) + 8 * (gb >> 1)) * 1024 + x * 256
                vo = vo1 if gb & 1 else vo0
                base = S_WBASE_O
            a(f"""
    s_mov_b32 m0, {slot_addr(slot_of(u)) + w * 4096 + gb * 1024}
    s_add_u32 s{S_T1}, s{base}, {uni}
    buffer_load_dwordx4 {vr(vo)}, s[{S}:{S+3}], s{S_T1} offen lds
""")
        issued.append(u)
    tA3, tB3 = R_Q + 11, R_Q + 12
    a(f'    v_add_u32 {vr(tA3)}, {(-LDS_W) & 0xffffffff:#x}, {vr(tA)}')
    a(f'    v_add_u32 {vr(tB3)}, {(-LDS_W) & 0xffffffff:#x}, {vr(tB)}')
    def qkv_reads(slot, dsts):
        for sel in range(2):
            if slot < 4: addr, off = (tA, tB)[sel], slot * 16384
            elif slot < 8: addr, off = (tA2, tB2)[sel], (slot - 4) * 16384
            else: addr, off = (tA3, tB3)[sel], (slot - 8) * 16384
            for U in range(4):
                a(f'    ds_read_b64_tr_b16 {dsts(sel, U)}, {vr(addr)} offset:{off + U * 4096}')
    def wo_reads(slot, dsts):
        a(f'    v_add_u32 {vr(tO+1)}, {slot * 16384}, {vr(tO)}')
        for tau in range(8):
            a(f'    v_xor_b32 {vr(tO+2)}, {tau << 5}, {vr(tO+1)}')
            for U in range(4):
                a(f'    ds_read_b64_tr_b16 {dsts(tau, U)}, {vr(tO+2)} offset:{U * 4096}')
            if tau % 2 == 1: a('    s_waitcnt lgkmcnt(0)')
    issued = []
    NIF = 10
    for u in range(NIF): issue(u)
    if hook: hook()
    later = {15: 28, 16: 29, 17: 30, 18: 31, 21: 24, 22: 25, 23: 26}
    extra = 0
    for u in range(24):
        m, x = units[u]
        slot = slot_of(u)
        younger = len(issued) - 1 - issued.index(u)
        a(f'    s_waitcnt vmcnt({min(4 * younger, 63)}) lgkmcnt(0)')
        a('    s_barrier')
        if m == 'v':
            qkv_reads(slot, lambda sel, U: vr(V_WV + (x * 2 + sel) * 8 + 2 * U, 2))
        elif m in ('q', 'k'):
            qkv_reads(slot, lambda sel, U: ar((0 if m == 'q' else 96) + (x * 2 + sel) * 8 + 2 * U, 2))
        elif x == w:
            wo_reads(slot, lambda tau, U: ar(192 + tau * 8 + 2 * U, 2))
        nxt = u - 1 + 10
        if u >= 1 and nxt <= 23: issue(nxt)
        if u in later: issue(later[u])
        if u == 14 and hookB: hookB()
    a('    s_waitcnt lgkmcnt(0)')
    a('    s_barrier')
    if hookA: hookA()
    issue(27)
    assert sorted(issued) == list(range(32)), issued
    a('    s_waitcnt vmcnt(0)')
    a('    s_barrier')
    if cfg.get('timing'): a('    s_memrealtime s[68:69]')
    if hook2: hook2()
    if cfg.get('timing'): a('    s_memrealtime s[64:65]\n    s_waitcnt lgkmcnt(0)\n    s_mov_b32 s66, s64')
    for f2, slot in enumerate((0, 2, 4, 6)):
        qkv_reads(slot, lambda sel, U: vr(R_M + (f2 * 2 + sel) * 8 + 2 * U, 2))
        a('    s_waitcnt lgkmcnt(0)')
    a('    s_barrier')
    for f in range(8):
        for hh in range(2):
            a(f'    ds_write_b128 {vr(V_WL)}, {vr(R_M + f * 8 + 4 * hh, 4)} offset:{f * 2048 + hh * 1024}')
    a('    s_waitcnt lgkmcnt(0)')
    wo_reads(2 * w + 1, lambda tau, U: vr(R_M + tau * 8 + 2 * U, 2))
    a('    s_waitcnt lgkmcnt(0)')
    for f in range(8):
        for hh in range(2):
            a(f'    ds_write_b128 {vr(V_WL)}, {vr(R_M + f * 8 + 4 * hh, 4)} offset:{16384 + f * 2048 + hh * 1024}')
    a('    s_waitcnt lgkmcnt(0)')
    a('    s_barrier')

def stage(lg, dst, f, tag=None):
    return [(lambda hh=hh: lg.issue(f'    ds_read_b128 {vr(dst + 4*hh, 4)}, {vr(V_WL)} offset:{f * 2048 + hh * 1024}', tag if hh == 1 else None)) for hh in range(2)]

def poll_check(a, regs, retry):
    a(f"""
    v_max3_u32 {vr(R_X)}, {vr(regs)}, {vr(regs+1)}, {vr(regs+2)}
    v_max3_u32 {vr(R_X+1)}, {vr(regs+3)}, {vr(regs+4)}, {vr(regs+5)}
    v_max3_u32 {vr(R_X)}, {vr(R_X)}, {vr(regs+6)}, {vr(regs+7)}
    v_max_u32 {vr(R_X)}, {vr(R_X)}, {vr(R_X+1)}
    v_cmp_eq_u32 vcc, -1, {vr(R_X)}
    s_cbranch_vccnz {retry}
""")

def retry_block(a, name, back, done, loads):
    a(f"""
{name}:
    s_add_u32 s{S_CNT}, s{S_CNT}, 1
    s_cmp_lt_u32 s{S_CNT}, s{S_ERR}
    s_cbranch_scc0 {name}_to
{loads}
    s_branch {back}
{name}_to:
    s_mov_b32 s{S_ERR}, 0
    s_branch {done}
""")

HOP2_BOTH = [False]
def hop2_loads(w):
    if HOP2_BOTH[0]:
        PM = R_M + 8 * w
        return (f'    s_mov_b32 m0, {LDS_M + w * 2048}\n'
                f'    buffer_load_dwordx4 {vr(PM,4)}, {vr(V_LIN16)}, {WS}, s{S_MPOLL} offen sc1\n'
                f'    buffer_load_dwordx4 {vr(PM+4,4)}, {vr(V_LIN16)}, {WS}, s{S_MPOLL} offen offset:1024 sc1\n'
                f'    buffer_load_dwordx4 {vr(V_LIN16)}, {WS}, s{S_MPOLL} offen sc1 lds\n'
                f'    buffer_load_dwordx4 {vr(V_LIN16)}, {WS}, s{S_MPOLL} offen offset:1024 sc1 lds\n')
    return (f'    s_mov_b32 m0, {LDS_M + w * 2048}\n'
            f'    buffer_load_dwordx4 {vr(V_LIN16)}, {WS}, s{S_MPOLL} offen sc1 lds\n'
            f'    buffer_load_dwordx4 {vr(V_LIN16)}, {WS}, s{S_MPOLL} offen offset:1024 sc1 lds\n')
def own_reads(w):
    if HOP2_BOTH[0]: return '    s_waitcnt lgkmcnt(0)\n'
    PM = R_M + 8 * w
    return (f'    ds_read_b128 {vr(PM,4)}, {vr(V_LIN16)} offset:{LDS_M + w * 2048}\n'
            f'    ds_read_b128 {vr(PM+4,4)}, {vr(V_LIN16)} offset:{LDS_M + w * 2048 + 1024}\n'
            f'    s_waitcnt lgkmcnt(0)\n')
def hop1_loads():
    PA = R_Q
    return (f'    buffer_load_dwordx4 {vr(PA,4)}, {vr(V_LIN16)}, {WS}, s{S_PL0} offen sc1\n'
            f'    buffer_load_dwordx4 {vr(PA+4,4)}, {vr(V_LIN16)}, {WS}, s{S_PL0} offen offset:1024 sc1\n')

def idle_prep(a, lg):
    for f in range(4):
        for th in stage(lg, R_S + f * 8, f, f'wq{f}'): th()
    for r in range(16):
        a(f'    v_mov_b32 {vr(R_K + r)}, 0')

def weave(a, mf, fill):
    for i, m in enumerate(mf):
        if callable(m): m()
        else: a(m)
        for f in fill.get(i, []):
            if callable(f): f()
            else: a(f)

def mov64(r, src='0'):
    return f'    v_mov_b64 {vr(r,2)}, {src}'

class Sched:
    def __init__(self, a): self.a = a; self.mf = []; self.ds = {}; self.va = {}; self.pre = {}
    def add(self, m): self.mf.append(m); return len(self.mf) - 1
    def D(self, i, x): self.ds.setdefault(i, []).append(x)
    def V(self, i, x): self.va.setdefault(i, []).append(x)
    def P(self, i, x): self.pre.setdefault(i, []).append(x)
    def emit(self):
        run = lambda x: x() if callable(x) else self.a(x)
        for i, m in enumerate(self.mf):
            for x in self.pre.get(i, []): run(x)
            run(m)
            for x in self.ds.get(i, []): run(x)
            for x in self.va.get(i, []): run(x)

S_CC = 96
S_ONE2 = 98

def emit_step(a, cfg, w, last, ool):
    lg = LG(a)
    ST = cfg['st']
    tag = f'{w}' + ('l' if last else 'm') + cfg.get('sfx', '')
    own = (2 * w, 2 * w + 1)
    PM = R_M + 8 * w
    accQ, accK = R_K, R_K + 8
    X = R_X
    np2 = cfg.get('np2', 1)
    NRES = 2 if cfg.get('rstend') else 0
    tn = lambda n: (lambda: TN(a, cfg, n))
    NL2 = 4 if HOP2_BOTH[0] else 2
    a(f"    s_waitcnt vmcnt({NL2 * (np2 - 1) + NRES})")
    a(own_reads(w))
    poll_check(a, PM, f'L_p2r_{tag}')
    a(f'L_p2d_{tag}:')
    T(a, cfg, 0)
    def ool2():
        a(f"""
L_p2r_{tag}:
    s_add_u32 s{S_CNT}, s{S_CNT}, 1
    s_cmp_lt_u32 s{S_CNT}, s{S_ERR}
    s_cbranch_scc0 L_p2r_{tag}_to
""")
        a(hop2_loads(w))
        a(f"    s_waitcnt vmcnt({NL2 * (np2 - 1)})")
        a(own_reads(w))
        poll_check(a, PM, f'L_p2r_{tag}')
        a(f"""
    s_branch L_p2d_{tag}
L_p2r_{tag}_to:
    s_mov_b32 s{S_ERR}, 0
    s_branch L_p2d_{tag}
""")
    ool.append(ool2)
    stamp(a, cfg, 9)
    lg.n = 8; lg.done = 8
    for f in range(4): lg.tags[f'wq{f}'] = 2 * f + 2
    a('    s_barrier')
    T(a, cfg, 2)
    def Wq(ks, sel): return wq(ks, sel) if ks < 6 else vr(R_S + ((ks - 6) * 2 + sel) * 8, 8)
    def Wk(ks, sel): return wk(ks, sel) if ks < 6 else vr(R_S + ((ks - 6) * 2 + sel) * 8, 8)
    def Qs(ks, sel): return smf(accQ + 4 * sel, R_M + 4 * ks, Wq(ks, sel))
    def Ks(ks, sel): return smf(accK + 4 * sel, R_M + 4 * ks, Wk(ks, sel))
    accV = R_S + 16
    def Vs(ks, sel): return smf(accV + 4 * sel, R_M + 4 * ks, wv(ks, sel))
    others = [ks for ks in (6, 7, 0, 1, 2, 3, 4, 5) if ks not in own]
    mread = {ks: (lambda ks=ks: lg.issue(f'    ds_read_b128 {vr(R_M + 4*ks, 4)}, {vr(V_LIN16)} offset:{LDS_M + ks * 1024}', f'm{ks}')) for ks in others}
    wkst = []
    for f in range(4): wkst += stage(lg, R_S + f * 8, 4 + f, f'wk{f}')
    def waits(*tags):
        def f():
            for t in tags:
                if t in lg.tags: lg.wait(t)
        return f
    S = Sched(a)
    if not last:
        for ks in own:
            for sel in range(2): S.add(Qs(ks, sel))
    if w < 3:
        for ks in own:
            for sel in range(2): S.add(Ks(ks, sel))
    nE = len(S.mf)
    rd = list(others)
    mread[rd.pop(0)](); mread[rd.pop(0)]()
    stamp(a, cfg, 0)
    nvm = 0
    KP = X + 2
    pub_rd = [lambda: lg.issue(f'    ds_read_b64_tr_b16 {vr(KP, 2)}, {vr(V_QR)} offset:{256 + w * 1024}'),
              lambda: lg.issue(f'    ds_read_b64_tr_b16 {vr(KP + 2, 2)}, {vr(V_QR)} offset:{256 + w * 1024 + 128}', 'kp')]
    vmp = f'    buffer_store_dwordx4 {vr(V_VB,4)}, {vr(V_LIN16)}, {WS}, s{S_VMP} offen offset:{w * 1024} sc1'
    kmp = [waits('kp'), f'    s_mov_b64 exec, s[{S_MASK_T}:{S_MASK_T+1}]',
           f'    buffer_store_dwordx4 {vr(KP,4)}, {vr(V_OW)}, {WS}, s{S_KMP} offen offset:{w * 512} sc1', '    s_mov_b64 exec, -1']
    rst = [f'    buffer_store_dwordx4 {vr(R_Q+8,4)}, {vr(V_LIN16)}, {WS}, s{S_PR0} offen {ST}',
           f'    buffer_store_dwordx4 {vr(R_Q+8,4)}, {vr(V_LIN16)}, {WS}, s{S_PR0} offen offset:1024 {ST}']
    nvm += 2
    if not last:
        bg = [[f'    s_mov_b32 m0, s{S_KDST}', f'    buffer_load_dwordx4 {vr(V_LIN16)}, {WS}, s{S_KSRC} offen lds'],
              [f'    buffer_load_dwordx4 {vr(V_LIN16)}, {WS}, s{S_KSRC} offen offset:1024 lds'],
              [f'    s_mov_b32 m0, {LDS_MISC + w * 512}', f'    buffer_load_dword {vr(V_VLD)}, {WS}, s{S_VSRC} offen lds'],
              [f'    buffer_load_dword {vr(V_VLD)}, {WS}, s{S_VSRC} offen offset:256 lds']]
        nvm += 4
        if cfg.get('progress') and w == 0:
            bg.append([f'    s_lshl_b32 s{S_T0}, s{S_H}, 7', f'    s_add_u32 s{S_T0}, s{S_T0}, {FL_P}',
                       f'    s_sub_u32 s{S_T1}, s{S_STEP}, 1', f'    s_max_i32 s{S_T1}, s{S_T1}, 0', f'    v_mov_b32 {vr(X)}, s{S_T1}', f'    v_mov_b32 {vr(X+1)}, 0', f'    s_mov_b64 exec, 1',
                       f'    buffer_store_dword {vr(X)}, {vr(X+1)}, {WS}, s{S_T0} offen sc1', f'    s_mov_b64 exec, -1'])
            nvm += 1
        laststagedQ = None
        for ks in others:
            for sel in range(2):
                i = S.add(Qs(ks, sel))
                if sel == 0: S.P(i, waits(f'm{ks}'))
                if ks >= 6: laststagedQ = i
        if laststagedQ is None: laststagedQ = 3
        g = 0
        while rd:
            S.D(g, mread[rd.pop(0)]); g += 1
        S.D(g, pub_rd[0]); S.D(g + 1, pub_rd[1]); g += 2
        for gi, grp in zip((1, 4, 6, 9, 11), bg):
            for x in grp: S.V(gi, x)
        if cfg.get('rstE'):
            S.V(cfg.get('rp0', 2), rst[0]); S.V(cfg.get('rp1', 13), rst[1]); nvm += 2
        g = max(g, laststagedQ)
        k = 0
        while k < 8 and g < len(S.mf):
            S.D(g, wkst[k]); k += 1; g += 1
        S.emit()
        while k < 8: wkst[k](); k += 1
    else:
        if cfg.get('progress') and w == 0:
            a(f"""
    s_lshl_b32 s{S_T0}, s{S_H}, 7
    s_add_u32 s{S_T0}, s{S_T0}, {FL_P}
    s_sub_u32 s{S_T1}, s{S_STEP}, 1
    v_mov_b32 {vr(X)}, s{S_T1}
    v_mov_b32 {vr(X+1)}, 0
    s_mov_b64 exec, 1
    buffer_store_dword {vr(X)}, {vr(X+1)}, {WS}, s{S_T0} offen sc1
    s_mov_b64 exec, -1
""")
        for ks in rd: mread[ks]()
        for th in pub_rd: th()
        a(vmp)
        for x in kmp: x() if callable(x) else a(x)
        if nE > 0: S.emit()
        for th in wkst: th()
    stamp(a, cfg, 1); T(a, cfg, 3); TN(a, cfg, 'Qend')
    nonst = [ks for ks in others if ks < 6]
    if w < 3: kord = [6, nonst[0], 7] + nonst[1:]
    else: kord = [0, 6, 1, 7, 2, 3, 4, 5]
    S = Sched(a)
    pos6 = pos7 = None
    for ks in kord:
        for sel in range(2):
            i = S.add(Ks(ks, sel))
            if sel == 0:
                t = [f'm{ks}']
                if ks >= 6: t.append(f'wk{(ks - 6) * 2 + 1}')
                S.P(i, waits(*t))
            if ks == 6: pos6 = i
            if ks == 7: pos7 = i
    nk = len(S.mf)
    accV = R_K
    def Vs(ks, sel): return smf(accV + 4 * sel, R_M + 4 * ks, wv(ks, sel))
    Sx, KA, Sm, ON, Pq, PM16, Lx, Ox = R_K + 8, R_M, R_M + 16, R_M + 20, R_M + 24, R_M + 28, X, R_K
    kx = {(tau, k2): (lambda tau=tau, k2=k2: lg.issue(f'    ds_read_b128 {vr(R_S + tau*16 + 4*k2, 4)}, {vr((V_K0, V_K1)[tau])} offset:{k2 * 2048}', f'kx{tau}{k2}'))
          for tau in range(2) for k2 in range(4)}
    if not last:
        qa, qb_ = add2(accQ, accQ, accQ + 2), add2(accQ + 4, accQ + 4, accQ + 6)
        S.V(1, qa[0]); S.V(2, qa[1]); S.V(2, qb_[0]); S.V(3, qb_[1]); S.V(3, cvt(accQ, accQ, accQ + 1)); S.V(4, cvt(accQ + 4, accQ + 4, accQ + 5))
        S.D(5, lambda: lg.issue(f'    ds_write2_b32 {vr(V_QW)}, {vr(accQ)}, {vr(accQ+4)} offset0:0 offset1:128', 'qw'))
        g = max(pos6 + 1, 2)
        for k2 in range(4):
            S.D(g, kx[(0, k2)]); g += 1
        g = max(g, pos7 + 1, 6)
        kx1 = [kx[(1, k2)] for k2 in range(4)]
        while kx1 and g < nk:
            S.D(g, kx1.pop(0)); g += 1
        S.V(7, vmp)
        S.P(nk - 3, waits('qw'))
        S.V(nk - 3, mov64(accV)); S.V(nk - 2, mov64(accV + 2)); S.V(nk - 1, mov64(accV + 4)); S.V(nk - 1, mov64(accV + 6))
        S.V(3, tn('k3')); S.V(7, tn('k7'))
        S.emit()
        for th in kx1: th()
    else:
        S.emit()
        for r in range(0, 8, 2): a(mov64(accV + r))
    stamp(a, cfg, 2); T(a, cfg, 5); TN(a, cfg, 'Kend')
    kf = add2(accK, accK, accK + 2) + add2(accK + 4, accK + 4, accK + 6) + [cvt(accK, accK, accK + 1), cvt(accK + 4, accK + 4, accK + 5)]
    kw = lambda: lg.issue(f'    ds_write2_b32 {vr(V_QW)}, {vr(accK)}, {vr(accK+4)} offset0:64 offset1:192', 'kw')
    qb = [(lambda k2=k2, hh=hh: lg.issue(f'    ds_read_b64_tr_b16 {vr(R_Q + 4*k2 + 2*hh, 2)}, {vr(V_QR)} offset:{k2 * 1024 + hh * 128}', f'q{k2}'))
          for k2 in range(4) for hh in range(2)]
    kar = [(lambda k2=k2, hh=hh: lg.issue(f'    ds_read_b64_tr_b16 {vr(KA + 4*k2 + 2*hh, 2)}, {vr(V_QR)} offset:{256 + k2 * 1024 + hh * 128}', f'k{k2}'))
           for k2 in range(4) for hh in range(2)]
    vm = [Vs(ks, sel) for ks in range(8) for sel in range(2)]
    MX, T1, NEG, al = X, X + 1, X + 2, X + 4
    S = Sched(a)
    for x in vm: S.add(x)
    S.V(1, kf[0]); S.V(1, kf[1]); S.V(2, kf[2]); S.V(2, kf[3]); S.V(3, kf[4]); S.V(3, kf[5]); S.D(4, kw)
    gb = cfg.get('gb2', 8)
    if not last:
        for x in kmp: S.D(gb, x)
    S.D(gb, waits('kw')); S.D(gb, '    s_barrier'); S.D(gb, tn('B2'))
    if not last:
        qpg = cfg.get('qpg', 1)
        for k, th in enumerate(qb): S.D(min(gb + k // qpg, 15), th)
    S.V(3, tn('v3')); S.V(7, tn('v7'))
    S.emit()
    if last:
        kmst = [f'    s_mov_b64 exec, s[{S_MASK_T}:{S_MASK_T+1}]',
                f'    buffer_store_dwordx4 {vr(KA + 4*w,4)}, {vr(V_OW)}, {WS}, s{S_KMO} offen offset:{w * 512} sc1',
                f'    s_mov_b64 exec, -1']
        for th in kar: th()
        a(pkadd(accV, accV, accV + 2)); a(pkadd(accV + 4, accV + 4, accV + 6))
        a(cvt(V_VB, accV, accV + 1)); a(cvt(V_VB + 2, accV + 4, accV + 5))
        a(f'    buffer_store_dwordx4 {vr(V_VB,4)}, {vr(V_LIN16)}, {WS}, s{S_VMO} offen offset:{w * 1024} sc1')
        lg.wait('k3')
        for x in kmst: a(x)
        return
    stamp(a, cfg, 3); T(a, cfg, 6); TN(a, cfg, 'Vend')
    a(f'    s_waitcnt vmcnt({nvm})')
    for th in kar[:4]: th()
    S = Sched(a)
    for tau in range(2):
        for k2 in range(4):
            i = S.add(mf32(Sx + 4 * tau, vr(R_S + tau * 16 + 4 * k2, 4), vr(R_Q + 4 * k2, 4), '0' if k2 == 0 else vr(Sx + 4 * tau, 4)))
            S.P(i, waits(f'q{k2}', f'kx{tau}{k2}'))
    for k, th in enumerate(kar[4:]): S.D(k, th)
    va, vb_ = add2(accV, accV, accV + 2), add2(accV + 4, accV + 4, accV + 6)
    S.V(1, va[0]); S.V(1, va[1]); S.V(2, vb_[0]); S.V(2, vb_[1])
    S.V(4, cvt(V_VB, accV, accV + 1)); S.V(4, cvt(V_VB + 2, accV + 4, accV + 5))
    S.V(3, mov64(ON, f's[{S_ONE2}:{S_ONE2+1}]')); S.V(3, mov64(ON + 2, f's[{S_ONE2}:{S_ONE2+1}]'))
    S.V(6, f'    v_max3_f32 {vr(MX)}, {vr(Sx)}, {vr(Sx+1)}, {vr(Sx+2)}')
    S.V(7, f'    v_max_f32 {vr(MX)}, {vr(MX)}, {vr(Sx+3)}')
    b = len(S.mf)
    for k2 in range(4):
        i = S.add(mf32(Sm, vr(KA + 4 * k2, 4), vr(R_Q + 4 * k2, 4), '0' if k2 == 0 else vr(Sm, 4)))
        S.P(i, waits(f'k{k2}'))
    stg = []
    for tau in range(4): stg += stage(lg, R_S + tau * 8, 8 + tau, f'wo{tau}')
    S.D(4, stg[0]); S.D(5, stg[1]); S.D(6, stg[2]); S.D(7, stg[3])
    S.D(b, stg[4]); S.D(b + 1, stg[5]); S.D(b + 2, stg[6]); S.D(b + 3, stg[7])
    S.V(b + 1, f'    v_max3_f32 {vr(T1)}, {vr(Sx+4)}, {vr(Sx+5)}, {vr(Sx+6)}')
    S.V(b + 1, mov64(R_Q)); S.V(b + 2, mov64(R_Q + 2)); S.V(b + 3, mov64(R_Q + 4)); S.V(b + 3, mov64(R_Q + 6))
    S.V(b + 2, f'    v_max3_f32 {vr(MX)}, {vr(MX)}, {vr(Sx+7)}, {vr(T1)}')
    S.V(0, tn('sx0')); S.V(3, tn('sx3')); S.V(7, tn('sx7')); S.V(b, tn('smm0')); S.V(b + 3, tn('smm3'))
    S.emit()
    stamp(a, cfg, 4); T(a, cfg, 8)
    stg2 = []
    for tau in range(4, 6): stg2 += stage(lg, R_M + (tau - 4) * 8, 8 + tau, f'wo{tau}')
    seq = [mov64(R_Q + 8), mov64(R_Q + 10), mov64(R_Q + 12), mov64(R_Q + 14), stg2[0], stg2[1],
           f'    v_max3_f32 {vr(MX)}, {vr(MX)}, {vr(Sm)}, {vr(Sm+1)}',
           f'    v_max3_f32 {vr(MX)}, {vr(MX)}, {vr(Sm+2)}, {vr(Sm+3)}',
           f'    v_cndmask_b32 {vr(Sm)}, {vr(Sm)}, {vr(Sm+2)}, s[{S_MASK_ODD}:{S_MASK_ODD+1}]',
           f'    v_mov_b32 {vr(T1)}, {vr(MX)}',
           f'    v_cndmask_b32 {vr(Sm+1)}, {vr(Sm+1)}, {vr(Sm+3)}, s[{S_MASK_ODD}:{S_MASK_ODD+1}]',
           stg2[2],
           f'    v_permlane16_swap_b32 {vr(MX)}, {vr(T1)}',
           f'    v_max_f32 {vr(MX)}, {vr(MX)}, {vr(T1)}',
           f'    v_mov_b32 {vr(T1)}, {vr(MX)}',
           stg2[3], f'    v_mov_b32 {vr(PM16+1)}, 0',
           f'    v_permlane32_swap_b32 {vr(MX)}, {vr(T1)}',
           f'    v_max_f32 {vr(MX)}, {vr(MX)}, {vr(T1)}',
           f'    v_mul_f32 {vr(NEG)}, s{S_C}, {vr(MX)}']
    for r in [Sx, Sx + 2, Sx + 4, Sx + 6, Sm]:
        seq.append(f'    v_pk_fma_f32 {vr(r,2)}, {vr(r,2)}, s[{S_CC}:{S_CC+1}], {vr(NEG,2)} op_sel_hi:[1,1,0] neg_lo:[0,0,1] neg_hi:[0,0,1]')
    for r in list(range(Sx, Sx + 8)) + [Sm, Sm + 1]:
        seq.append(f'    v_exp_f32 {vr(r)}, {vr(r)}')
    for r in range(4):
        seq.append(cvt(Pq + r, Sx + 2 * r, Sx + 2 * r + 1))
    seq.append(cvt(PM16, Sm, Sm + 1))
    for x in seq: x() if callable(x) else a(x)
    TN(a, cfg, 'pvx')
    S = Sched(a)
    S.add(mf32(Ox, vr(V_VX, 4), vr(Pq, 4), '0'))
    S.add(mf32(Ox + 4, vr(V_VX + 4, 4), vr(Pq, 4), '0'))
    S.add(mf32(Lx, vr(ON, 4), vr(Pq, 4), '0'))
    S.add(f'    v_mfma_f32_16x16x16_bf16 {vr(Lx, 4)}, {vr(V_ON16, 2)}, {vr(PM16, 2)}, {vr(Lx, 4)}')
    for phi in range(2):
        S.add(f'    v_mfma_f32_16x16x16_bf16 {vr(Ox + 4*phi, 4)}, {vr(V_VB + 2*phi, 2)}, {vr(PM16, 2)}, {vr(Ox + 4*phi, 4)}')
    S.V(1, mov64(Sx)); S.V(1, mov64(Sx + 2)); S.V(2, mov64(Sx + 4)); S.V(2, mov64(Sx + 6))
    S.V(2, f'    buffer_load_dwordx4 {vr(V_VX,4)}, {vr(V_VLD)}, {WS}, s{S_VSRC} offen')
    S.V(3, f'    buffer_load_dwordx4 {vr(V_VX+4,4)}, {vr(V_VLD)}, {WS}, s{S_VSRC} offen offset:256')
    S.emit()
    TN(a, cfg, 'pvm')
    a(f'    v_rcp_f32 {vr(al)}, {vr(Lx)}')
    TN(a, cfg, 'rcp')
    dump(a, cfg, w, 2, Ox, 8)
    O4 = Pq
    if cfg.get('pkm'):
        for r in range(4):
            a(f'    v_pk_mul_f32 {vr(Ox+2*r,2)}, {vr(Ox+2*r,2)}, {vr(al,2)} op_sel_hi:[1,0]')
        for r in range(4): a(cvt(O4 + r, Ox + 2 * r, Ox + 2 * r + 1))
    else:
        for r in range(4):
            a(f'    v_mul_f32 {vr(Ox+2*r)}, {vr(Ox+2*r)}, {vr(al)}')
            a(f'    v_mul_f32 {vr(Ox+2*r+1)}, {vr(Ox+2*r+1)}, {vr(al)}')
            a(cvt(O4 + r, Ox + 2 * r, Ox + 2 * r + 1))
    a(f'    s_mov_b64 exec, s[{S_MASK_T}:{S_MASK_T+1}]')
    lg.issue(f'    ds_write_b128 {vr(V_OW)}, {vr(O4,4)} offset:{LDS_OX + w * 512}', 'ow')
    a('    s_mov_b64 exec, -1')
    stg6 = stage(lg, R_M + 16, 8 + 6, 'wo6')
    stg6[0](); stg6[1]()
    if not cfg.get('rstE'):
        a(mov64(X + 2, '-1')); a(mov64(X + 4, '-1'))
        a(f'    buffer_store_dwordx4 {vr(X+2,4)}, {vr(V_LIN16)}, {WS}, s{S_PR0} offen {ST}')
    T(a, cfg, 9); TN(a, cfg, 'ow')
    lg.wait('ow')
    a('    s_barrier')
    T(a, cfg, 10); TN(a, cfg, 'B3')
    OA = R_M + 24
    for kap in range(2):
        lg.issue(f'    ds_read_b128 {vr(OA + 4*kap, 4)}, {vr(V_OR)} offset:{kap * 1024}', f'oa{kap}')
    if not cfg.get('rstE'):
        a(f'    buffer_store_dwordx4 {vr(X+2,4)}, {vr(V_LIN16)}, {WS}, s{S_PR0} offen offset:1024 {ST}')
    stamp(a, cfg, 5)
    dump(a, cfg, w, 4, OA, 8)
    accO = [R_Q + 4 * i for i in range(4)] + [R_K + 4 * i for i in range(4)]
    def src1(tau): return R_S + tau * 8 if tau < 4 else (R_M + (tau - 4) * 8 if tau < 7 else R_S)
    last7 = stage(lg, R_S, 8 + 7, 'wo7')
    S = Sched(a)
    wov = cfg.get('wov', 0)
    if wov == 0: order = [(0,0),(1,0),(2,0),(3,0),(0,1),(1,1),(2,1),(3,1),(4,0),(5,0),(6,0),(7,0),(4,1),(5,1),(6,1),(7,1)]
    elif wov == 1: order = [(0,0),(0,1),(1,0),(1,1),(2,0),(2,1),(3,0),(3,1),(4,0),(4,1),(5,0),(5,1),(6,0),(6,1),(7,0),(7,1)]
    else: order = [(0,0),(1,0),(0,1),(1,1),(2,0),(3,0),(2,1),(3,1),(4,0),(5,0),(4,1),(5,1),(6,0),(7,0),(6,1),(7,1)]
    idx = {}
    for tau, kap in order:
        if kap == 0:
            i = S.add(smf(accO[tau], OA, wo0(tau))); S.P(i, waits('oa0'))
        else:
            i = S.add(smf(accO[tau], OA + 4, vr(src1(tau), 8))); S.P(i, waits('oa1', f'wo{tau}'))
        idx[(tau, kap)] = i
    S.D(idx[(0, 1)] + 1, last7[0]); S.D(idx[(0, 1)] + 2, last7[1])
    z = [mov64(R_K + 2 * k) for k in range(4)]
    for k in range(4): S.V(min(k, idx[(4, 0)] - 2), z[k])
    def pack(q, t):
        T0_ = accO[4 * q]
        return cvt(T0_ + t, accO[4 * q + t], accO[4 * q + t] + 1)
    def pstore(q): return f'    buffer_store_dwordx4 {vr(accO[4*q],4)}, {vr(V_PLD)}, {WS}, s{S_PST if q == 0 else S_PL1} offen {ST}'
    f2 = lambda tau: add2(accO[tau], accO[tau], accO[tau] + 2)
    per = cfg.get('woper', 2)
    work = []
    for q in range(2):
        for t in range(4):
            tau = 4 * q + t
            e = idx[(tau, 1)] + 3
            work += [(e, f2(tau)[0]), (e, f2(tau)[1]), (e, pack(q, t))]
        work.append((idx[(4 * q + 3, 1)] + 3, pstore(q)))
    pos = 0; used = {}
    tail = []
    for e, x in work:
        p = max(e, pos)
        while p <= 15 and used.get(p, 0) >= per: p += 1
        if p > 15: tail.append(x); pos = 99
        else:
            S.V(p, x); used[p] = used.get(p, 0) + 1; pos = p
    S.V(0, tn('wo0')); S.V(7, tn('wo7')); S.V(15, tn('wo15'))
    S.emit()
    for x in tail: a(x)
    stamp(a, cfg, 6); T(a, cfg, 11); TN(a, cfg, 'Woend')
    PA, D, SEL = R_Q, R_Q + 8, R_Q + 12
    lg2 = LG(a)
    a(f'    v_mov_b32 {vr(X)}, 0x3f80')
    a(f'    v_mov_b32 {vr(X+1)}, 0x3f800000')
    a(f'    v_cndmask_b32 {vr(X)}, {vr(X)}, {vr(X+1)}, s[{S_MASK_ODDL}:{S_MASK_ODDL+1}]')
    for u in range(4):
        a(f'    v_cndmask_b32 {vr(SEL+u)}, 0, {vr(X)}, s[{S_SEL+2*u}:{S_SEL+2*u+1}]')
    for f in range(4):
        for th in stage(lg2, R_S + f * 8, f): th()
    for r in range(0, 16, 2): a(mov64(R_K + r))
    a(mov64(X + 2, '-1')); a(mov64(X + 4, '-1'))
    a(f'    s_mov_b32 s{S_CNT}, 0')
    delay(a, cfg.get('d1', 0))
    a(hop1_loads())
    T(a, cfg, 12)
    np1 = cfg.get('np1', 1)
    for i in range(np1 - 1):
        delay(a, cfg.get('g1', 0))
        a(hop1_loads())
    if cfg.get('fused'):
        a(f"""
    s_and_b32 s{S_T0}, s{S_STEP}, 7
    s_cmp_eq_u32 s{S_T0}, 6
    s_cbranch_scc0 L_nkv_{tag}
    s_add_u32 s{S_T0}, s{S_STEP}, 2
    s_lshr_b32 s{S_T0}, s{S_T0}, 3
    s_lshl_b32 s{S_T0}, s{S_T0}, 7
    s_add_u32 s{S_T0}, s{S_T0}, {FL_G1}
    v_mov_b32 {vr(X)}, s{S_T0}
    buffer_load_dword {vr(X+1)}, {vr(X)}, {WS}, 0 offen sc1
    s_waitcnt vmcnt(0)
L_nkv_{tag}:
""")
    a(f'L_p1w_{tag}:')
    a(f'    s_waitcnt vmcnt({2 * (np1 - 1)})')
    a(mf32(D, vr(SEL, 4), vr(PA, 4), '0'))
    a(mf32(D, vr(SEL, 4), vr(PA + 4, 4), vr(D, 4)))
    a(f'    v_cmp_u_f32 vcc, {vr(D)}, {vr(D)}')
    a(f'    s_cbranch_vccnz L_p1r_{tag}')
    a(f'L_p1d_{tag}:')
    ool.append(lambda: retry_block(a, f'L_p1r_{tag}', f'L_p1w_{tag}', f'L_p1d_{tag}', hop1_loads()))
    stamp(a, cfg, 7); T(a, cfg, 13)
    for r in range(4):
        a(f'    v_add_f32_dpp {vr(D+r)}, {vr(D+r)}, {vr(D+r)} row_ror:8 row_mask:0xf bank_mask:0xf')
    for r in range(4):
        a(f'    v_add_f32_dpp {vr(D+r)}, {vr(D+r)}, {vr(D+r)} row_ror:4 row_mask:0xf bank_mask:0xf')
    a(f"""
    v_cvt_pk_bf16_f32 {vr(D)}, {vr(D)}, {vr(D+2)}
    v_cvt_pk_bf16_f32 {vr(D+1)}, {vr(D+1)}, {vr(D+3)}
    s_mov_b64 exec, s[{S_MASK_M}:{S_MASK_M+1}]
    v_cndmask_b32 {vr(D)}, {vr(D)}, {vr(D+1)}, s[{S_MASK_PB}:{S_MASK_PB+1}]
    v_min_u32 {vr(D)}, -2, {vr(D)}
    buffer_store_dword {vr(D)}, {vr(V_MST)}, {WS}, s{S_MNXT} offen {ST}
""")
    if cfg.get('dbgm'):
        a(f"""
    s_add_u32 s{S_DBGM}, s{S_DBGM}, 8192
    buffer_store_dword {vr(D)}, {vr(V_MST)}, {WS}, s{S_DBGM} offen
""")
    a(f"""
    buffer_store_dword {vr(X+2)}, {vr(V_MST)}, {WS}, s{S_MCUR} offen {ST}
    s_mov_b64 exec, -1
""")
    stamp(a, cfg, 8); T(a, cfg, 14)
    a(f"""
    s_add_u32 s{S_MPOLL}, s{S_MNXT}, {w * 2048}
    s_mov_b32 s{S_CNT}, 0
    s_add_u32 s{S_STEP}, s{S_STEP}, 1
""")
    if cfg.get('fused'):
        a(f"""
    s_and_b32 s{S_T0}, s{S_STEP}, 7
    s_cmp_eq_u32 s{S_T0}, 7
    s_cbranch_scc0 L_ckv_{tag}
    s_cmp_ge_u32 s{S_STEP}, 57
    s_cbranch_scc1 L_ckv_{tag}
L_ckvl_{tag}:
    v_readfirstlane_b32 s{S_T0}, {vr(X+1)}
    s_and_b32 s{S_T0}, s{S_T0}, 0xff
    s_cmp_eq_u32 s{S_T0}, 128
    s_cbranch_scc1 L_ckv_{tag}
    s_add_u32 s{S_CNT}, s{S_CNT}, 1
    s_cmp_lt_u32 s{S_CNT}, 400000
    s_cbranch_scc0 L_ckv_{tag}
    s_sleep 2
    buffer_load_dword {vr(X+1)}, {vr(X)}, {WS}, 0 offen sc1
    s_waitcnt vmcnt(0)
    s_branch L_ckvl_{tag}
L_ckv_{tag}:
    s_mov_b32 s{S_CNT}, 0
""")
    delay(a, cfg.get('d2', 0))
    a(hop2_loads(w))
    a(f"""
    s_mov_b32 s{S_T0}, s{S_MCUR}
    s_mov_b32 s{S_MCUR}, s{S_MNXT}
    s_mov_b32 s{S_MNXT}, s{S_MOTH}
    s_mov_b32 s{S_MOTH}, s{S_T0}
    s_xor_b32 s{S_PST}, s{S_PST}, 0x40000
    s_mov_b32 s{S_PR0}, s{S_PL0}
    s_xor_b32 s{S_PL0}, s{S_PL0}, 0x40000
    s_xor_b32 s{S_PL1}, s{S_PL1}, 0x40000
    s_add_u32 s{S_KSRC}, s{S_KSRC}, 0x40000
    s_xor_b32 s{S_KDST}, s{S_KDST}, 8192
    s_add_u32 s{S_VSRC}, s{S_VSRC}, 0x40000
    s_mov_b32 s{S_KMP}, s{S_KMO}
    s_mov_b32 s{S_VMP}, s{S_VMO}
    s_add_u32 s{S_KMO}, s{S_KMO}, 65536
    s_add_u32 s{S_VMO}, s{S_VMO}, 131072
    v_xor_b32 {vr(V_K0)}, 0x2000, {vr(V_K0)}
    v_xor_b32 {vr(V_K1)}, 0x2000, {vr(V_K1)}
""")
    if cfg.get('clk') and w == 0:
        a(f"""
    s_and_b32 s{S_T0}, s{S_STEP}, 7
    s_cmp_eq_u32 s{S_T0}, 0
    s_cbranch_scc0 L_clk_{tag}
    s_cmp_eq_u32 s{S_H}, 0
    s_cbranch_scc0 L_clk_{tag}
    s_memtime s[64:65]
    s_memrealtime s[66:67]
    s_waitcnt lgkmcnt(0)
    s_lshl_b32 s{S_T0}, s{S_STEP}, 1
    s_add_u32 s{S_T0}, s{S_T0}, 0x30000
    s_mov_b64 exec, 1
    v_mov_b32 {vr(X)}, s64
    v_mov_b32 {vr(X+1)}, 0
    buffer_store_dword {vr(X)}, {vr(X+1)}, {WS}, s{S_T0} offen
    v_mov_b32 {vr(X)}, s66
    buffer_store_dword {vr(X)}, {vr(X+1)}, {WS}, s{S_T0} offen offset:4
    s_mov_b64 exec, -1
L_clk_{tag}:
""")
    T(a, cfg, 15)
    stamp_accum(a, cfg)
    trace_dump(a, cfg, w)
    for i in range(np2 - 1):
        delay(a, cfg.get('g2', 0))
        a(hop2_loads(w))
    if cfg.get('rstend'):
        delay(a, cfg.get('d3', 0))
        a(f'    buffer_store_dwordx4 {vr(X+2,4)}, {vr(V_LIN16)}, {WS}, s{S_PR0} offen {ST}')
        a(f'    buffer_store_dwordx4 {vr(X+2,4)}, {vr(V_LIN16)}, {WS}, s{S_PR0} offen offset:1024 {ST}')
    else:
        a(mov64(R_Q + 8, '-1')); a(mov64(R_Q + 10, '-1'))

def emit_wave(a, cfg, w):
    ool = []
    emit_setup(a, cfg, w)
    def hook():
        if cfg.get('fused'):
            a(f"""
    s_cmp_lg_u32 s{S_H}, 0
    s_cbranch_scc1 L_nofi_{w}
    v_mov_b64 {vr(R_S,2)}, 0
    v_mov_b64 {vr(R_S+2,2)}, 0
    s_mov_b32 s{S_T0}, {WS_FL + w * 4096}
""")
            for i in range(4):
                a(f'    buffer_store_dwordx4 {vr(R_S,4)}, {vr(V_LIN16)}, {WS}, s{S_T0} offen offset:{i * 1024} sc1')
            a(f"""
L_nofi_{w}:
""")
        emit_init(a, cfg, w)
        a('    s_barrier')
        if w == 0:
            if cfg.get('fused'):
                a(f"""
    s_cmp_lg_u32 s{S_H}, 0
    s_cbranch_scc1 L_nofj
    s_mov_b64 exec, 1
    v_mov_b32 {vr(R_S)}, {DB_INIT}
    v_mov_b32 {vr(R_S+1)}, 1
    global_store_dword {vr(R_S)}, {vr(R_S+1)}, s[{S_DBG}:{S_DBG+1}] sc1
    s_mov_b64 exec, -1
L_nofj:
""")
            a(f"""
    s_mov_b64 exec, 1
    v_mov_b32 {vr(R_S)}, {DB_CBAR}
    v_mov_b32 {vr(R_S+1)}, s{S_ARR}
    global_atomic_add {vr(R_S)}, {vr(R_S+1)}, s[{S_DBG}:{S_DBG+1}] sc1
    s_mov_b64 exec, -1
    s_waitcnt vmcnt(0)
""")
    def hookB():
        a(f"""
    v_mov_b32 {vr(V_VX+3)}, {DB_INIT}
    global_load_dword {vr(V_VX)}, {vr(V_VX+3)}, s[{S_DBG}:{S_DBG+1}] sc1
    v_mov_b32 {vr(V_VX+4)}, {DB_CBAR}
    global_load_dword {vr(V_VX+1)}, {vr(V_VX+4)}, s[{S_DBG}:{S_DBG+1}] sc1
""")
    def hookA():
        a(f"""
    v_mov_b32 {vr(V_VX+5)}, {FL_G1}
    buffer_load_dword {vr(V_VX+2)}, {vr(V_VX+5)}, {WS}, 0 offen sc1
""")
    def hook2():
        a(f"""
    v_readfirstlane_b32 s{S_T0}, {vr(V_VX+1)}
    s_lshr_b32 s{S_MODE}, s{S_T0}, 16
    s_and_b32 s{S_T0}, s{S_T0}, 0xffff
    s_cmp_ge_u32 s{S_T0}, 32
    s_cbranch_scc1 L_cbd{w}
    v_mov_b32 {vr(R_X)}, {DB_CBAR}
    s_mov_b32 s{S_CNT}, 0
L_cb{w}:
    global_load_dword {vr(R_X+1)}, {vr(R_X)}, s[{S_DBG}:{S_DBG+1}] sc1
    s_waitcnt vmcnt(0)
    v_readfirstlane_b32 s{S_T0}, {vr(R_X+1)}
    s_lshr_b32 s{S_MODE}, s{S_T0}, 16
    s_and_b32 s{S_T0}, s{S_T0}, 0xffff
    s_cmp_ge_u32 s{S_T0}, 32
    s_cbranch_scc1 L_cbd{w}
    s_add_u32 s{S_CNT}, s{S_CNT}, 1
    s_cmp_lt_u32 s{S_CNT}, s{S_ERR}
    s_cbranch_scc1 L_cb{w}
    s_mov_b32 s{S_ERR}, 0
L_cbd{w}:
""")
        if cfg.get('fused'):
            a(f"""
    v_readfirstlane_b32 s{S_T0}, {vr(V_VX)}
    v_readfirstlane_b32 s{S_T1}, {vr(V_VX+2)}
    s_and_b32 s{S_T1}, s{S_T1}, 0xff
    s_cmp_eq_u32 s{S_T1}, 128
    s_cselect_b32 s{S_T1}, s{S_T0}, 0
    s_cmp_lg_u32 s{S_T1}, 0
    s_cbranch_scc1 L_kv0d_{w}
    v_mov_b32 {vr(R_X)}, {DB_INIT}
    s_mov_b32 s{S_CNT}, 0
L_ini_{w}:
    global_load_dword {vr(R_X+1)}, {vr(R_X)}, s[{S_DBG}:{S_DBG+1}] sc1
    s_waitcnt vmcnt(0)
    v_readfirstlane_b32 s{S_T0}, {vr(R_X+1)}
    s_cmp_lg_u32 s{S_T0}, 0
    s_cbranch_scc1 L_inid_{w}
    s_add_u32 s{S_CNT}, s{S_CNT}, 1
    s_cmp_lt_u32 s{S_CNT}, 100000
    s_cbranch_scc1 L_ini_{w}
L_inid_{w}:
    v_mov_b32 {vr(R_X)}, {FL_G1}
    s_mov_b32 s{S_CNT}, 0
L_kv0_{w}:
    buffer_load_dword {vr(R_X+1)}, {vr(R_X)}, {WS}, 0 offen sc1
    s_waitcnt vmcnt(0)
    v_readfirstlane_b32 s{S_T0}, {vr(R_X+1)}
    s_and_b32 s{S_T0}, s{S_T0}, 0xff
    s_cmp_eq_u32 s{S_T0}, 128
    s_cbranch_scc1 L_kv0d_{w}
    s_sleep 2
    s_add_u32 s{S_CNT}, s{S_CNT}, 1
    s_cmp_lt_u32 s{S_CNT}, 400000
    s_cbranch_scc1 L_kv0_{w}
L_kv0d_{w}:
""")
        a(f"""
    s_lshl_b32 s{S_T0}, s{S_H}, 13
    s_add_u32 s{S_T0}, s{S_T0}, {w * 2048}
    s_add_u32 s{S_KSRC}, s{S_T0}, {WS_K}
    s_mov_b32 s{S_KDST}, {LDS_KB + w * 2048}
    s_mov_b32 m0, s{S_KDST}
    s_add_u32 s{S_VSRC}, s{S_T0}, {WS_V}
    buffer_load_dwordx4 {vr(V_LIN16)}, {WS}, s{S_KSRC} offen lds
    buffer_load_dwordx4 {vr(V_LIN16)}, {WS}, s{S_KSRC} offen offset:1024 lds
    buffer_load_dwordx4 {vr(V_VX,4)}, {vr(V_VLD)}, {WS}, s{S_VSRC} offen
    buffer_load_dwordx4 {vr(V_VX+4,4)}, {vr(V_VLD)}, {WS}, s{S_VSRC} offen offset:256
    s_add_u32 s{S_KSRC}, s{S_KSRC}, 0x40000
    s_xor_b32 s{S_KDST}, s{S_KDST}, 8192
    s_add_u32 s{S_VSRC}, s{S_VSRC}, 0x40000
    s_mov_b32 s{S_STEP}, 0
    s_mov_b32 s{S_MCUR}, {WS_M}
    s_mov_b32 s{S_MNXT}, {WS_M + 8192}
    s_mov_b32 s{S_MOTH}, {WS_M + 16384}
    s_lshl_b32 s{S_T0}, s{S_H}, 6
    s_add_u32 s{S_PST}, s{S_T0}, {WS_P + (2 * w) * 32768}
    s_add_u32 s{S_PL1}, s{S_PST}, 32768
    s_lshl_b32 s{S_T0}, s{S_H}, 13
    s_add_u32 s{S_PL0}, s{S_T0}, {WS_P + w * 2048}
    s_add_u32 s{S_PR0}, s{S_PL0}, 262144
    s_lshl_b32 s{S_T0}, s{S_H}, 11
    s_add_u32 s{S_KMO}, s{S_T0}, {WS_KM}
    s_lshl_b32 s{S_T0}, s{S_H}, 12
    s_add_u32 s{S_VMO}, s{S_T0}, {WS_VM}
    s_mov_b32 s{S_DBGM}, {WS_DBGM}
    s_mov_b32 s{S_KMP}, 0x0F000000
    s_mov_b32 s{S_VMP}, 0x0F000000
    s_mov_b32 s96, {f2u(SOFT_C):#x}
    s_mov_b32 s97, {f2u(SOFT_C):#x}
    s_mov_b32 s98, 0x3f803f80
    s_mov_b32 s99, 0x3f803f80
    s_mov_b32 s{S_MASK_ODDL}, 0xaaaaaaaa
    s_mov_b32 s{S_MASK_ODDL+1}, 0xaaaaaaaa
""")

    if cfg.get('timing'): a('    s_memrealtime s[78:79]')
    emit_weight_prologue(a, cfg, w, hook, hook2, hookA, hookB)
    if cfg.get('timing'): a('    s_memrealtime s[80:81]')
    for k in range(10):
        a(f'    s_mov_b32 s{STAMP_ACC+k}, 0')
    a('    s_waitcnt vmcnt(0)')
    a('    s_barrier')
    lg = LG(a)
    idle_prep(a, lg)
    a(mov64(R_X + 2, '-1')); a(mov64(R_X + 4, '-1')); a(mov64(R_Q + 8, '-1')); a(mov64(R_Q + 10, '-1'))
    a(f"""
    s_add_u32 s{S_MPOLL}, s{S_MCUR}, {w * 2048}
    s_mov_b32 s{S_CNT}, 0
""")
    a(hop2_loads(w))
    a(f"""
    s_memtime s[{S_TM0}:{S_TM0+1}]
    s_memrealtime s[74:75]
    s_waitcnt vmcnt(0) lgkmcnt(0)
    s_mov_b32 s94, s{S_TM0}
""")
    modes = [('', cfg)]
    if cfg.get('fallback'):
        slow = dict(cfg); slow['st'] = 'sc1'; slow['sfx'] = 's'; slow.pop('trace', None); slow.pop('stamp', None); slow.pop('clk', None)
        modes.append(('s', slow))
        a(f'    s_cmp_lg_u32 s{S_MODE}, 0\n    s_cbranch_scc1 L_step{w}s')
    for sfx, c in modes:
        a(f'L_step{w}{sfx}:')
        emit_step(a, c, w, False, ool)
        a(f"""
    s_cmp_lt_u32 s{S_STEP}, {cfg.get('nsteps', 63)}
    s_cbranch_scc1 L_step{w}{sfx}
""")
        emit_step(a, c, w, True, ool)
        if sfx == '' and len(modes) > 1: a(f'    s_branch L_cfin{w}')
    a(f'L_cfin{w}:')
    a(f"""
    s_waitcnt vmcnt(0)
    s_barrier
    s_memtime s[{S_TM1}:{S_TM1+1}]
    s_memrealtime s[76:77]
    s_waitcnt lgkmcnt(0)
""")
    if cfg.get('progress') and w == 0:
        a(f"""
    s_mov_b64 exec, 1
    v_mov_b32 {vr(R_X)}, 64
    s_lshl_b32 s{S_T0}, s{S_H}, 7
    s_add_u32 s{S_T0}, s{S_T0}, {FL_P}
    v_mov_b32 {vr(R_X+1)}, 0
    buffer_store_dword {vr(R_X)}, {vr(R_X+1)}, {WS}, s{S_T0} offen sc1
    s_mov_b64 exec, -1
""")
    if cfg.get('timing'):
        a(f"""
    s_sub_u32 s{S_TM1}, s{S_TM1}, s{S_TM0}
    s_lshl_b32 s{S_T0}, s{S_H}, 2
    s_add_u32 s{S_T0}, s{S_T0}, {w}
    s_lshl_b32 s{S_T0}, s{S_T0}, 7
    s_add_u32 s{S_T0}, s{S_T0}, 0x1000
    s_mov_b64 exec, 1
    v_mov_b32 {vr(R_X)}, 0
    v_mov_b32 {vr(R_X+1)}, s{S_TM1}
    buffer_store_dword {vr(R_X+1)}, {vr(R_X)}, {WS}, s{S_T0} offen
    v_mov_b32 {vr(R_X+1)}, s{S_ERR}
    buffer_store_dword {vr(R_X+1)}, {vr(R_X)}, {WS}, s{S_T0} offen offset:4
""")
        for k in range(17):
            a(f'    v_mov_b32 {vr(R_X+1)}, s{(STAMP_ACC+k) if k < 10 else {10: 74, 11: 76, 12: 73, 13: 78, 14: 80, 15: 68, 16: 66}[k]}')
            a(f'    buffer_store_dword {vr(R_X+1)}, {vr(R_X)}, {WS}, s{S_T0} offen offset:{8+4*k}')
        a('    s_mov_b64 exec, -1')
    a('    s_branch L_chain_end')
    for f in ool: f()

class Filt:
    def __init__(self, a, cfg): self.a = a; self.cfg = cfg; self.lines = a.lines
    def __call__(self, text):
        out = []
        for ln in text.split('\n'):
            if self.cfg.get('nopub') and ('sc1' in ln and 'store_dwordx4' in ln): continue
            if self.cfg.get('nokv') and (' lds' in ln and f's{S_KSRC}' in ln): continue
            if self.cfg.get('nokv') and (f's{S_VSRC} offen' in ln): continue
            if self.cfg.get('noreset') and (f's{S_PR0} offen' in ln or f's{S_PR1} offen' in ln):
                continue
            out.append(ln)
        self.a('\n'.join(out))
    def label(self, n): self.a.label(n)

def emit_chain(a, cfg):
    HOP2_BOTH[0] = bool(cfg.get('both'))
    a = Filt(a, cfg)
    a(f"""
    s_load_dwordx2 s[{S_WSP}:{S_WSP+1}], s[0:1], {KA_WS}
    s_load_dwordx2 s[{S_DBG}:{S_DBG+1}], s[0:1], {KA_DBG}
    s_load_dwordx2 s[{SRD_Q}:{SRD_Q+1}], s[0:1], {KA_WQ}
    s_load_dwordx2 s[{SRD_K}:{SRD_K+1}], s[0:1], {KA_WK}
    s_load_dwordx2 s[{SRD_V}:{SRD_V+1}], s[0:1], {KA_WV}
    s_load_dwordx2 s[{SRD_O}:{SRD_O+1}], s[0:1], {KA_WO}
    s_load_dwordx2 s[{SRD_A}:{SRD_A+1}], s[0:1], {KA_MEM0}
    s_waitcnt lgkmcnt(0)
    s_mov_b32 s{SRD_WS}, s{S_WSP}
    s_mov_b32 s{SRD_WS+1}, s{S_WSP+1}
    s_mov_b32 s{SRD_WS+2}, {WS_SIZE}
    s_mov_b32 s{SRD_WS+3}, 0x20000
    s_mov_b32 s{SRD_A+2}, 8192
    s_mov_b32 s{SRD_A+3}, 0x20000
""")
    for S in (SRD_Q, SRD_K, SRD_V, SRD_O):
        a(f'    s_mov_b32 s{S+2}, 0x400000\n    s_mov_b32 s{S+3}, 0x20000')
    a(f'    s_mov_b32 s{S_ERR}, {cfg.get("maxpoll", 20000)}')
    for w in range(1, 4):
        a(f'    s_cmp_eq_u32 s{S_W}, {w}\n    s_cbranch_scc1 L_wave{w}')
    for w in range(4):
        a(f'L_wave{w}:')
        emit_wave(a, cfg, w)
    a('L_chain_end:')
```

```python
from asmlib import *
from layout import *
import struct
def f2u(x): return struct.unpack('<I', struct.pack('<f', x))[0]

S_W = 4
SRD_WS, SRD_X = 8, 12
S_TB, S_CU, S_NU = 5, 6, 7
SRD_TA, SRD_TB = 16, 20
SRD_WQ, SRD_WK, SRD_WV, SRD_W1, SRD_W3 = 24, 28, 32, 36, 40
S_COL, S_STR8 = 44, 45
S_T0, S_T1, S_T2 = 46, 47, 48
S_TYPE, S_OUT = 49, 50
S_NTYPE, S_NOUT = 51, 52
S_ROW = 53
S_NLOG = 54
S_ISF = 56
S_ONE = 58
S_O0, S_O1, S_FIRST = 64, 65, 66
V_LIN16, V_DQ, V_DF, V_DCUR, V_T0, V_T1, V_STK, V_XA, V_L, V_TMP = 0, 1, 2, 3, 4, 5, 6, 7, 8, 9
V_T2, V_T3, V_JUNK = 12, 13, 14
V_WF = 64
V_E = 16
V_ACC = 128
LDS_RING = 0
WS = f's[{SRD_WS}:{SRD_WS+3}]'
NSLOT = 8
PD = 6

def acc(ct, tt): return V_ACC + (ct * 2 + tt) * 16
def xf(tt, ks): return ar((tt * 32 + ks) * 4, 4)

def emit_gate(a, wg_sgpr):
    t = V_E
    a(f'''
    s_lshl_b32 s{S_T0}, s{wg_sgpr}, 3
    s_lshl_b32 s{S_T1}, s{S_W}, 1
    s_add_u32 s{S_T0}, s{S_T0}, s{S_T1}           ; token0
    s_lshl_b32 s{S_T1}, s{S_T0}, 10
    buffer_load_dwordx4 {vr(t,4)}, {vr(V_LIN16)}, s[60:63], 0 offen
    buffer_load_dwordx4 {vr(t+4,4)}, {vr(V_LIN16)}, s[{SRD_X}:{SRD_X+3}], s{S_T1} offen
    buffer_load_dwordx4 {vr(t+8,4)}, {vr(V_LIN16)}, s[{SRD_X}:{SRD_X+3}], s{S_T1} offen offset:1024
    s_waitcnt vmcnt(0)
''')
    G = t + 12
    for i in range(4):
        a(f'    v_lshlrev_b32 {vr(G+2*i)}, 16, {vr(t+i)}')
        a(f'    v_and_b32 {vr(G+2*i+1)}, 0xffff0000, {vr(t+i)}')
    for tk in range(2):
        x = t + 4 + 4 * tk
        A = t + 20 + tk
        u = t + 24
        for i in range(4):
            a(f'    v_lshlrev_b32 {vr(u)}, 16, {vr(x+i)}')
            a(f'    v_and_b32 {vr(u+1)}, 0xffff0000, {vr(x+i)}')
            if i == 0:
                a(f'    v_mul_f32 {vr(A)}, {vr(u)}, {vr(G)}')
            else:
                a(f'    v_fmac_f32 {vr(A)}, {vr(u)}, {vr(G+2*i)}')
            a(f'    v_fmac_f32 {vr(A)}, {vr(u+1)}, {vr(G+2*i+1)}')
        for sh in (1, 2, 4, 8):
            a(f'    v_add_f32_dpp {vr(A)}, {vr(A)}, {vr(A)} row_ror:{sh} row_mask:0xf bank_mask:0xf')
        a(f'    v_mov_b32 {vr(u)}, {vr(A)}')
        a(f'    v_permlane16_swap_b32 {vr(A)}, {vr(u)}')
        a(f'    v_add_f32 {vr(A)}, {vr(A)}, {vr(u)}')
        a(f'    v_mov_b32 {vr(u)}, {vr(A)}')
        a(f'    v_permlane32_swap_b32 {vr(A)}, {vr(u)}')
        a(f'    v_add_f32 {vr(A)}, {vr(A)}, {vr(u)}')
        a(f'    v_cvt_pk_bf16_f32 {vr(A)}, {vr(A)}, {vr(A)}')
        a(f'    v_and_b32 {vr(A)}, 0xffff0000, {vr(A)}')
        a(f'    v_mul_f32 {vr(A)}, s{S_NLOG}, {vr(A)}')
        a(f'    v_exp_f32 {vr(A)}, {vr(A)}')
        a(f'    v_add_f32 {vr(A)}, 1.0, {vr(A)}')
        a(f'    v_rcp_f32 {vr(A)}, {vr(A)}')
        a(f'    v_cvt_pk_bf16_f32 {vr(A)}, {vr(A)}, {vr(A)}')
        a(f'    v_and_b32 {vr(A)}, 0xffff0000, {vr(A)}')
    a(f'''
    s_lshl_b32 s{S_T0}, s{S_T0}, 2
    s_add_u32 s{S_T0}, s{S_T0}, {WS_G}
    v_mov_b32 {vr(t)}, 0
    s_mov_b64 exec, 1
    buffer_store_dword {vr(t+20)}, {vr(t)}, {WS}, s{S_T0} offen
    buffer_store_dword {vr(t+21)}, {vr(t)}, {WS}, s{S_T0} offen offset:4
    s_mov_b64 exec, -1
''')

def emit_setup(a):
    L = V_L
    t0, t1, t2 = V_E, V_E + 1, V_E + 2
    a(f'''
    v_and_b32 {vr(L)}, 63, v0
    v_lshlrev_b32 {vr(V_LIN16)}, 4, {vr(L)}
    v_lshrrev_b32 {vr(t0)}, 3, {vr(L)}
    v_bfe_u32 {vr(t1)}, {vr(L)}, 1, 2
    v_and_b32 {vr(t2)}, 2, {vr(t0)}
    v_xor_b32 {vr(t1)}, {vr(t1)}, {vr(t2)}
    v_lshlrev_b32 {vr(t1)}, 5, {vr(t1)}
    v_and_b32 {vr(t2)}, 1, {vr(L)}
    v_lshlrev_b32 {vr(t2)}, 4, {vr(t2)}
    v_add_u32 {vr(t1)}, {vr(t1)}, {vr(t2)}
    v_lshlrev_b32 {vr(t2)}, 13, {vr(t0)}
    v_add_u32 {vr(V_DQ)}, {vr(t1)}, {vr(t2)}
    v_mul_u32_u24 {vr(t2)}, 3584, {vr(t0)}
    v_add_u32 {vr(V_DF)}, {vr(t1)}, {vr(t2)}
    v_lshrrev_b32 {vr(t0)}, 5, {vr(L)}
    v_lshlrev_b32 {vr(t0)}, 10, {vr(t0)}
    v_bfe_u32 {vr(t1)}, {vr(L)}, 2, 2
    v_lshlrev_b32 {vr(t2)}, 7, {vr(t1)}
    v_add_u32 {vr(t0)}, {vr(t0)}, {vr(t2)}
    v_and_b32 {vr(t1)}, 2, {vr(t1)}
    v_bfe_u32 {vr(t2)}, {vr(L)}, 4, 1
    v_add_u32 {vr(t1)}, {vr(t1)}, {vr(t2)}
    v_lshlrev_b32 {vr(t1)}, 5, {vr(t1)}
    v_add_u32 {vr(t0)}, {vr(t0)}, {vr(t1)}
    v_and_b32 {vr(t1)}, 3, {vr(L)}
    v_lshlrev_b32 {vr(t1)}, 3, {vr(t1)}
    v_add_u32 {vr(V_T0)}, {vr(t0)}, {vr(t1)}
    v_xor_b32 {vr(V_T1)}, 64, {vr(V_T0)}
    v_add_u32 {vr(V_T2)}, 0x10000, {vr(V_T0)}
    v_add_u32 {vr(V_T3)}, 0x10000, {vr(V_T1)}
    v_and_b32 {vr(t0)}, 31, {vr(L)}
    v_bfe_u32 {vr(t1)}, {vr(L)}, 4, 1
    v_lshlrev_b32 {vr(t1)}, 3, {vr(t1)}
    v_xor_b32 {vr(t0)}, {vr(t0)}, {vr(t1)}
    v_lshlrev_b32 {vr(t0)}, 4, {vr(t0)}
    v_lshrrev_b32 {vr(t1)}, 5, {vr(L)}
    v_lshlrev_b32 {vr(t1)}, 9, {vr(t1)}
    v_add_u32 {vr(V_STK)}, {vr(t0)}, {vr(t1)}
    v_and_b32 {vr(t0)}, 31, {vr(L)}
    v_lshlrev_b32 {vr(t1)}, 10, {vr(t0)}
    v_and_b32 {vr(t0)}, 15, {vr(t0)}
    v_lshrrev_b32 {vr(t2)}, 5, {vr(L)}
    v_xor_b32 {vr(t0)}, {vr(t0)}, {vr(t2)}
    v_lshlrev_b32 {vr(t0)}, 4, {vr(t0)}
    v_add_u32 {vr(t0)}, {vr(t0)}, {vr(t1)}
    s_lshl_b32 s{S_T0}, s{S_W}, 15
    s_add_u32 s{S_T0}, s{S_T0}, 32768
    v_add_u32 {vr(V_XA)}, s{S_T0}, {vr(t0)}
''')

def emit_load_x(a, half=None):
    for tt in range(2 if half is None else 1):
        if half is None:
            a(f'''
    s_lshl_b32 s{S_T0}, s{S_TB}, 8
    s_lshl_b32 s{S_T1}, s{S_W}, 6
    s_add_u32 s{S_T0}, s{S_T0}, s{S_T1}
    s_add_u32 s{S_T0}, s{S_T0}, {tt * 32}''')
        else:
            a(f'''
    s_lshl_b32 s{S_T0}, s{S_TB}, 8
    s_lshl_b32 s{S_T1}, s{half}, 7
    s_add_u32 s{S_T0}, s{S_T0}, s{S_T1}
    s_lshl_b32 s{S_T1}, s{S_W}, 5
    s_add_u32 s{S_T0}, s{S_T0}, s{S_T1}''')
        a(f'''
    s_lshl_b32 s{S_T0}, s{S_T0}, 10
    s_lshl_b32 s{S_T1}, s{S_W}, 15
    s_add_u32 s{S_T1}, s{S_T1}, 32768
''')
        for t in range(32):
            a(f'''
    v_xor_b32 {vr(V_TMP)}, {(t & 15) << 4}, {vr(V_LIN16)}
    s_mov_b32 m0, s{S_T1}
    buffer_load_dwordx4 {vr(V_TMP)}, s[{SRD_X}:{SRD_X+3}], s{S_T0} offen lds
    s_add_u32 s{S_T0}, s{S_T0}, 1024
    s_add_u32 s{S_T1}, s{S_T1}, 1024
''')
        a('    s_waitcnt vmcnt(0)')
        for ks in range(32):
            a(f'    v_xor_b32 {vr(V_TMP + (ks & 1))}, {ks << 5}, {vr(V_XA)}')
            a(f'    ds_read_b128 {xf(tt, ks)}, {vr(V_TMP + (ks & 1))}')
        a('    s_waitcnt lgkmcnt(0)')

def emit_decode(a, cu, typ, out):
    a(f'''
    s_lshr_b32 s{S_T0}, s{cu}, 5            ; 0 K, 1 V, 2 Q, 3 F
    s_and_b32 s{S_T1}, s{cu}, 31            ; head / fb
    s_mov_b32 s{typ}, s{S_T0}
    s_cmp_eq_u32 s{S_T0}, 3
    s_cbranch_scc1 L_decF_%(id)s
    s_lshl_b32 s{S_COL}, s{S_T1}, 8
    s_mov_b32 s{S_STR8}, 65536
    v_mov_b32 {vr(V_DCUR)}, {vr(V_DQ)}
    ; select matrix
    s_cmp_eq_u32 s{S_T0}, 0
    s_cselect_b32 s{SRD_TA}, s{SRD_WK}, s{SRD_WV}
    s_cselect_b32 s{SRD_TA+1}, s{SRD_WK+1}, s{SRD_WV+1}
    s_mov_b32 s{S_T2}, {WS_V}
    s_cselect_b32 s{S_T2}, {WS_K}, s{S_T2}
    s_cmp_eq_u32 s{S_T0}, 2
    s_cselect_b32 s{SRD_TA}, s{SRD_WQ}, s{SRD_TA}
    s_cselect_b32 s{SRD_TA+1}, s{SRD_WQ+1}, s{SRD_TA+1}
    s_cselect_b32 s{S_T2}, {WS_Q}, s{S_T2}
    s_mov_b32 s{SRD_TA+2}, 0x400000
    s_mov_b32 s{SRD_TA+3}, 0x20000
    s_add_u32 s{SRD_TB}, s{SRD_TA}, 128
    s_addc_u32 s{SRD_TB+1}, s{SRD_TA+1}, 0
    s_mov_b32 s{SRD_TB+2}, {0x400000 - 128}
    s_mov_b32 s{SRD_TB+3}, 0x20000
    ; out = base + ((tb*8 + w*2)*32 + h)*8192
    s_lshl_b32 s{out}, s{S_TB}, 3
    s_lshl_b32 s{S_T0}, s{S_W}, 1
    s_add_u32 s{out}, s{out}, s{S_T0}
    s_lshl_b32 s{out}, s{out}, 5
    s_add_u32 s{out}, s{out}, s{S_T1}
    s_lshl_b32 s{out}, s{out}, 13
    s_add_u32 s{out}, s{out}, s{S_T2}
    s_branch L_decD_%(id)s
L_decF_%(id)s:
    s_lshl_b32 s{S_COL}, s{S_T1}, 7
    s_mov_b32 s{S_STR8}, {3584 * 8}
    v_mov_b32 {vr(V_DCUR)}, {vr(V_DF)}
    s_mov_b32 s{SRD_TA}, s{SRD_W1}
    s_mov_b32 s{SRD_TA+1}, s{SRD_W1+1}
    s_mov_b32 s{SRD_TA+2}, {512 * 3584}
    s_mov_b32 s{SRD_TA+3}, 0x20000
    s_mov_b32 s{SRD_TB}, s{SRD_W3}
    s_mov_b32 s{SRD_TB+1}, s{SRD_W3+1}
    s_mov_b32 s{SRD_TB+2}, {512 * 3584}
    s_mov_b32 s{SRD_TB+3}, 0x20000
    ; out = WS_H + (tb*8 + w*2)*H_SEG + fb*4096
    s_lshl_b32 s{out}, s{S_TB}, 3
    s_lshl_b32 s{S_T0}, s{S_W}, 1
    s_add_u32 s{out}, s{out}, s{S_T0}
    s_mul_i32 s{out}, s{out}, {H_SEG}
    s_lshl_b32 s{S_T1}, s{S_T1}, 12
    s_add_u32 s{out}, s{out}, s{S_T1}
    s_add_u32 s{out}, s{out}, {WS_H}
L_decD_%(id)s:
    ; running row offset for this wave: col + (2w)*8*stride
    s_mul_i32 s{S_ROW}, s{S_STR8}, s{S_W}
    s_lshl_b32 s{S_ROW}, s{S_ROW}, 1
    s_add_u32 s{S_ROW}, s{S_ROW}, s{S_COL}
''' % dict(id='u%d' % len(a.lines)))

def dma_chunk(a, slot):
    for hb, S in ((0, SRD_TA), (1, SRD_TB)):
        for j in range(2):
            a(f'''
    s_lshl_b32 s{S_T0}, s{S_W}, 11
    s_add_u32 m0, s{S_T0}, {LDS_RING + slot * 16384 + hb * 8192 + j * 1024}
''')
            if j == 0:
                a(f'    buffer_load_dwordx4 {vr(V_DCUR)}, s[{S}:{S+3}], s{S_ROW} offen lds')
            else:
                a(f'    s_add_u32 s{S_T1}, s{S_ROW}, s{S_STR8}')
                a(f'    buffer_load_dwordx4 {vr(V_DCUR)}, s[{S}:{S+3}], s{S_T1} offen lds')
    a(f'    s_lshl_b32 s{S_T0}, s{S_STR8}, 3')
    a(f'    s_add_u32 s{S_ROW}, s{S_ROW}, s{S_T0}')

def wreads(buf, slot, kk):
    out = []
    for ct in range(4):
        for rr in range(2):
            if slot < 4: addr = V_T1 if ct & 1 else V_T0
            else: addr = V_T3 if ct & 1 else V_T2
            off = LDS_RING + (slot % 4) * 16384 + (ct >> 1) * 8192 + kk * 2048 + rr * 512
            out.append(f'    ds_read_b64_tr_b16 {vr(V_WF + buf * 16 + ct * 4 + 2 * rr, 2)}, {vr(addr)} offset:{off}')
    return out


def dummies(a, n):
    for i in range(n):
        a(f'    buffer_load_dword {vr(V_JUNK)}, {vr(V_LIN16)}, s[{SRD_X}:{SRD_X+3}], 0 offen')

def emit_mainloop(a, vtype, tag, next_decode, midflag=None, ntt=2):
    a('    s_waitcnt vmcnt(36)')
    a('    s_barrier')
    for x in wreads(0, 0, 0): a(x)
    for c in range(8):
        slot = c % NSLOT
        for kk in range(4):
            ks = c * 4 + kk
            buf = ks & 1
            if kk < 3: nxt = wreads(buf ^ 1, slot, kk + 1)
            elif c < 7: nxt = wreads(buf ^ 1, (c + 1) % NSLOT, 0)
            else: nxt = []
            a('    s_waitcnt lgkmcnt(0)')
            if kk == 3 and c < 7:
                a(f'    s_waitcnt vmcnt({36 if c <= 4 else 20})')
                a('    s_barrier')
                if c == 5 and midflag: midflag()
            i = 0
            for ct in range(4):
                for tt in range(ntt):
                    C = '0' if ks == 0 else vr(acc(ct, tt), 16)
                    wf = vr(V_WF + buf * 16 + ct * 4, 4)
                    if vtype:
                        a(f'    v_mfma_f32_32x32x16_bf16 {vr(acc(ct,tt),16)}, {xf(tt, ks)}, {wf}, {C}')
                    else:
                        a(f'    v_mfma_f32_32x32x16_bf16 {vr(acc(ct,tt),16)}, {wf}, {xf(tt, ks)}, {C}')
                    for x in nxt[2*i:2*i+2]: a(x)
                    i += 1
                    if kk == 0 and i == (5 if ntt == 2 else 4):
                        if c == 2: next_decode()
                        dma_chunk(a, (c + PD) % NSLOT)

def epi_pack(a, lanereg, segstride, ST, ntt=2):
    k = 0
    for tt in range(ntt):
        a(f'    s_add_u32 s{S_O0}, s{S_OUT}, {tt * segstride}')
        a(f'    s_add_u32 s{S_O1}, s{S_O0}, 4096')
        for ct in range(4):
            A = acc(ct, tt)
            for cb in range(2):
                E = V_E + (k % 4) * 4; k += 1
                for i in range(4):
                    a(f'    v_cvt_pk_bf16_f32 {vr(E+i)}, {vr(A + 8*cb + 2*i)}, {vr(A + 8*cb + 2*i + 1)}')
                off = (4 * ct + 2 * cb) * 512
                so = S_O0 if off < 4096 else S_O1
                a(f'    buffer_store_dwordx4 {vr(E,4)}, {vr(lanereg)}, {WS}, s{so} offen offset:{off % 4096} {ST}')

def epi_ffn(a, ST):
    k = 0
    T = V_E + 16
    for tt in range(2):
        a(f'    s_add_u32 s{S_O0}, s{S_OUT}, {tt * H_SEG}')
        for ct in range(2):
            G, U = acc(ct, tt), acc(ct + 2, tt)
            for cb in range(2):
                E = V_E + (k % 4) * 4; k += 1
                for i in range(4):
                    g, u = G + 8 * cb + 2 * i, U + 8 * cb + 2 * i
                    t = T + 2 * i
                    a(f'    v_pk_mul_f32 {vr(t,2)}, {vr(g,2)}, s[{S_NLOG}:{S_NLOG+1}]')
                    a(f'    v_pk_mul_f32 {vr(g,2)}, {vr(g,2)}, {vr(u,2)}')
                    a(f'    v_exp_f32 {vr(t)}, {vr(t)}')
                    a(f'    v_exp_f32 {vr(t+1)}, {vr(t+1)}')
                for i in range(4):
                    t = T + 2 * i
                    a(f'    v_pk_add_f32 {vr(t,2)}, {vr(t,2)}, s[{S_ONE}:{S_ONE+1}]')
                for i in range(4):
                    t = T + 2 * i
                    a(f'    v_rcp_f32 {vr(t)}, {vr(t)}')
                    a(f'    v_rcp_f32 {vr(t+1)}, {vr(t+1)}')
                for i in range(4):
                    g = G + 8 * cb + 2 * i; t = T + 2 * i
                    a(f'    v_pk_mul_f32 {vr(g,2)}, {vr(g,2)}, {vr(t,2)}')
                    a(f'    v_cvt_pk_bf16_f32 {vr(E+i)}, {vr(g)}, {vr(g+1)}')
                off = (4 * ct + 2 * cb) * 512
                a(f'    buffer_store_dwordx4 {vr(E,4)}, {vr(V_LIN16)}, {WS}, s{S_O0} offen offset:{off} {ST}')

def emit_g1_kernel(a, cfg):
    ST = cfg.get('st_pub', '')
    a(f"""
    s_load_dwordx2 s[{SRD_WS}:{SRD_WS+1}], s[0:1], {KA_WS}
    s_load_dwordx2 s[{SRD_X}:{SRD_X+1}], s[0:1], {KA_X}
    s_load_dwordx2 s[{SRD_WQ}:{SRD_WQ+1}], s[0:1], {KA_WQ}
    s_load_dwordx2 s[{SRD_WK}:{SRD_WK+1}], s[0:1], {KA_WK}
    s_load_dwordx2 s[{SRD_WV}:{SRD_WV+1}], s[0:1], {KA_WV}
    s_load_dwordx2 s[{SRD_W1}:{SRD_W1+1}], s[0:1], {KA_W1}
    s_load_dwordx2 s[{SRD_W3}:{SRD_W3+1}], s[0:1], {KA_W3}
    s_load_dwordx2 s[60:61], s[0:1], {KA_GW}
    v_lshrrev_b32 v1, 6, v0
    s_nop 1
    v_readfirstlane_b32 s{S_W}, v1
    s_waitcnt lgkmcnt(0)
    s_mov_b32 s{SRD_WS+2}, {WS_SIZE}
    s_mov_b32 s{SRD_WS+3}, 0x20000
    s_mov_b32 s{SRD_X+2}, {2048 * 1024}
    s_mov_b32 s{SRD_X+3}, 0x20000
    s_mov_b32 s62, 1024
    s_mov_b32 s63, 0x20000
    s_mov_b32 s{S_NLOG}, {f2u(-1.4426950408889634):#x}
    s_mov_b32 s{S_NLOG+1}, {f2u(-1.4426950408889634):#x}
    s_mov_b32 s{S_ONE}, 1.0
    s_mov_b32 s{S_ONE+1}, 1.0
    s_lshr_b32 s{S_TB}, s2, 3
    s_and_b32 s{S_TB}, s{S_TB}, 7
    s_lshr_b32 s{S_CU}, s2, 6
    s_lshl_b32 s{S_CU}, s{S_CU}, 3
    s_and_b32 s{S_T0}, s2, 7
    s_add_u32 s{S_CU}, s{S_CU}, s{S_T0}
""")
    tm = cfg.get('timing')
    def TS(k):
        if tm: a(f'    s_memrealtime s[{70+2*k}:{70+2*k+1}]')
    TS(0)
    emit_setup(a)
    emit_gate(a, 2)
    TS(1)
    emit_load_x(a)
    a('    s_barrier')
    TS(2)
    if tm: a('    s_memtime s[82:83]')
    emit_decode(a, S_CU, S_TYPE, S_OUT)
    for c in range(PD): dma_chunk(a, c)
    dummies(a, 16)
    def next_decode():
        a(f"""
    s_add_u32 s{S_FIRST}, s{S_CU}, 32
    s_cmp_ge_u32 s{S_FIRST}, 124
    s_cselect_b32 s{S_FIRST+1}, s{S_CU}, s{S_FIRST}
""")
        emit_decode(a, S_FIRST + 1, S_NTYPE, S_NOUT)
    a('L_g1_unit:')
    a(f"""
    s_cmp_eq_u32 s{S_TYPE}, 1
    s_cbranch_scc1 L_g1_v
""")
    emit_mainloop(a, False, 'k', next_decode)
    a('    s_branch L_g1_next')
    a('L_g1_v:')
    emit_mainloop(a, True, 'v', next_decode)
    a('L_g1_next:')
    if tm:
        a(f"""
    s_lshr_b32 s{S_T0}, s{S_CU}, 5
    s_cmp_eq_u32 s{S_T0}, 0
    s_cbranch_scc0 L_ts1
    s_memrealtime s[76:77]
L_ts1:
    s_cmp_eq_u32 s{S_T0}, 2
    s_cbranch_scc0 L_ts2
    s_memrealtime s[78:79]
L_ts2:
""")
    a(f"""
    s_cmp_eq_u32 s{S_TYPE}, 3
    s_cbranch_scc1 L_g1_ef
    s_cmp_eq_u32 s{S_TYPE}, 1
    s_cbranch_scc1 L_g1_ev
""")
    epi_pack(a, V_STK, 262144, ST)
    a('    s_branch L_g1_ed')
    a('L_g1_ev:')
    epi_pack(a, V_LIN16, 262144, ST)
    a('    s_branch L_g1_ed')
    a('L_g1_ef:')
    epi_ffn(a, ST)
    dummies(a, 8)
    a('L_g1_ed:')
    a(f"""
    s_mov_b32 s{S_TYPE}, s{S_NTYPE}
    s_mov_b32 s{S_OUT}, s{S_NOUT}
    s_add_u32 s{S_CU}, s{S_CU}, 32
    s_cmp_lt_u32 s{S_CU}, 124
    s_cbranch_scc1 L_g1_unit
    s_waitcnt vmcnt(0)
""")
    if tm:
        a(f'''
    s_waitcnt vmcnt(0)
    s_memrealtime s[80:81]
    s_memtime s[84:85]
    s_waitcnt lgkmcnt(0)
    s_lshl_b32 s{S_T0}, s2, 2
    s_add_u32 s{S_T0}, s{S_T0}, s{S_W}
    s_lshl_b32 s{S_T0}, s{S_T0}, 5
    s_add_u32 s{S_T0}, s{S_T0}, 0x10000
    s_mov_b64 exec, 1
    v_mov_b32 v20, 0
''')
        for k in range(8):
            a(f'    v_mov_b32 v21, s{70+2*k}')
            a(f'    buffer_store_dword v21, v20, {WS}, s{S_T0} offen offset:{4*k}')


S_WID, S_DBG2 = 90, 68
S_STRIDE, S_URG, S_PEND, S_SESS = 70, 71, 72, 73
S_PTB = 74

def flag_add(a, lab):
    a(f"""
    s_cmp_eq_u32 s{S_PEND}, 0
    s_cbranch_scc1 {lab}
    s_cmp_lg_u32 s{S_W}, 0
    s_cbranch_scc1 {lab}_c
    s_cmp_lg_u32 s89, 0
    s_cbranch_scc1 {lab}_i
    v_mov_b32 {vr(V_TMP)}, {DB_INIT}
    s_mov_b32 s78, 0
{lab}_w:
    global_load_dword {vr(V_TMP+1)}, {vr(V_TMP)}, s[{S_DBG2}:{S_DBG2+1}] sc1
    s_waitcnt vmcnt(0)
    v_readfirstlane_b32 s89, {vr(V_TMP+1)}
    s_cmp_lg_u32 s89, 0
    s_cbranch_scc1 {lab}_i
    s_sleep 8
    s_add_u32 s78, s78, 1
    s_cmp_lt_u32 s78, 100000
    s_cbranch_scc1 {lab}_w
{lab}_i:
    s_lshl_b32 s{S_T0}, s{S_PTB}, 7
    s_add_u32 s{S_T0}, s{S_T0}, {FL_G1}
    v_mov_b32 {vr(V_TMP)}, 0
    v_mov_b32 {vr(V_TMP+1)}, s{S_PEND}
    s_mov_b64 exec, 1
    buffer_atomic_add {vr(V_TMP+1)}, {vr(V_TMP)}, {WS}, s{S_T0} offen sc1
    s_mov_b64 exec, -1
{lab}_c:
    s_mov_b32 s{S_PEND}, 0
{lab}:
""")

def emit_gate_mfma(a):
    G = V_WF
    D = V_ACC
    for tt in range(2):
        for b in range(4):
            for k in range(8):
                ks = b * 8 + k
                a(f'    buffer_load_dwordx4 {vr(G + 4*k - (0), 4)}, {vr(V_TMP)}, s[60:63], 0 offen offset:{ks * 32}')
            for k in range(8):
                ks = b * 8 + k
                a(f'    s_waitcnt vmcnt({7 - k})')
                a(f'    v_mfma_f32_32x32x16_bf16 {vr(D + 16*tt,16)}, {vr(G + 4*k, 4)}, {xf(tt, ks)}, {"0" if ks == 0 else vr(D + 16*tt,16)}')
    for tt in range(2):
        A = D + 16 * tt
        a(f"""
    v_cvt_pk_bf16_f32 {vr(A)}, {vr(A)}, {vr(A)}
    v_and_b32 {vr(A)}, 0xffff0000, {vr(A)}
    v_mul_f32 {vr(A)}, s{S_NLOG}, {vr(A)}
    v_exp_f32 {vr(A)}, {vr(A)}
    v_add_f32 {vr(A)}, 1.0, {vr(A)}
    v_rcp_f32 {vr(A)}, {vr(A)}
    v_cvt_pk_bf16_f32 {vr(A)}, {vr(A)}, {vr(A)}
    v_and_b32 {vr(A)}, 0xffff0000, {vr(A)}
""")
    a(f"""
    s_lshl_b32 s{S_T0}, s{S_TB}, 8
    s_lshl_b32 s{S_T1}, s{S_W}, 6
    s_add_u32 s{S_T0}, s{S_T0}, s{S_T1}
    s_lshl_b32 s{S_T0}, s{S_T0}, 2
    s_add_u32 s{S_T0}, s{S_T0}, {WS_G}
    v_lshlrev_b32 {vr(V_TMP)}, 2, {vr(V_L)}
    s_mov_b32 exec_hi, 0
    buffer_store_dword {vr(D)}, {vr(V_TMP)}, {WS}, s{S_T0} offen sc1
    buffer_store_dword {vr(D+16)}, {vr(V_TMP)}, {WS}, s{S_T0} offen offset:128 sc1
    s_mov_b64 exec, -1
    s_waitcnt vmcnt(0)
    s_barrier
    s_mov_b32 s{S_PEND}, {1 << 24}
    s_mov_b32 s{S_PTB}, s{S_TB}
""")
    flag_add(a, 'L_gfl')

def emit_worker_g1(a, cfg):
    ST = 'sc1'
    a(f"""
    s_load_dwordx2 s[{SRD_WS}:{SRD_WS+1}], s[0:1], {KA_WS}
    s_load_dwordx2 s[{SRD_X}:{SRD_X+1}], s[0:1], {KA_X}
    s_load_dwordx2 s[{SRD_WQ}:{SRD_WQ+1}], s[0:1], {KA_WQ}
    s_load_dwordx2 s[{SRD_WK}:{SRD_WK+1}], s[0:1], {KA_WK}
    s_load_dwordx2 s[{SRD_WV}:{SRD_WV+1}], s[0:1], {KA_WV}
    s_load_dwordx2 s[{SRD_W1}:{SRD_W1+1}], s[0:1], {KA_W1}
    s_load_dwordx2 s[{SRD_W3}:{SRD_W3+1}], s[0:1], {KA_W3}
    s_load_dwordx2 s[60:61], s[0:1], {KA_GW}
    s_load_dwordx2 s[{S_DBG2}:{S_DBG2+1}], s[0:1], {KA_DBG}
    s_waitcnt lgkmcnt(0)
    s_mov_b32 s{SRD_WS+2}, {WS_SIZE}
    s_mov_b32 s{SRD_WS+3}, 0x20000
    s_mov_b32 s{SRD_X+2}, {2048 * 1024}
    s_mov_b32 s{SRD_X+3}, 0x20000
    s_mov_b32 s62, 1024
    s_mov_b32 s63, 0x20000
    s_mov_b32 s{S_NLOG}, {f2u(-1.4426950408889634):#x}
    s_mov_b32 s{S_NLOG+1}, {f2u(-1.4426950408889634):#x}
    s_mov_b32 s{S_ONE}, 1.0
    s_mov_b32 s{S_ONE+1}, 1.0
    s_mov_b32 s{S_PEND}, 0
    s_mov_b32 s88, 0
    s_mov_b32 s89, 0
    s_mov_b32 s87, 0
""")
    emit_setup(a)
    if not cfg.get('nowarm'):
        a(f"""
    s_lshl_b32 s{S_T0}, s{S_WID}, 2
    s_add_u32 s{S_T0}, s{S_T0}, s{S_W}
    s_cmp_ge_u32 s{S_T0}, 512
    s_cbranch_scc1 L_nowarm
    s_lshl_b32 s{S_T0}, s{S_T0}, 13             ; *64 lines*128B
    v_lshlrev_b32 {vr(V_E)}, 7, {vr(V_L)}
    s_mov_b32 s{SRD_WQ+2}, 0x400000
    s_mov_b32 s{SRD_WQ+3}, 0x20000
    s_mov_b32 s{SRD_WK+2}, 0x400000
    s_mov_b32 s{SRD_WK+3}, 0x20000
    s_mov_b32 s{SRD_WV+2}, 0x400000
    s_mov_b32 s{SRD_WV+3}, 0x20000
    s_load_dwordx2 s[{SRD_TA}:{SRD_TA+1}], s[0:1], {KA_WO}
    buffer_load_dword {vr(V_E+1)}, {vr(V_E)}, s[{SRD_WQ}:{SRD_WQ+3}], s{S_T0} offen
    buffer_load_dword {vr(V_E+2)}, {vr(V_E)}, s[{SRD_WK}:{SRD_WK+3}], s{S_T0} offen
    buffer_load_dword {vr(V_E+3)}, {vr(V_E)}, s[{SRD_WV}:{SRD_WV+3}], s{S_T0} offen
    s_waitcnt lgkmcnt(0)
    s_mov_b32 s{SRD_TA+2}, 0x400000
    s_mov_b32 s{SRD_TA+3}, 0x20000
    buffer_load_dword {vr(V_E+4)}, {vr(V_E)}, s[{SRD_TA}:{SRD_TA+3}], s{S_T0} offen
L_nowarm:
""")
    a(f"""
    s_and_b32 s75, s{S_WID}, 7
    s_lshr_b32 s76, s{S_WID}, 3             ; group 0..27
    s_mov_b32 s{S_URG}, 1
    s_cmp_ge_u32 s{S_WID}, 192
    s_cbranch_scc1 L_g1w_own
    s_cmp_ge_u32 s{S_WID}, 128
    s_cbranch_scc1 L_g1w_f1
    s_mov_b32 s{S_TB}, 0
    s_lshr_b32 s{S_CU}, s{S_WID}, 1
    s_and_b32 s79, s{S_WID}, 1
""")
    emit_decode(a, S_CU, S_TYPE, S_OUT)
    a(f"""
    s_lshl_b32 s{S_T0}, s79, 2
    s_sub_u32 s{S_T0}, s{S_T0}, s{S_W}
    s_ashr_i32 s{S_T1}, s{S_T0}, 31
    s_lshl_b32 s{S_T0}, s{S_T0}, 18
    s_add_u32 s{S_OUT}, s{S_OUT}, s{S_T0}
""")
    for c in range(2): dma_chunk(a, c)
    emit_load_x(a, half=79)
    if cfg.get('timing'): a('    s_memrealtime s[80:81]')
    a('    s_barrier')
    for c in range(2, PD): dma_chunk(a, c)
    dummies(a, 16)
    def same_decode():
        a(f'    s_mov_b32 s{S_FIRST+1}, s{S_CU}')
        emit_decode(a, S_FIRST + 1, S_NTYPE, S_NOUT)
    a(f"""
    s_cmp_eq_u32 s{S_TYPE}, 1
    s_cbranch_scc1 L_g1h_v
""")
    emit_mainloop(a, False, 'hk', same_decode, None, 1)
    if cfg.get('timing'): a('    s_memrealtime s[82:83]')
    epi_pack(a, V_STK, 262144, ST, 1)
    a('    s_branch L_g1h_d')
    a('L_g1h_v:')
    emit_mainloop(a, True, 'hv', same_decode, None, 1)
    if cfg.get('timing'): a('    s_memrealtime s[82:83]')
    epi_pack(a, V_LIN16, 262144, ST, 1)
    a(f"""
L_g1h_d:
    s_waitcnt vmcnt(0)
    s_barrier
    s_mov_b32 s{S_PEND}, 1
    s_mov_b32 s{S_PTB}, 0
""")
    flag_add(a, 'L_flh')
    if cfg.get('timing'): a('    s_memrealtime s[84:85]\n    s_mov_b32 s88, 1')
    a(f"""
    s_branch L_g1w_own
L_g1w_f1:
    s_mov_b32 s{S_SESS}, 0
    s_mov_b32 s{S_TB}, 1
    s_sub_u32 s{S_CU}, s{S_WID}, 128
    s_mov_b32 s77, s{S_CU}
    s_mov_b32 s{S_URG}, 1
    s_branch L_g1w_go
L_g1w_own:
    s_mov_b32 s{S_SESS}, 1
    s_mov_b32 s{S_TB}, s75
    s_mov_b32 s{S_CU}, s76
    s_cmp_lt_u32 s75, 2
    s_cselect_b32 s{S_T0}, 64, 0
    s_add_u32 s{S_CU}, s{S_CU}, s{S_T0}
    s_add_u32 s77, s{S_CU}, 28
    s_mov_b32 s{S_URG}, 0
L_g1w_go:
""")
    if cfg.get('gate0'):
        a(f"""
    s_cmp_eq_u32 s{S_TB}, 0
    s_cbranch_scc1 L_g1w_ng
    s_cmp_lg_u32 s87, 0
    s_cbranch_scc1 L_g1w_ng
    s_mov_b32 s87, 1
    v_mov_b32 {vr(V_TMP)}, {DB_INIT}
    s_mov_b32 s78, 0
L_g1w_gi:
    global_load_dword {vr(V_TMP+1)}, {vr(V_TMP)}, s[{S_DBG2}:{S_DBG2+1}] sc1
    s_waitcnt vmcnt(0)
    v_readfirstlane_b32 s89, {vr(V_TMP+1)}
    s_cmp_lg_u32 s89, 0
    s_cbranch_scc1 L_g1w_gj
    s_sleep 16
    s_add_u32 s78, s78, 1
    s_cmp_lt_u32 s78, 100000
    s_cbranch_scc1 L_g1w_gi
L_g1w_gj:
    v_mov_b32 {vr(V_TMP)}, {FL_G1}
L_g1w_gk:
    buffer_load_dword {vr(V_TMP+1)}, {vr(V_TMP)}, {WS}, 0 offen sc1
    s_waitcnt vmcnt(0)
    v_readfirstlane_b32 s{S_T0}, {vr(V_TMP+1)}
    s_and_b32 s{S_T0}, s{S_T0}, 0xff
    s_cmp_ge_u32 s{S_T0}, {cfg.get('gate0')}
    s_cbranch_scc1 L_g1w_ng
    s_sleep 32
    s_add_u32 s78, s78, 1
    s_cmp_lt_u32 s78, 100000
    s_cbranch_scc1 L_g1w_gk
L_g1w_ng:
""")
    emit_decode(a, S_CU, S_TYPE, S_OUT)
    for c in range(2): dma_chunk(a, c)
    emit_load_x(a)
    if cfg.get('timing'): a(f'    s_cmp_eq_u32 s{S_URG}, 1\n    s_cbranch_scc0 L_tsa\n    s_cmp_eq_u32 s88, 0\n    s_cbranch_scc0 L_tsa\n    s_memrealtime s[80:81]\nL_tsa:')
    a('    s_barrier')
    a(f"""
    s_cmp_eq_u32 s{S_SESS}, 1
    s_cbranch_scc0 L_g1w_nog
    s_cmp_eq_u32 s76, 27
    s_cbranch_scc0 L_g1w_nog
    v_lshrrev_b32 {vr(V_TMP)}, 5, {vr(V_L)}
    v_lshlrev_b32 {vr(V_TMP)}, 4, {vr(V_TMP)}
""")
    emit_gate_mfma(a)
    a('L_g1w_nog:')
    for c in range(2, PD): dma_chunk(a, c)
    dummies(a, 16)
    def next_decode():
        a(f"""
    s_cmp_ge_u32 s77, 124
    s_cselect_b32 s{S_FIRST+1}, s{S_CU}, s77
    s_cmp_eq_u32 s{S_SESS}, 0
    s_cselect_b32 s{S_FIRST+1}, s{S_CU}, s{S_FIRST+1}
""")
        emit_decode(a, S_FIRST + 1, S_NTYPE, S_NOUT)
    def midflag():
        flag_add(a, 'L_mf_%d' % len(a.lines))
    a('L_g1w_unit:')
    a(f"""
    s_cmp_eq_u32 s{S_TYPE}, 1
    s_cbranch_scc1 L_g1w_v
""")
    emit_mainloop(a, False, 'k', next_decode, midflag)
    a('    s_branch L_g1w_next')
    a('L_g1w_v:')
    emit_mainloop(a, True, 'v', next_decode, midflag)
    a('L_g1w_next:')
    if cfg.get('timing'): a(f'    s_cmp_eq_u32 s88, 0\n    s_cbranch_scc0 L_tsb\n    s_memrealtime s[82:83]\nL_tsb:')
    a(f"""
    s_cmp_eq_u32 s{S_TYPE}, 3
    s_cbranch_scc1 L_g1w_ef
    s_cmp_eq_u32 s{S_TYPE}, 1
    s_cbranch_scc1 L_g1w_ev
""")
    epi_pack(a, V_STK, 262144, ST)
    a('    s_branch L_g1w_ed')
    a('L_g1w_ev:')
    epi_pack(a, V_LIN16, 262144, ST)
    a('    s_branch L_g1w_ed')
    a('L_g1w_ef:')
    epi_ffn(a, ST)
    dummies(a, 8)
    a('L_g1w_ed:')
    a(f"""
    s_mov_b32 s{S_PEND}, 2
    s_cmp_eq_u32 s{S_TYPE}, 2
    s_cselect_b32 s{S_PEND}, 0x100, s{S_PEND}
    s_cmp_eq_u32 s{S_TYPE}, 3
    s_cselect_b32 s{S_PEND}, 0x10000, s{S_PEND}
    s_mov_b32 s{S_PTB}, s{S_TB}
    s_mov_b32 s{S_T2}, 0
    s_cmp_ge_u32 s77, 124
    s_cselect_b32 s{S_T2}, 1, s{S_T2}
    s_cmp_eq_u32 s{S_SESS}, 0
    s_cselect_b32 s{S_T2}, 1, s{S_T2}
    s_or_b32 s{S_T1}, s{S_T2}, s{S_URG}
    s_cmp_eq_u32 s{S_T1}, 0
    s_cbranch_scc1 L_g1w_noflush
    s_waitcnt vmcnt(0)
    s_barrier
""")
    flag_add(a, 'L_fl0')
    if cfg.get('timing'): a(f'    s_cmp_eq_u32 s88, 0\n    s_cbranch_scc0 L_tsc\n    s_memrealtime s[84:85]\n    s_mov_b32 s88, 1\nL_tsc:')
    dummies(a, 16)
    a(f"""
L_g1w_noflush:
    s_mov_b32 s{S_URG}, 0
    s_cmp_eq_u32 s{S_T2}, 1
    s_cbranch_scc1 L_g1w_sessend
    s_mov_b32 s{S_TYPE}, s{S_NTYPE}
    s_mov_b32 s{S_OUT}, s{S_NOUT}
    s_mov_b32 s{S_CU}, s77
    s_add_u32 s77, s77, 28
    s_branch L_g1w_unit
L_g1w_sessend:
    s_waitcnt vmcnt(0)
    s_barrier
    s_cmp_eq_u32 s{S_SESS}, 0
    s_cbranch_scc0 L_g1w_done
    s_mov_b32 s{S_SESS}, 1
    s_branch L_g1w_own
L_g1w_done:
""")
```

```python
import sys
sys.path.insert(0, 'gen')
from asmlib import *
from layout import *
import kern, g1, attn, fin, chain2 as chain

NAME = 'gated_mix__memory_aug_recurrent_mem_tr__glu_gated_swiglu__prompt'
KNAME = NAME + '_kernel'

PFCH = 8192
def emit_entry(a, cfg):
    MISC = chain.LDS_MISC
    a(f"""
    s_load_dwordx2 s[16:17], s[0:1], {KA_DBG}
    s_memrealtime s[92:93]
    s_getreg_b32 s33, hwreg(HW_REG_XCC_ID)
    s_and_b32 s33, s33, 7
    v_lshrrev_b32 v1, 6, v0
    s_nop 1
    v_readfirstlane_b32 s4, v1
    s_waitcnt lgkmcnt(0)
    v_cmp_eq_u32 vcc, 0, v0
    s_and_saveexec_b64 s[44:45], vcc
    s_cbranch_execz L_t1
""")
    if cfg.get('forcemix'):
        a(f"""
    s_lshr_b32 s34, s2, 3
    s_add_u32 s33, s33, s34
    s_and_b32 s33, s33, 7
""")
        if cfg['forcemix'] == 2:
            a("""
    s_cmp_eq_u32 s33, 0
    s_cselect_b32 s33, 3, s33
""")
    a(f"""
    s_lshr_b32 s34, s33, 1
    s_lshl_b32 s34, s34, 2
    s_and_b32 s35, s33, 1
    s_lshl_b32 s35, s35, 4
    s_lshl_b32 s36, 1, s35
    v_mov_b32 v1, s34
    v_mov_b32 v2, s36
    global_atomic_add v3, v1, v2, s[16:17] sc0 sc1
    v_mov_b32 v5, {DB_TOTAL}
    v_mov_b32 v6, 1
    global_atomic_add v5, v6, s[16:17] sc1
    s_waitcnt vmcnt(1)
    v_lshrrev_b32 v3, s35, v3
    v_and_b32 v3, 0xffff, v3
    s_nop 0
    v_readfirstlane_b32 s37, v3
    s_mov_b32 s46, {0x10001 if cfg.get('forcemix') else 1}
    s_cmp_lt_u32 s37, 32
    s_cbranch_scc1 L_t_pub
    v_mov_b32 v5, {DB_OVF}
    global_atomic_add v7, v5, v6, s[16:17] sc0 sc1
    s_waitcnt vmcnt(0)
    v_readfirstlane_b32 s39, v7
    s_mov_b32 s40, 0
L_t_wait:
    v_mov_b32 v5, {DB_TOTAL}
    global_load_dword v7, v5, s[16:17] sc1
    s_waitcnt vmcnt(0)
    v_readfirstlane_b32 s41, v7
    s_cmp_ge_u32 s41, 256
    s_cbranch_scc1 L_t_all
    s_sleep 8
    s_add_u32 s40, s40, 1
    s_cmp_lt_u32 s40, 200000
    s_cbranch_scc1 L_t_wait
L_t_all:
    v_mov_b32 v5, 0
    global_load_dwordx4 v[8:11], v5, s[16:17] sc1
    s_waitcnt vmcnt(0)
    v_readfirstlane_b32 s48, v8
    v_readfirstlane_b32 s49, v9
    v_readfirstlane_b32 s50, v10
    v_readfirstlane_b32 s51, v11
    s_mov_b32 s33, 8
    s_mov_b32 s46, 0x10001
""")
    for x in range(8):
        a(f"""
    s_lshr_b32 s42, s{48 + (x >> 1)}, {16 * (x & 1)}
    s_and_b32 s42, s42, 0xffff
    s_min_u32 s42, s42, 32
    s_sub_u32 s43, 32, s42
    s_cmp_lt_u32 s39, s43
    s_cbranch_scc0 L_t_n{x}
    s_mov_b32 s33, {x}
    s_add_u32 s37, s42, s39
    s_branch L_t_pub
L_t_n{x}:
    s_sub_u32 s39, s39, s43
""")
    PREFETCH = '' if cfg.get('nopf') else f"""
    s_cmp_ge_u32 s3, 4
    s_cbranch_scc1 L_nopfc
    s_getpc_b64 s[48:49]
L_pcbase:
    s_lshl_b32 s50, s3, 2
    s_add_u32 s50, s50, s4
    s_mul_i32 s50, s50, {PFCH}
    v_and_b32 v20, 63, v0
    v_lshlrev_b32 v20, 7, v20
    v_add_u32 v20, s50, v20
    v_min_u32 v20, L_all_end-L_pcbase, v20
    global_load_dword v21, v20, s[48:49]
L_nopfc:"""
    a(f"""
L_t_pub:
    v_mov_b32 v4, {MISC}
    v_mov_b32 v8, s33
    v_mov_b32 v9, s37
    v_mov_b32 v10, s46
    ds_write_b64 v4, v[8:9]
    ds_write_b32 v4, v10 offset:8
    s_waitcnt lgkmcnt(0)
L_t1:
    s_mov_b64 exec, s[44:45]
    s_barrier
    v_mov_b32 v4, {MISC}
    ds_read_b64 v[8:9], v4
    ds_read_b32 v10, v4 offset:8
    s_waitcnt lgkmcnt(0)
    v_readfirstlane_b32 s33, v8
    v_readfirstlane_b32 s3, v9
    v_readfirstlane_b32 s72, v10
    s_barrier
    s_cmp_ge_u32 s33, 8
    s_cbranch_scc1 L_all_end
{PREFETCH}
    s_cmp_lg_u32 s33, 0
    s_cbranch_scc1 L_worker
""")

def body(a, cfg):
    emit_entry(a, cfg)
    a('    s_mov_b32 s73, s92')
    chain.emit_chain(a, cfg)
    a('    s_branch L_all_end')
    a('L_worker:')
    a(f"""
    s_sub_u32 s90, s33, 1
    s_lshl_b32 s90, s90, 5
    s_add_u32 s90, s90, s3
    v_mov_b32 v15, v0
""")
    g1.emit_worker_g1(a, cfg)
    if cfg.get('timing'): a('    s_memrealtime s[94:95]')
    a(f"""
    v_mov_b32 v0, v15
    s_cmp_ge_u32 s90, {cfg.get('natt', 32)}
    s_cbranch_scc1 L_finrole
""")
    attn.emit_attn_worker(a, cfg)
    a('    s_branch L_wk_end')
    a('L_finrole:')
    a(f"    s_cmp_ge_u32 s90, {cfg.get('natt', 32) + 16 * cfg.get('nsets', (224 - cfg.get('natt', 32)) // 16)}")
    a('    s_cbranch_scc1 L_wk_end')
    fin.emit_fin_worker(a, cfg)
    a('L_wk_end:')
    if cfg.get('timing'):
        a(f"""
    s_memrealtime s[96:97]
    s_waitcnt lgkmcnt(0)
    s_lshl_b32 s28, s90, 5
    s_add_u32 s28, s28, 0x20000
    s_cmp_lg_u32 s4, 0
    s_cbranch_scc1 L_all_end
    s_mov_b64 exec, 1
    v_mov_b32 v1, 0
    v_mov_b32 v2, s92
    v_mov_b32 v3, s94
    v_mov_b32 v4, s96
    buffer_store_dword v2, v1, s[8:11], s28 offen
    buffer_store_dword v3, v1, s[8:11], s28 offen offset:4
    buffer_store_dword v4, v1, s[8:11], s28 offen offset:8
    v_mov_b32 v2, s80
    v_mov_b32 v3, s82
    v_mov_b32 v4, s84
    buffer_store_dword v2, v1, s[8:11], s28 offen offset:12
    buffer_store_dword v3, v1, s[8:11], s28 offen offset:16
    buffer_store_dword v4, v1, s[8:11], s28 offen offset:20
""")
    a('L_all_end:')

def gen(cfg):
    head = """; gated mix of recurrent-memory attention and SwiGLU FFN (single persistent kernel)
; @launch grid=(256,1,1) block=(256,1,1) lds=163840
.amdgcn_target "amdgcn-amd-amdhsa--gfx950"
.text
"""
    return head + kern.simple_kernel(KNAME, 256, body, cfg)

if __name__ == '__main__':
    cfg = dict(st='', d1=128, np1=2, g1=160, np2=2, g2=96, d2=192, qpg=2, woper=3, halfsplit=1, maxpoll=20000, progress=True, fused=True, fallback=True, nowarm=1)
    t = gen(cfg)
    open('cdna_kernels/%s.s' % NAME, 'w').write(t)
    print(len(t), 'bytes', len(t.splitlines()), 'lines')
```

```python
from asmlib import *
from layout import *
import struct
def f2u(x): return struct.unpack('<I', struct.pack('<f', x))[0]
SOFT_C = (128 ** -0.5) * 1.4426950408889634

S_W = 4
SRD_WS = 8
S_U, S_S, S_HH = 5, 6, 7
S_QO, S_KO, S_VO, S_KMO, S_VMO, S_OO = 12, 13, 14, 15, 16, 17
S_T0, S_T1 = 18, 19
S_CC = 20
WS = f's[{SRD_WS}:{SRD_WS+3}]'
V_LIN16, V_STK, V_KM, V_L = 0, 1, 2, 3
V_MASK = 16
B_Q, B_K, B_V, B_KM, B_VM = 32, 64, 96, 128, 160
SX, SM, PX, PM, T = 176, 192, 208, 216, 220
OA = 224 - 0
O0 = 32

def emit_setup(a):
    L = V_L; t0, t1 = 4, 5
    a(f'''
    v_and_b32 {vr(L)}, 63, v0
    v_lshlrev_b32 {vr(V_LIN16)}, 4, {vr(L)}
    v_and_b32 {vr(t0)}, 31, {vr(L)}
    v_bfe_u32 {vr(t1)}, {vr(L)}, 4, 1
    v_lshlrev_b32 {vr(t1)}, 3, {vr(t1)}
    v_xor_b32 {vr(t0)}, {vr(t0)}, {vr(t1)}
    v_lshlrev_b32 {vr(t0)}, 4, {vr(t0)}
    v_lshrrev_b32 {vr(t1)}, 5, {vr(L)}
    v_lshlrev_b32 {vr(t1)}, 9, {vr(t1)}
    v_add_u32 {vr(V_STK)}, {vr(t0)}, {vr(t1)}
    v_lshrrev_b32 {vr(t0)}, 5, {vr(L)}
    v_lshlrev_b32 {vr(t0)}, 7, {vr(t0)}
    v_and_b32 {vr(t1)}, 7, {vr(L)}
    v_lshlrev_b32 {vr(t1)}, 4, {vr(t1)}
    v_add_u32 {vr(V_KM)}, {vr(t0)}, {vr(t1)}
    v_and_b32 {vr(t0)}, 31, {vr(L)}
    v_lshrrev_b32 {vr(t1)}, 5, {vr(L)}
    v_lshlrev_b32 {vr(t1)}, 2, {vr(t1)}
    v_sub_u32 {vr(t0)}, {vr(t0)}, {vr(t1)}
    v_mov_b32 {vr(t1)}, {f2u(-1e30):#x}
''')
    for r in range(16):
        k = 8 * (r >> 2) + (r & 3)
        a(f'    v_cmp_le_i32 vcc, {k}, {vr(t0)}')
        a(f'    v_cndmask_b32 {vr(V_MASK + r)}, {vr(t1)}, 0, vcc' if False else f'    v_cndmask_b32_e64 {vr(V_MASK + r)}, {vr(t1)}, 0, vcc')
    a(f'    s_mov_b32 s{S_CC}, {f2u(SOFT_C):#x}\n    s_mov_b32 s{S_CC+1}, {f2u(SOFT_C):#x}')

def emit_offsets(a):
    a(f'''
    s_lshl_b32 s{S_T0}, s{S_S}, 5
    s_add_u32 s{S_T0}, s{S_T0}, s{S_HH}          ; s*32+h
    s_lshl_b32 s{S_T1}, s{S_T0}, 13
    s_add_u32 s{S_QO}, s{S_T1}, {WS_Q}
    s_add_u32 s{S_KO}, s{S_T1}, {WS_K}
    s_add_u32 s{S_VO}, s{S_T1}, {WS_V}
    s_add_u32 s{S_OO}, s{S_T1}, {WS_O}
    s_lshl_b32 s{S_T1}, s{S_T0}, 11
    s_add_u32 s{S_KMO}, s{S_T1}, {WS_KM}
    s_lshl_b32 s{S_T1}, s{S_T0}, 12
    s_add_u32 s{S_VMO}, s{S_T1}, {WS_VM}
''')

def ld(a, dst, vaddr, so, off, fl):
    if off >= 4096:
        a(f'    s_add_u32 s{S_T0}, s{so}, {off & ~4095}')
        a(f'    buffer_load_dwordx4 {vr(dst,4)}, {vr(vaddr)}, {WS}, s{S_T0} offen offset:{off & 4095} {fl}')
    else:
        a(f'    buffer_load_dwordx4 {vr(dst,4)}, {vr(vaddr)}, {WS}, s{so} offen offset:{off} {fl}')

def emit_loads_x(a, fl=''):
    for j in range(8): ld(a, B_Q + 4 * j, V_STK, S_QO, j * 1024, fl)
    for j in range(8): ld(a, B_K + 4 * j, V_STK, S_KO, j * 1024, fl)
    for j in range(8): ld(a, B_V + 4 * j, V_LIN16, S_VO, j * 1024, fl)
def emit_loads_m(a, fl=''):
    for j in range(8): ld(a, B_KM + 4 * j, V_KM, S_KMO, j * 256, fl)
    for j in range(4): ld(a, B_VM + 4 * j, V_LIN16, S_VMO, j * 1024, fl)

def emit_sx(a, waits):
    for j in range(8):
        if waits: a(f'    s_waitcnt vmcnt({36 - 9 - j})')
        C = vr(V_MASK, 16) if j == 0 else vr(SX, 16)
        a(f'    v_mfma_f32_32x32x16_bf16 {vr(SX,16)}, {vr(B_K + 4*j,4)}, {vr(B_Q + 4*j,4)}, {C}')

def emit_compute(a, ST='', fused=False):
    if not fused: emit_sx(a, True)
    for j in range(8):
        a(f'    s_waitcnt vmcnt({36 - 25 - j})')
        C = '0' if j == 0 else vr(SM, 16)
        a(f'    v_mfma_f32_32x32x16_bf16 {vr(SM,16)}, {vr(B_KM + 4*j,4)}, {vr(B_Q + 4*j,4)}, {C}')
    M, T1, NEG = T, T + 1, T + 2
    a(f'    v_max3_f32 {vr(M)}, {vr(SX)}, {vr(SX+1)}, {vr(SX+2)}')
    for r in range(3, 15, 2):
        a(f'    v_max3_f32 {vr(M)}, {vr(M)}, {vr(SX+r)}, {vr(SX+r+1)}')
    a(f'    v_max_f32 {vr(M)}, {vr(M)}, {vr(SX+15)}')
    a(f'    v_max3_f32 {vr(M)}, {vr(M)}, {vr(SM)}, {vr(SM+1)}')
    a(f'    v_max3_f32 {vr(M)}, {vr(M)}, {vr(SM+2)}, {vr(SM+3)}')
    a(f'''
    v_mov_b32 {vr(T1)}, {vr(M)}
    v_permlane32_swap_b32 {vr(M)}, {vr(T1)}
    v_max_f32 {vr(M)}, {vr(M)}, {vr(T1)}
    v_mul_f32 {vr(NEG)}, s{S_CC}, {vr(M)}
''')
    regs = [SX + 2 * i for i in range(8)] + [SM, SM + 2]
    for r in regs:
        a(f'    v_pk_fma_f32 {vr(r,2)}, {vr(r,2)}, s[{S_CC}:{S_CC+1}], {vr(NEG,2)} op_sel_hi:[1,1,0] neg_lo:[0,0,1] neg_hi:[0,0,1]')
    for r in regs:
        a(f'    v_exp_f32 {vr(r)}, {vr(r)}'); a(f'    v_exp_f32 {vr(r+1)}, {vr(r+1)}')
    for i in range(8):
        a(f'    v_cvt_pk_bf16_f32 {vr(PX+i)}, {vr(SX+2*i)}, {vr(SX+2*i+1)}')
    a(f'''
    v_cvt_pk_bf16_f32 {vr(PM)}, {vr(SM)}, {vr(SM+1)}
    v_mov_b32 {vr(PM+1)}, 0
    v_cvt_pk_bf16_f32 {vr(PM+2)}, {vr(SM+2)}, {vr(SM+3)}
    v_mov_b32 {vr(PM+3)}, 0
''')
    for i in range(1, 8):
        a(f'    v_pk_add_f32 {vr(SX,2)}, {vr(SX,2)}, {vr(SX+2*i,2)}')
    a(f'    v_pk_add_f32 {vr(SX,2)}, {vr(SX,2)}, {vr(SM,2)}')
    a(f'    v_pk_add_f32 {vr(SX,2)}, {vr(SX,2)}, {vr(SM+2,2)}')
    a(f'''
    v_add_f32 {vr(M)}, {vr(SX)}, {vr(SX+1)}
    v_mov_b32 {vr(T1)}, {vr(M)}
    v_permlane32_swap_b32 {vr(M)}, {vr(T1)}
    v_add_f32 {vr(M)}, {vr(M)}, {vr(T1)}
    v_rcp_f32 {vr(NEG)}, {vr(M)}
    s_waitcnt vmcnt(0)
''')
    for ft in range(4):
        a(f'    v_permlane16_swap_b32 {vr(B_VM + 4*ft)}, {vr(B_VM + 4*ft + 2)}')
    for ft in range(4):
        D = O0 + 16 * ft
        a(f'    v_mfma_f32_32x32x16_bf16 {vr(D,16)}, {vr(B_V + 8*ft,4)}, {vr(PX,4)}, 0')
        a(f'    v_mfma_f32_32x32x16_bf16 {vr(D,16)}, {vr(B_V + 8*ft + 4,4)}, {vr(PX+4,4)}, {vr(D,16)}')
        a(f'    v_mfma_f32_32x32x16_bf16 {vr(D,16)}, {vr(B_VM + 4*ft,4)}, {vr(PM,4)}, {vr(D,16)}')
    a(f'    s_add_u32 s{S_T1}, s{S_OO}, 4096')
    k = 0
    for ft in range(4):
        D = O0 + 16 * ft
        for cb in range(2):
            E = SX + (k % 4) * 4; k += 1
            for i in range(4):
                r = D + 8 * cb + 2 * i
                a(f'    v_pk_mul_f32 {vr(r,2)}, {vr(r,2)}, {vr(NEG,2)} op_sel_hi:[1,0]')
                a(f'    v_cvt_pk_bf16_f32 {vr(E+i)}, {vr(r)}, {vr(r+1)}')
            off = (4 * ft + 2 * cb) * 512
            so = S_OO if off < 4096 else S_T1
            a(f'    buffer_store_dwordx4 {vr(E,4)}, {vr(V_LIN16)}, {WS}, s{so} offen offset:{off % 4096} {ST}')

def emit_attn_kernel(a, cfg):
    a(f"""
    s_load_dwordx2 s[{SRD_WS}:{SRD_WS+1}], s[0:1], {KA_WS}
    v_lshrrev_b32 v1, 6, v0
    s_nop 1
    v_readfirstlane_b32 s{S_W}, v1
    s_waitcnt lgkmcnt(0)
    s_mov_b32 s{SRD_WS+2}, {WS_SIZE}
    s_mov_b32 s{SRD_WS+3}, 0x20000
    s_lshl_b32 s{S_U}, s2, 2
    s_add_u32 s{S_U}, s{S_U}, s{S_W}
""")
    emit_setup(a)
    a('L_at_loop:')
    a(f"""
    s_lshr_b32 s{S_S}, s{S_U}, 5
    s_and_b32 s{S_HH}, s{S_U}, 31
""")
    emit_offsets(a)
    emit_loads_x(a); emit_loads_m(a)
    emit_compute(a)
    a(f"""
    s_add_u32 s{S_U}, s{S_U}, 1024
    s_cmp_lt_u32 s{S_U}, 2048
    s_waitcnt vmcnt(0)
    s_cbranch_scc1 L_at_loop
""")


S_DBG2, S_CNT, S_ERR, S_WID = 22, 24, 25, 90
def poll(a, lab, voff_reg, check, maxn=200000, sleep=16):
    a(f"""
    s_mov_b32 s{S_CNT}, 0
{lab}:
    buffer_load_dword v6, {vr(voff_reg)}, {WS}, 0 offen sc1
    s_waitcnt vmcnt(0)
    v_readfirstlane_b32 s{S_T0}, v6
{check}
    s_cbranch_scc1 {lab}_d
    s_sleep {sleep}
    s_add_u32 s{S_CNT}, s{S_CNT}, 1
    s_cmp_lt_u32 s{S_CNT}, s{S_ERR}
    s_cbranch_scc1 {lab}
    s_mov_b32 s{S_ERR}, 0
{lab}_d:
""")

def emit_attn_worker(a, cfg):
    a(f"""
    s_load_dwordx2 s[{SRD_WS}:{SRD_WS+1}], s[0:1], {KA_WS}
    s_load_dwordx2 s[{S_DBG2}:{S_DBG2+1}], s[0:1], {KA_DBG}
    s_waitcnt lgkmcnt(0)
    s_mov_b32 s{SRD_WS+2}, {WS_SIZE}
    s_mov_b32 s{SRD_WS+3}, 0x20000
    s_mov_b32 s{S_ERR}, {cfg.get('maxpoll_w', 400000)}
    s_lshr_b32 s{S_S}, s{S_WID}, 3
    s_and_b32 s{S_HH}, s{S_WID}, 7
    s_lshl_b32 s{S_HH}, s{S_HH}, 2
    s_add_u32 s{S_HH}, s{S_HH}, s{S_W}
""")
    emit_setup(a)
    a('L_atw_loop:')
    a(f"""
    s_lshr_b32 s{S_T1}, s{S_S}, 3
    s_lshl_b32 s{S_T1}, s{S_T1}, 7
    s_add_u32 s{S_T1}, s{S_T1}, {FL_G1}
    v_mov_b32 v7, s{S_T1}
""")
    poll(a, 'L_atw_p1', 7, f'    s_and_b32 s{S_T0}, s{S_T0}, 0xffff\n    s_cmp_eq_u32 s{S_T0}, {128 + (32 << 8)}')
    emit_offsets(a)
    emit_loads_x(a)
    a('    s_waitcnt vmcnt(8)')
    emit_sx(a, False)
    a(f"""
    s_lshl_b32 s{S_T1}, s{S_HH}, 7
    s_add_u32 s{S_T1}, s{S_T1}, {FL_P}
    v_mov_b32 v7, s{S_T1}
""")
    poll(a, 'L_atw_p2', 7, f'    s_cmp_gt_u32 s{S_T0}, s{S_S}', sleep=4)
    emit_loads_m(a)
    emit_compute(a, 'sc1', fused=True)
    a(f"""
    s_waitcnt vmcnt(0)
    s_lshl_b32 s{S_T0}, s{S_S}, 7
    s_add_u32 s{S_T0}, s{S_T0}, {FL_O}
    v_mov_b32 v6, 0
    v_mov_b32 v7, 1
    s_mov_b64 exec, 1
    buffer_atomic_add v7, v6, {WS}, s{S_T0} offen sc1
    s_mov_b64 exec, -1
    s_add_u32 s{S_S}, s{S_S}, {cfg.get('ngq', 4)}
    s_cmp_lt_u32 s{S_S}, 64
    s_cbranch_scc1 L_atw_loop
    s_waitcnt vmcnt(0)
""")
```

```python
from asmlib import *
from layout import *
import struct

LDS_M, LDS_QK, LDS_OX, LDS_MISC, LDS_KB, LDS_W = 0, 8192, 12288, 14336, 16384, 32768

S_H, S_W, S_STEP, S_ERR, S_CNT = 3, 4, 5, 6, 7
SRD_WS, SRD_A = 8, 12
S_DBG, S_WSP = 16, 18
S_MCUR, S_MNXT, S_MOTH, S_MPOLL = 20, 21, 22, 47
S_PST, S_PL0, S_PL1, S_PR0, S_PR1 = 23, 24, 25, 26, 27
S_KSRC, S_KDST, S_VSRC, S_KMO, S_VMO = 28, 29, 30, 31, 32
S_T0, S_T1, S_T2 = 33, 34, 35
S_ARR, S_MODE = 72, 71
S_KMP, S_VMP = 62, 63
S_MASK_T = 36
S_MASK_ODD = 38
S_MASK_M = 40
S_MASK_PB = 42
S_EXEC = 44
S_C = 46
S_SEL = 48
S_TM0, S_TM1 = 56, 58
S_WBASE, S_WBASE_O, S_DBGM = 60, 61, 45
S_MASK_ODDL = 100
S_ST = 64
S_TS = 80
SRD_Q, SRD_K, SRD_V, SRD_O = 84, 88, 92, 96

V_LIN16, V_PLD, V_MST, V_QW, V_QR, V_K0, V_K1, V_OW, V_OR, V_VLD, V_IDX, V_WL = range(12)
V_VB = 12
V_VX = 16
V_ON16 = 24
R_X = 26
R_M, R_S, R_Q, R_K = 32, 64, 96, 112
V_WV = 128

def wq(ks, sel): return ar(0 + (ks * 2 + sel) * 8, 8)
def wk(ks, sel): return ar(96 + (ks * 2 + sel) * 8, 8)
def wo0(tau): return ar(192 + tau * 8, 8)
def wv(ks, sel): return vr(V_WV + (ks * 2 + sel) * 8, 8)

SOFT_C = (128 ** -0.5) * 1.4426950408889634
def f2u(x): return struct.unpack('<I', struct.pack('<f', x))[0]
WS = f's[{SRD_WS}:{SRD_WS+3}]'

class LG:
    def __init__(self, a):
        self.a = a; self.n = 0; self.tags = {}; self.done = 0
    def issue(self, text, tag=None):
        self.a(text); self.n += 1
        if tag is not None: self.tags[tag] = self.n
    def wait(self, tag):
        pos = self.tags[tag]
        if pos <= self.done: return
        k = self.n - pos
        self.a('    s_waitcnt lgkmcnt(%d)' % min(k, 15))
        self.done = self.n - min(k, 15)
    def wait_all(self):
        self.a('    s_waitcnt lgkmcnt(0)'); self.done = self.n

STAMP_RAW = 64
STAMP_ACC = 84
def stamp(a, cfg, k):
    if not cfg.get('stamp'): return
    a(f'    s_memtime s[{STAMP_RAW+2*k}:{STAMP_RAW+2*k+1}]')

def T(a, cfg, k):
    if 'trace' not in cfg: return
    if 'tmap' in cfg: return
    if k in cfg.get('tset', range(16)):
        a(f'    s_memtime s[{64+2*k}:{64+2*k+1}]')

def TN(a, cfg, name):
    tm = cfg.get('tmap')
    if tm and name in tm:
        k = tm[name]
        a(f'    s_memtime s[{64+2*k}:{64+2*k+1}]')

def trace_dump(a, cfg, w):
    if 'trace' not in cfg: return
    lab = f'L_trd{w}'
    a(f"""
    s_cmp_lg_u32 s{S_STEP}, {cfg['trace']}
    s_cbranch_scc1 {lab}
    s_waitcnt lgkmcnt(0)
    s_lshl_b32 s{S_T0}, s{S_H}, 2
    s_add_u32 s{S_T0}, s{S_T0}, {w}
    s_lshl_b32 s{S_T0}, s{S_T0}, 7
    s_add_u32 s{S_T0}, s{S_T0}, 0x8000
    s_mov_b64 exec, 1
    v_mov_b32 {vr(R_X)}, 0
""")
    for k in range(16):
        a(f'    v_mov_b32 {vr(R_X+1)}, s{64+2*k}')
        a(f'    buffer_store_dword {vr(R_X+1)}, {vr(R_X)}, {WS}, s{S_T0} offen offset:{4*k}')
    a(f'    s_mov_b64 exec, -1\n{lab}:')

def stamp_accum(a, cfg):
    if not cfg.get('stamp'): return
    a('    s_waitcnt lgkmcnt(0)')
    order = [9, 0, 1, 2, 3, 4, 5, 6, 7, 8]
    prev = 94
    for k in order:
        a(f'    s_sub_u32 s{S_T0}, s{STAMP_RAW+2*k}, s{prev}')
        a(f'    s_add_u32 s{STAMP_ACC+k}, s{STAMP_ACC+k}, s{S_T0}')
        prev = STAMP_RAW + 2 * k
    a(f'    s_mov_b32 s94, s{STAMP_RAW+2*8}')

DUMP_BASE = 0x0800_0000
_dumpn = [0]
def dump(a, cfg, w, slot, first, n):
    if 'dumpstep' not in cfg: return
    _dumpn[0] += 1
    lab = 'L_dmp%d' % _dumpn[0]
    a(f"""
    s_cmp_lg_u32 s{S_STEP}, {cfg['dumpstep']}
    s_cbranch_scc1 {lab}
    s_waitcnt lgkmcnt(0)
    s_nop 15
    s_lshl_b32 s{S_T0}, s{S_H}, 2
    s_add_u32 s{S_T0}, s{S_T0}, {w}
    s_lshl_b32 s{S_T0}, s{S_T0}, 15
    s_add_u32 s{S_T0}, s{S_T0}, {DUMP_BASE + slot * 0x400000}
""")
    for r in range(n):
        a(f'    buffer_store_dword {vr(first + r)}, {vr(V_LIN16)}, {WS}, s{S_T0} offen')
        a(f'    s_add_u32 s{S_T0}, s{S_T0}, 1024')
    a(f'{lab}:')

def smf(acc, A, B):
    return f'    v_smfmac_f32_16x16x64_bf16 {vr(acc,4)}, {vr(A,4)}, {B}, {vr(V_IDX)}'
def mf32(D, A, B, C):
    return f'    v_mfma_f32_16x16x32_bf16 {vr(D,4)}, {A}, {B}, {C}'
def pkadd(d, x, y):
    return f'    v_pk_add_f32 {vr(d,2)}, {vr(x,2)}, {vr(y,2)}'
def add2(d, x, y):
    return [f'    v_add_f32 {vr(d)}, {vr(x)}, {vr(y)}', f'    v_add_f32 {vr(d+1)}, {vr(x+1)}, {vr(y+1)}']
def cvt(d, x, y):
    return f'    v_cvt_pk_bf16_f32 {vr(d)}, {vr(x)}, {vr(y)}'

def emit_setup(a, cfg, w):
    t0, t1, t2 = R_X, R_X + 1, R_X + 2
    L = R_X + 5
    a(f'''
    v_and_b32 {vr(L)}, 63, v0
    v_lshlrev_b32 {vr(V_LIN16)}, 4, {vr(L)}
    s_lshl_b32 s{S_T0}, s{S_H}, 2
    s_add_u32 s{S_T0}, s{S_T0}, {w}          ; R
    v_lshrrev_b32 {vr(t0)}, 2, {vr(L)}
    v_lshlrev_b32 {vr(t0)}, 11, {vr(t0)}
    v_and_b32 {vr(t1)}, 3, {vr(L)}
    v_lshlrev_b32 {vr(t1)}, 4, {vr(t1)}
    v_add_u32 {vr(V_PLD)}, {vr(t0)}, {vr(t1)}
    s_lshr_b32 s{S_T1}, s{S_T0}, 4
    s_lshl_b32 s{S_T1}, s{S_T1}, 10
    s_and_b32 s{S_T2}, s{S_T0}, 3
    s_lshl_b32 s{S_T2}, s{S_T2}, 8
    s_add_u32 s{S_T1}, s{S_T1}, s{S_T2}
    s_and_b32 s{S_T2}, s{S_T0}, 12              ; gR*4
    s_lshl_b32 s{S_T2}, s{S_T2}, 4              ; 4 gR * 16
    s_add_u32 s{S_T1}, s{S_T1}, s{S_T2}
    v_bfe_u32 {vr(t0)}, {vr(L)}, 4, 1
    v_lshlrev_b32 {vr(t0)}, 5, {vr(t0)}
    v_bfe_u32 {vr(t1)}, {vr(L)}, 2, 1
    v_lshlrev_b32 {vr(t1)}, 4, {vr(t1)}
    v_and_b32 {vr(t2)}, 3, {vr(L)}
    v_lshlrev_b32 {vr(t2)}, 2, {vr(t2)}
    v_add3_u32 {vr(t0)}, {vr(t0)}, {vr(t1)}, {vr(t2)}
    v_add_u32 {vr(V_MST)}, s{S_T1}, {vr(t0)}
    v_and_b32 {vr(t0)}, 15, {vr(L)}
    v_lshlrev_b32 {vr(t0)}, 4, {vr(t0)}
    v_lshrrev_b32 {vr(t1)}, 4, {vr(L)}
    v_lshlrev_b32 {vr(t1)}, 2, {vr(t1)}
    v_add_u32 {vr(t0)}, {vr(t0)}, {vr(t1)}
    v_add_u32 {vr(V_QW)}, {LDS_QK + w * 1024}, {vr(t0)}
    v_lshrrev_b32 {vr(t0)}, 5, {vr(L)}
    v_lshlrev_b32 {vr(t0)}, 9, {vr(t0)}
    v_bfe_u32 {vr(t1)}, {vr(L)}, 4, 1
    v_lshlrev_b32 {vr(t1)}, 6, {vr(t1)}
    v_bfe_u32 {vr(t2)}, {vr(L)}, 2, 2
    v_lshlrev_b32 {vr(t2)}, 4, {vr(t2)}
    v_add3_u32 {vr(t0)}, {vr(t0)}, {vr(t1)}, {vr(t2)}
    v_bfe_u32 {vr(t1)}, {vr(L)}, 1, 1
    v_lshlrev_b32 {vr(t1)}, 3, {vr(t1)}
    v_add_u32 {vr(t0)}, {vr(t0)}, {vr(t1)}
    v_add_u32 {vr(V_QR)}, {LDS_QK}, {vr(t0)}
    v_lshrrev_b32 {vr(t0)}, 4, {vr(L)}
    v_lshlrev_b32 {vr(t0)}, 9, {vr(t0)}
    v_and_b32 {vr(t1)}, 15, {vr(L)}
    v_lshlrev_b32 {vr(t1)}, 4, {vr(t1)}
    v_add_u32 {vr(t0)}, {vr(t0)}, {vr(t1)}
    v_bfe_u32 {vr(t2)}, {vr(L)}, 3, 1
    v_lshlrev_b32 {vr(t2)}, 8, {vr(t2)}
    v_add_u32 {vr(V_K0)}, {vr(t0)}, {vr(t2)}
    v_add_u32 {vr(V_K0)}, {LDS_KB}, {vr(V_K0)}
    v_add_u32 {vr(V_K1)}, {LDS_KB + 128}, {vr(t0)}
    v_lshrrev_b32 {vr(t0)}, 4, {vr(L)}
    v_lshlrev_b32 {vr(t0)}, 7, {vr(t0)}
    v_bfe_u32 {vr(t1)}, {vr(L)}, 3, 1
    v_lshlrev_b32 {vr(t1)}, 6, {vr(t1)}
    v_and_b32 {vr(t2)}, 3, {vr(L)}
    v_lshlrev_b32 {vr(t2)}, 4, {vr(t2)}
    v_add3_u32 {vr(V_OW)}, {vr(t0)}, {vr(t1)}, {vr(t2)}
    v_lshrrev_b32 {vr(t0)}, 4, {vr(L)}
    v_lshlrev_b32 {vr(t0)}, 8, {vr(t0)}
    v_bfe_u32 {vr(t1)}, {vr(L)}, 1, 1
    v_lshlrev_b32 {vr(t1)}, 7, {vr(t1)}
    v_bfe_u32 {vr(t2)}, {vr(L)}, 2, 2
    v_lshlrev_b32 {vr(t2)}, 5, {vr(t2)}
    v_add3_u32 {vr(t0)}, {vr(t0)}, {vr(t1)}, {vr(t2)}
    v_and_b32 {vr(t1)}, 1, {vr(L)}
    v_lshlrev_b32 {vr(t1)}, 4, {vr(t1)}
    v_add_u32 {vr(t0)}, {vr(t0)}, {vr(t1)}
    v_add_u32 {vr(V_OR)}, {LDS_OX}, {vr(t0)}
    ; V_VLD = (g>>1)*1024 + (g&1)*512 + f16*16
    v_lshrrev_b32 {vr(t0)}, 5, {vr(L)}
    v_lshlrev_b32 {vr(t0)}, 10, {vr(t0)}
    v_bfe_u32 {vr(t1)}, {vr(L)}, 4, 1
    v_lshlrev_b32 {vr(t1)}, 9, {vr(t1)}
    v_and_b32 {vr(t2)}, 15, {vr(L)}
    v_lshlrev_b32 {vr(t2)}, 4, {vr(t2)}
    v_add3_u32 {vr(V_VLD)}, {vr(t0)}, {vr(t1)}, {vr(t2)}
    v_bfe_u32 {vr(t0)}, {vr(L)}, 1, 1
    v_mov_b32 {vr(t1)}, 0x4444
    v_mov_b32 {vr(t2)}, 0xeeee
    v_cmp_eq_u32 vcc, 1, {vr(t0)}
    v_cndmask_b32 {vr(V_IDX)}, {vr(t1)}, {vr(t2)}, vcc
    v_add_u32 {vr(V_WL)}, {LDS_W + w * 32768}, {vr(V_LIN16)}
    v_mov_b32 {vr(V_VB+1)}, 0
    v_mov_b32 {vr(V_VB+3)}, 0
    v_mov_b32 {vr(V_ON16)}, 0x3f803f80
    v_mov_b32 {vr(V_ON16+1)}, 0
    v_bfe_u32 {vr(t0)}, {vr(L)}, 1, 3
''')
    for u in range(4):
        a(f'    v_cmp_eq_u32 s[{S_SEL+2*u}:{S_SEL+2*u+1}], {u}, {vr(t0)}')
    a(f'''
    s_mov_b32 s{S_MASK_T}, 0x0f0f0f0f
    s_mov_b32 s{S_MASK_T+1}, 0x0f0f0f0f
    s_mov_b32 s{S_MASK_ODD}, 0xffff0000
    s_mov_b32 s{S_MASK_ODD+1}, 0xffff0000
    s_mov_b32 s{S_MASK_M}, 0x00ff00ff
    s_mov_b32 s{S_MASK_M+1}, 0
    s_mov_b32 s{S_MASK_PB}, 0xf0f0f0f0
    s_mov_b32 s{S_MASK_PB+1}, 0xf0f0f0f0
    s_mov_b32 s{S_C}, {f2u(SOFT_C):#x}
''')

def emit_init(a, cfg, w):
    t = R_S
    L = R_X + 5
    ST = 'sc1' if cfg.get('fallback') else cfg['st']
    a(f"""
    v_mov_b32 {vr(t)}, -1
    v_mov_b32 {vr(t+1)}, -1
    v_mov_b32 {vr(t+2)}, -1
    v_mov_b32 {vr(t+3)}, -1
""")
    a(f"""
    s_lshl_b32 s{S_T0}, s{S_H}, 13
    s_add_u32 s{S_T0}, s{S_T0}, {WS_P + w * 2048}
    buffer_store_dwordx4 {vr(t,4)}, {vr(V_LIN16)}, {WS}, s{S_T0} offen {ST}
    buffer_store_dwordx4 {vr(t,4)}, {vr(V_LIN16)}, {WS}, s{S_T0} offen offset:1024 {ST}
    s_add_u32 s{S_T0}, s{S_T0}, 262144
    buffer_store_dwordx4 {vr(t,4)}, {vr(V_LIN16)}, {WS}, s{S_T0} offen {ST}
    buffer_store_dwordx4 {vr(t,4)}, {vr(V_LIN16)}, {WS}, s{S_T0} offen offset:1024 {ST}
""")
    a(f"""
    s_lshl_b32 s{S_T0}, s{S_H}, 2
    s_add_u32 s{S_T0}, s{S_T0}, {w}
    s_lshr_b32 s{S_T1}, s{S_T0}, 4
    s_lshl_b32 s{S_T1}, s{S_T1}, 7
    s_and_b32 s{S_T2}, s{S_T0}, 3
    s_lshl_b32 s{S_T2}, s{S_T2}, 3          ; 4 ga * 2
    s_add_u32 s{S_T1}, s{S_T1}, s{S_T2}
    s_bfe_u32 s{S_T2}, s{S_T0}, 0x20002     ; gR
    s_lshl_b32 s{S_T2}, s{S_T2}, 11         ; 2 gR * 1024
    s_add_u32 s{S_T1}, s{S_T1}, s{S_T2}
    v_bfe_u32 {vr(t+4)}, {vr(L)}, 4, 1
    v_lshlrev_b32 {vr(t+4)}, 6, {vr(t+4)}    ; 32 half * 2
    v_bfe_u32 {vr(t+5)}, {vr(L)}, 2, 1
    v_lshlrev_b32 {vr(t+5)}, 10, {vr(t+5)}
    v_and_b32 {vr(t+6)}, 3, {vr(L)}
    v_lshlrev_b32 {vr(t+6)}, 1, {vr(t+6)}
    v_add3_u32 {vr(t+4)}, {vr(t+4)}, {vr(t+5)}, {vr(t+6)}
    v_add_u32 {vr(t+4)}, s{S_T1}, {vr(t+4)}
    buffer_load_ushort {vr(t+5)}, {vr(t+4)}, s[{SRD_A}:{SRD_A+3}], 0 offen
    buffer_load_ushort {vr(t+6)}, {vr(t+4)}, s[{SRD_A}:{SRD_A+3}], 0 offen offset:32
    s_waitcnt vmcnt(0)
    v_lshl_or_b32 {vr(t+5)}, {vr(t+6)}, 16, {vr(t+5)}
    v_min_u32 {vr(t+5)}, -2, {vr(t+5)}
    s_mov_b64 exec, s[{S_MASK_M}:{S_MASK_M+1}]
    s_mov_b32 s{S_T0}, {WS_M}
    buffer_store_dword {vr(t+5)}, {vr(V_MST)}, {WS}, s{S_T0} offen {ST}
    s_mov_b32 s{S_T0}, {WS_M + 8192}
    buffer_store_dword {vr(t)}, {vr(V_MST)}, {WS}, s{S_T0} offen {ST}
    s_mov_b32 s{S_T0}, {WS_M + 16384}
    buffer_store_dword {vr(t)}, {vr(V_MST)}, {WS}, s{S_T0} offen {ST}
""")
    if cfg.get('dbgm'):
        a(f"""
    s_mov_b32 s{S_T0}, {WS_DBGM}
    buffer_store_dword {vr(t+5)}, {vr(V_MST)}, {WS}, s{S_T0} offen
""")
    a(f"""
    s_mov_b64 exec, -1
    s_waitcnt vmcnt(0)
""")

def emit_weight_prologue(a, cfg, w, hook=None, hook2=None, hookA=None, hookB=None):
    L = R_X + 5
    vq0, vq1, vo0, vo1 = R_Q, R_Q + 1, R_Q + 2, R_Q + 3
    t0, t1, t2 = R_X, R_X + 1, R_X + 2
    tA, tB, tA2, tB2, tO = R_Q + 4, R_Q + 5, R_Q + 6, R_Q + 7, R_Q + 8
    for gb1, (vq, vo) in enumerate(((vq0, vo0), (vq1, vo1))):
        a(f'''
    v_lshrrev_b32 {vr(t0)}, 4, {vr(L)}                ; r
    v_bfe_u32 {vr(t1)}, {vr(L)}, 1, 3                 ; pp
    v_add_u32 {vr(t2)}, {gb1*4}, {vr(t0)}
    v_xor_b32 {vr(t1)}, {vr(t1)}, {vr(t2)}
    v_lshlrev_b32 {vr(t1)}, 5, {vr(t1)}
    v_and_b32 {vr(t2)}, 1, {vr(L)}
    v_lshlrev_b32 {vr(t2)}, 4, {vr(t2)}
    v_add_u32 {vr(t1)}, {vr(t1)}, {vr(t2)}
    v_and_b32 {vr(t2)}, 1, {vr(t0)}
    v_lshlrev_b32 {vr(t2)}, 17, {vr(t2)}
    v_add_u32 {vr(vq)}, {vr(t1)}, {vr(t2)}
    v_lshrrev_b32 {vr(t2)}, 1, {vr(t0)}
    v_lshlrev_b32 {vr(t2)}, 18, {vr(t2)}
    v_add_u32 {vr(vq)}, {vr(vq)}, {vr(t2)}
    v_and_b32 {vr(t2)}, 1, {vr(t0)}
    v_lshlrev_b32 {vr(t2)}, 10, {vr(t2)}
    v_add_u32 {vr(vo)}, {vr(t1)}, {vr(t2)}
    v_lshrrev_b32 {vr(t2)}, 1, {vr(t0)}
    v_lshlrev_b32 {vr(t2)}, 12, {vr(t2)}
    v_add_u32 {vr(vo)}, {vr(vo)}, {vr(t2)}
''')
    a(f'''
    v_lshrrev_b32 {vr(t0)}, 2, {vr(L)}
    v_lshlrev_b32 {vr(t1)}, 8, {vr(t0)}
    v_and_b32 {vr(t0)}, 7, {vr(t0)}
    v_lshlrev_b32 {vr(t0)}, 5, {vr(t0)}
    v_and_b32 {vr(t2)}, 3, {vr(L)}
    v_lshlrev_b32 {vr(t2)}, 3, {vr(t2)}
    v_add3_u32 {vr(t0)}, {vr(t0)}, {vr(t1)}, {vr(t2)}
    v_add_u32 {vr(tO)}, {LDS_W}, {vr(t0)}
    v_xor_b32 {vr(tA)}, {(2*w) << 5}, {vr(tO)}
    v_xor_b32 {vr(tB)}, 32, {vr(tA)}
    v_add_u32 {vr(tA2)}, 0x10000, {vr(tA)}
    v_add_u32 {vr(tB2)}, 0x10000, {vr(tB)}
    s_lshl_b32 s{S_WBASE}, s{S_H}, 8
    s_add_u32 s{S_WBASE}, s{S_WBASE}, {(8 * (w >> 1) + (w & 1)) * 8192}
    s_lshl_b32 s{S_WBASE_O}, s{S_H}, 17
    s_add_u32 s{S_WBASE_O}, s{S_WBASE_O}, {(32 * (w >> 1) + 2 * (w & 1)) * 1024}
''')
    units = []
    for m in ('q', 'k'):
        for ks in range(6): units.append((m, ks))
    for ks in range(8): units.append(('v', ks))
    for p in range(4): units.append(('o0', p))
    units += [('q', 6), ('o1', 0), ('q', 7), ('o1', 1), ('k', 6), ('o1', 2), ('k', 7), ('o1', 3)]
    srd = {'q': SRD_Q, 'k': SRD_K, 'v': SRD_V, 'o0': SRD_O, 'o1': SRD_O}
    def slot_of(u): return (u % 10) if u < 24 else (u - 24)
    def slot_addr(sl): return LDS_W + sl * 16384 if sl < 8 else (sl - 8) * 16384
    def issue(u):
        m, x = units[u]
        S = srd[m]
        for gb in range(4):
            if m in ('q', 'k', 'v'):
                uni = (64 * x + 4 * (gb >> 1) + 2 * (gb & 1)) * 8192
                vo = vq1 if gb & 1 else vq0
                base = S_WBASE
            else:
                kap = 0 if m == 'o0' else 1
                uni = (64 * kap + 16 * (gb & 1) + 8 * (gb >> 1)) * 1024 + x * 256
                vo = vo1 if gb & 1 else vo0
                base = S_WBASE_O
            a(f"""
    s_mov_b32 m0, {slot_addr(slot_of(u)) + w * 4096 + gb * 1024}
    s_add_u32 s{S_T1}, s{base}, {uni}
    buffer_load_dwordx4 {vr(vo)}, s[{S}:{S+3}], s{S_T1} offen lds
""")
        issued.append(u)
    tA3, tB3 = R_Q + 11, R_Q + 12
    a(f'    v_add_u32 {vr(tA3)}, {(-LDS_W) & 0xffffffff:#x}, {vr(tA)}')
    a(f'    v_add_u32 {vr(tB3)}, {(-LDS_W) & 0xffffffff:#x}, {vr(tB)}')
    def qkv_reads(slot, dsts):
        for sel in range(2):
            if slot < 4: addr, off = (tA, tB)[sel], slot * 16384
            elif slot < 8: addr, off = (tA2, tB2)[sel], (slot - 4) * 16384
            else: addr, off = (tA3, tB3)[sel], (slot - 8) * 16384
            for U in range(4):
                a(f'    ds_read_b64_tr_b16 {dsts(sel, U)}, {vr(addr)} offset:{off + U * 4096}')
    def wo_reads(slot, dsts):
        a(f'    v_add_u32 {vr(tO+1)}, {slot * 16384}, {vr(tO)}')
        for tau in range(8):
            a(f'    v_xor_b32 {vr(tO+2)}, {tau << 5}, {vr(tO+1)}')
            for U in range(4):
                a(f'    ds_read_b64_tr_b16 {dsts(tau, U)}, {vr(tO+2)} offset:{U * 4096}')
            if tau % 2 == 1: a('    s_waitcnt lgkmcnt(0)')
    issued = []
    NIF = 10
    for u in range(NIF): issue(u)
    if hook: hook()
    later = {15: 28, 16: 29, 17: 30, 18: 31, 21: 24, 22: 25, 23: 26}
    extra = 0
    for u in range(24):
        m, x = units[u]
        slot = slot_of(u)
        younger = len(issued) - 1 - issued.index(u)
        a(f'    s_waitcnt vmcnt({min(4 * younger, 63)}) lgkmcnt(0)')
        a('    s_barrier')
        if m == 'v':
            qkv_reads(slot, lambda sel, U: vr(V_WV + (x * 2 + sel) * 8 + 2 * U, 2))
        elif m in ('q', 'k'):
            qkv_reads(slot, lambda sel, U: ar((0 if m == 'q' else 96) + (x * 2 + sel) * 8 + 2 * U, 2))
        elif x == w:
            wo_reads(slot, lambda tau, U: ar(192 + tau * 8 + 2 * U, 2))
        nxt = u - 1 + 10
        if u >= 1 and nxt <= 23: issue(nxt)
        if u in later: issue(later[u])
        if u == 14 and hookB: hookB()
    a('    s_waitcnt lgkmcnt(0)')
    a('    s_barrier')
    if hookA: hookA()
    issue(27)
    assert sorted(issued) == list(range(32)), issued
    a('    s_waitcnt vmcnt(0)')
    a('    s_barrier')
    if cfg.get('timing'): a('    s_memrealtime s[68:69]')
    if hook2: hook2()
    if cfg.get('timing'): a('    s_memrealtime s[64:65]\n    s_waitcnt lgkmcnt(0)\n    s_mov_b32 s66, s64')
    for f2, slot in enumerate((0, 2, 4, 6)):
        qkv_reads(slot, lambda sel, U: vr(R_M + (f2 * 2 + sel) * 8 + 2 * U, 2))
        a('    s_waitcnt lgkmcnt(0)')
    a('    s_barrier')
    for f in range(8):
        for hh in range(2):
            a(f'    ds_write_b128 {vr(V_WL)}, {vr(R_M + f * 8 + 4 * hh, 4)} offset:{f * 2048 + hh * 1024}')
    a('    s_waitcnt lgkmcnt(0)')
    wo_reads(2 * w + 1, lambda tau, U: vr(R_M + tau * 8 + 2 * U, 2))
    a('    s_waitcnt lgkmcnt(0)')
    for f in range(8):
        for hh in range(2):
            a(f'    ds_write_b128 {vr(V_WL)}, {vr(R_M + f * 8 + 4 * hh, 4)} offset:{16384 + f * 2048 + hh * 1024}')
    a('    s_waitcnt lgkmcnt(0)')
    a('    s_barrier')

def stage(lg, dst, f, tag=None):
    return [(lambda hh=hh: lg.issue(f'    ds_read_b128 {vr(dst + 4*hh, 4)}, {vr(V_WL)} offset:{f * 2048 + hh * 1024}', tag if hh == 1 else None)) for hh in range(2)]

def poll_check(a, regs, retry):
    a(f"""
    v_max3_u32 {vr(R_X)}, {vr(regs)}, {vr(regs+1)}, {vr(regs+2)}
    v_max3_u32 {vr(R_X+1)}, {vr(regs+3)}, {vr(regs+4)}, {vr(regs+5)}
    v_max3_u32 {vr(R_X)}, {vr(R_X)}, {vr(regs+6)}, {vr(regs+7)}
    v_max_u32 {vr(R_X)}, {vr(R_X)}, {vr(R_X+1)}
    v_cmp_eq_u32 vcc, -1, {vr(R_X)}
    s_cbranch_vccnz {retry}
""")

def retry_block(a, name, back, done, loads):
    a(f"""
{name}:
    s_add_u32 s{S_CNT}, s{S_CNT}, 1
    s_cmp_lt_u32 s{S_CNT}, s{S_ERR}
    s_cbranch_scc0 {name}_to
{loads}
    s_branch {back}
{name}_to:
    s_mov_b32 s{S_ERR}, 0
    s_branch {done}
""")

HOP2_BOTH = [False]
def hop2_loads(w):
    if HOP2_BOTH[0]:
        PM = R_M + 8 * w
        return (f'    s_mov_b32 m0, {LDS_M + w * 2048}\n'
                f'    buffer_load_dwordx4 {vr(PM,4)}, {vr(V_LIN16)}, {WS}, s{S_MPOLL} offen sc1\n'
                f'    buffer_load_dwordx4 {vr(PM+4,4)}, {vr(V_LIN16)}, {WS}, s{S_MPOLL} offen offset:1024 sc1\n'
                f'    buffer_load_dwordx4 {vr(V_LIN16)}, {WS}, s{S_MPOLL} offen sc1 lds\n'
                f'    buffer_load_dwordx4 {vr(V_LIN16)}, {WS}, s{S_MPOLL} offen offset:1024 sc1 lds\n')
    return (f'    s_mov_b32 m0, {LDS_M + w * 2048}\n'
            f'    buffer_load_dwordx4 {vr(V_LIN16)}, {WS}, s{S_MPOLL} offen sc1 lds\n'
            f'    buffer_load_dwordx4 {vr(V_LIN16)}, {WS}, s{S_MPOLL} offen offset:1024 sc1 lds\n')
def own_reads(w):
    if HOP2_BOTH[0]: return '    s_waitcnt lgkmcnt(0)\n'
    PM = R_M + 8 * w
    return (f'    ds_read_b128 {vr(PM,4)}, {vr(V_LIN16)} offset:{LDS_M + w * 2048}\n'
            f'    ds_read_b128 {vr(PM+4,4)}, {vr(V_LIN16)} offset:{LDS_M + w * 2048 + 1024}\n'
            f'    s_waitcnt lgkmcnt(0)\n')
def hop1_loads():
    PA = R_Q
    return (f'    buffer_load_dwordx4 {vr(PA,4)}, {vr(V_LIN16)}, {WS}, s{S_PL0} offen sc1\n'
            f'    buffer_load_dwordx4 {vr(PA+4,4)}, {vr(V_LIN16)}, {WS}, s{S_PL0} offen offset:1024 sc1\n')

def idle_prep(a, lg):
    for f in range(4):
        for th in stage(lg, R_S + f * 8, f, f'wq{f}'): th()
    for r in range(16):
        a(f'    v_mov_b32 {vr(R_K + r)}, 0')

def weave(a, mf, fill):
    for i, m in enumerate(mf):
        if callable(m): m()
        else: a(m)
        for f in fill.get(i, []):
            if callable(f): f()
            else: a(f)

def mov64(r, src='0'):
    return f'    v_mov_b64 {vr(r,2)}, {src}'

class Sched:
    def __init__(self, a): self.a = a; self.mf = []; self.ds = {}; self.va = {}; self.pre = {}
    def add(self, m): self.mf.append(m); return len(self.mf) - 1
    def D(self, i, x): self.ds.setdefault(i, []).append(x)
    def V(self, i, x): self.va.setdefault(i, []).append(x)
    def P(self, i, x): self.pre.setdefault(i, []).append(x)
    def emit(self):
        run = lambda x: x() if callable(x) else self.a(x)
        for i, m in enumerate(self.mf):
            for x in self.pre.get(i, []): run(x)
            run(m)
            for x in self.ds.get(i, []): run(x)
            for x in self.va.get(i, []): run(x)

S_CC = 96
S_ONE2 = 98

def emit_step(a, cfg, w, last, ool):
    lg = LG(a)
    ST = cfg['st']
    tag = f'{w}' + ('l' if last else 'm') + cfg.get('sfx', '')
    own = (2 * w, 2 * w + 1)
    PM = R_M + 8 * w
    accQ, accK = R_K, R_K + 8
    X = R_X
    np2 = cfg.get('np2', 1)
    NRES = 2 if cfg.get('rstend') else 0
    tn = lambda n: (lambda: TN(a, cfg, n))
    SP = cfg.get('sp') and not last
    if SP:
        oe, oo = own
        PE, PO = R_M + 4 * oe, R_M + 4 * oo
        def chk4(regs, retry):
            a(f"""
    v_max3_u32 {vr(X)}, {vr(regs)}, {vr(regs+1)}, {vr(regs+2)}
    v_max_u32 {vr(X)}, {vr(X)}, {vr(regs+3)}
    v_cmp_eq_u32 vcc, -1, {vr(X)}
    s_cbranch_vccnz {retry}
""")
        rdE = f'    ds_read_b128 {vr(PE,4)}, {vr(V_LIN16)} offset:{LDS_M + oe * 1024}\n    s_waitcnt lgkmcnt(0)\n'
        rdO = f'    ds_read_b128 {vr(PO,4)}, {vr(V_LIN16)} offset:{LDS_M + oo * 1024}'
        dmaE = f'    s_mov_b32 m0, {LDS_M + w * 2048}\n    buffer_load_dwordx4 {vr(V_LIN16)}, {WS}, s{S_MPOLL} offen sc1 lds\n'
        dmaO = f'    s_mov_b32 m0, {LDS_M + w * 2048}\n    buffer_load_dwordx4 {vr(V_LIN16)}, {WS}, s{S_MPOLL} offen offset:1024 sc1 lds\n'
        a(f"    s_waitcnt vmcnt({2 * (np2 - 1) + 1})")
        a(rdE)
        chk4(PE, f'L_pEr_{tag}')
        a(f'L_pEd_{tag}:')
        T(a, cfg, 0)
        def oolE():
            a(f"""
L_pEr_{tag}:
    s_add_u32 s{S_CNT}, s{S_CNT}, 1
    s_cmp_lt_u32 s{S_CNT}, s{S_ERR}
    s_cbranch_scc0 L_pEr_{tag}_to
""")
            a(dmaE)
            a('    s_waitcnt vmcnt(1)')
            a(rdE)
            chk4(PE, f'L_pEr_{tag}')
            a(f"""
    s_branch L_pEd_{tag}
L_pEr_{tag}_to:
    s_mov_b32 s{S_ERR}, 0
    s_branch L_pEd_{tag}
""")
        ool.append(oolE)
        def oolO():
            a(f"""
L_pOr_{tag}:
    s_add_u32 s{S_CNT}, s{S_CNT}, 1
    s_cmp_lt_u32 s{S_CNT}, s{S_ERR}
    s_cbranch_scc0 L_pOr_{tag}_to
""")
            a(dmaO)
            a('    s_waitcnt vmcnt(0)')
            a(rdO); a('    s_waitcnt lgkmcnt(0)')
            chk4(PO, f'L_pOr_{tag}')
            a(f"""
    s_branch L_pOd_{tag}
L_pOr_{tag}_to:
    s_mov_b32 s{S_ERR}, 0
    s_branch L_pOd_{tag}
""")
        ool.append(oolO)
        stamp(a, cfg, 9)
        lg.n = 8; lg.done = 8
        a('    s_barrier')
        T(a, cfg, 2)
        def Wq(ks, sel): return wq(ks, sel) if ks < 6 else vr(R_S + ((ks - 6) * 2 + sel) * 8, 8)
        def Wk(ks, sel): return wk(ks, sel) if ks < 6 else vr(R_S + ((ks - 6) * 2 + sel) * 8, 8)
        def Qs(ks, sel): return smf(accQ + 4 * sel, R_M + 4 * ks, Wq(ks, sel))
        def Ks(ks, sel): return smf(accK + 4 * sel, R_M + 4 * ks, Wk(ks, sel))
        mread = {ks: (lambda ks=ks: lg.issue(f'    ds_read_b128 {vr(R_M + 4*ks, 4)}, {vr(V_LIN16)} offset:{LDS_M + ks * 1024}', f'm{ks}')) for ks in range(8)}
        wkst = []
        for f in range(4): wkst += stage(lg, R_S + f * 8, 4 + f, f'wk{f}')
        def waits(*tags):
            def f():
                for t in tags:
                    if t in lg.tags: lg.wait(t)
            return f
        nvm = 0
        KP = X + 2
        pub_rd = [lambda: lg.issue(f'    ds_read_b64_tr_b16 {vr(KP, 2)}, {vr(V_QR)} offset:{256 + w * 1024}'),
                  lambda: lg.issue(f'    ds_read_b64_tr_b16 {vr(KP + 2, 2)}, {vr(V_QR)} offset:{256 + w * 1024 + 128}', 'kp')]
        vmp = f'    buffer_store_dwordx4 {vr(V_VB,4)}, {vr(V_LIN16)}, {WS}, s{S_VMP} offen offset:{w * 1024} sc1'
        kmp = [waits('kp'), f'    s_mov_b64 exec, s[{S_MASK_T}:{S_MASK_T+1}]',
               f'    buffer_store_dwordx4 {vr(KP,4)}, {vr(V_OW)}, {WS}, s{S_KMP} offen offset:{w * 512} sc1', '    s_mov_b64 exec, -1']
        nvm += 2
        bg = [[f'    s_mov_b32 m0, s{S_KDST}', f'    buffer_load_dwordx4 {vr(V_LIN16)}, {WS}, s{S_KSRC} offen lds'],
              [f'    buffer_load_dwordx4 {vr(V_LIN16)}, {WS}, s{S_KSRC} offen offset:1024 lds'],
              [f'    s_mov_b32 m0, {LDS_MISC + w * 512}', f'    buffer_load_dword {vr(V_VLD)}, {WS}, s{S_VSRC} offen lds'],
              [f'    buffer_load_dword {vr(V_VLD)}, {WS}, s{S_VSRC} offen offset:256 lds']]
        nvm += 4
        if cfg.get('progress') and w == 0:
            bg.append([f'    s_lshl_b32 s{S_T0}, s{S_H}, 7', f'    s_add_u32 s{S_T0}, s{S_T0}, {FL_P}',
                       f'    s_sub_u32 s{S_T1}, s{S_STEP}, 1', f'    s_max_i32 s{S_T1}, s{S_T1}, 0', f'    v_mov_b32 {vr(X)}, s{S_T1}', f'    v_mov_b32 {vr(X+1)}, 0', f'    s_mov_b64 exec, 1',
                       f'    buffer_store_dword {vr(X)}, {vr(X+1)}, {WS}, s{S_T0} offen sc1', f'    s_mov_b64 exec, -1'])
            nvm += 1
        ev = [k for k in (0, 2, 4) if k != oe]
        od = [k for k in (1, 3, 5) if k != oo]
        if w < 3:
            A = [('Q', oe), ('K', oe), ('Q', 6), ('Q', ev[0]), ('Q', ev[1]), ('K', ev[0]), ('K', ev[1])]
            ereads = [6, ev[0], ev[1]]
            Bq = [('Q', 7), ('Q', oo), ('Q', od[0]), ('Q', od[1])]
            Bk = [('K', 6), ('K', oo), ('K', od[0]), ('K', 7), ('K', od[1])]
            oreads = [7, od[0], od[1]]
        else:
            A = [('Q', 6), ('Q', 0), ('Q', 2), ('Q', 4), ('K', 0), ('K', 2), ('K', 4)]
            ereads = [0, 2, 4]
            Bq = [('Q', 7), ('Q', 1), ('Q', 3), ('Q', 5)]
            Bk = [('K', 6), ('K', 1), ('K', 3), ('K', 7), ('K', 5)]
            oreads = [1, 3, 5]
        mread[ereads[0]](); mread[ereads[1]]()
        stamp(a, cfg, 0)
        S = Sched(a)
        pos = {}
        for kind, ks in A + Bq + Bk:
            for sel in range(2):
                i = S.add(Qs(ks, sel) if kind == 'Q' else Ks(ks, sel))
                pos[(kind, ks, sel)] = i
                if sel == 0:
                    t = [f'm{ks}']
                    if kind == 'K' and ks >= 6: t.append(f'wk{(ks - 6) * 2 + 1}')
                    S.P(i, waits(*t))
        S.D(0, mread[ereads[2]])
        S.D(1, pub_rd[0]); S.D(2, pub_rd[1])
        g2a, g2b = cfg.get('g2a', 5), cfg.get('g2b', 9)
        S.D(g2a, '    s_waitcnt vmcnt(0)')
        S.D(g2a, lambda: lg.issue(rdO, 'mo'))
        def stage2():
            lg.wait('mo')
            chk4(PO, f'L_pOr_{tag}')
            a(f'L_pOd_{tag}:')
            a('    s_barrier')
        S.D(g2b, stage2)
        for k, ks in enumerate(oreads): S.D(g2b if k == 0 else g2b + k, mread[ks])
        p6, p7 = pos[('Q', 6, 1)], pos[('Q', 7, 1)]
        g = max(p6 + 1, g2a + 1)
        for k in range(4):
            while g in (g2b, g2b + 1, g2b + 2): g += 1
            S.D(g, wkst[k]); g += 1
        g = max(g, p7)
        for k in range(4, 8):
            S.D(g, wkst[k]); g += 1
        for gi, grp in zip((14, 16, 18, 20, 21), bg):
            for x in grp: S.V(gi, x)
        qe = pos[(Bq[-1][0], Bq[-1][1], 1)]
        qa, qb_ = add2(accQ, accQ, accQ + 2), add2(accQ + 4, accQ + 4, accQ + 6)
        S.V(qe + 2, qa[0]); S.V(qe + 2, qa[1]); S.V(qe + 3, qb_[0]); S.V(qe + 3, qb_[1])
        S.V(qe + 4, cvt(accQ, accQ, accQ + 1)); S.V(qe + 4, cvt(accQ + 4, accQ + 4, accQ + 5))
        S.D(qe + 5, lambda: lg.issue(f'    ds_write2_b32 {vr(V_QW)}, {vr(accQ)}, {vr(accQ+4)} offset0:0 offset1:128', 'qw'))
        S.V(qe + 1, vmp)
        accV = R_K
        n = len(S.mf)
        S.V(qe + 6, mov64(accV)); S.V(qe + 7, mov64(accV + 2)); S.V(qe + 8, mov64(accV + 4)); S.V(qe + 9, mov64(accV + 6))
        assert qe + 9 <= n - 1, (qe, n)
        S.V(qe, lambda: (T(a, cfg, 3), TN(a, cfg, 'Qend')))
        S.emit()
        def Vs(ks, sel): return smf(accV + 4 * sel, R_M + 4 * ks, wv(ks, sel))
        Sx, KA, Sm, ON, Pq, PM16, Lx, Ox = R_K + 8, R_M, R_M + 16, R_M + 20, R_M + 24, R_M + 28, X, R_K
        kx = {(tau, k2): (lambda tau=tau, k2=k2: lg.issue(f'    ds_read_b128 {vr(R_S + tau*16 + 4*k2, 4)}, {vr((V_K0, V_K1)[tau])} offset:{k2 * 2048}', f'kx{tau}{k2}'))
              for tau in range(2) for k2 in range(4)}
        kx_pending = [kx[(tau, k2)] for tau in range(2) for k2 in range(4)]
        stamp(a, cfg, 2); T(a, cfg, 5); TN(a, cfg, 'Kend')
    else:
        kx_pending = []
        NL2 = 4 if HOP2_BOTH[0] else 2
        a(f"    s_waitcnt vmcnt({NL2 * (np2 - 1) + NRES})")
        a(own_reads(w))
        poll_check(a, PM, f'L_p2r_{tag}')
        a(f'L_p2d_{tag}:')
        T(a, cfg, 0)
        def ool2():
            a(f"""
L_p2r_{tag}:
    s_add_u32 s{S_CNT}, s{S_CNT}, 1
    s_cmp_lt_u32 s{S_CNT}, s{S_ERR}
    s_cbranch_scc0 L_p2r_{tag}_to
""")
            a(hop2_loads(w))
            a(f"    s_waitcnt vmcnt({NL2 * (np2 - 1)})")
            a(own_reads(w))
            poll_check(a, PM, f'L_p2r_{tag}')
            a(f"""
    s_branch L_p2d_{tag}
L_p2r_{tag}_to:
    s_mov_b32 s{S_ERR}, 0
    s_branch L_p2d_{tag}
""")
        ool.append(ool2)
        stamp(a, cfg, 9)
        lg.n = 8; lg.done = 8
        for f in range(4): lg.tags[f'wq{f}'] = 2 * f + 2
        a('    s_barrier')
        T(a, cfg, 2)
        def Wq(ks, sel): return wq(ks, sel) if ks < 6 else vr(R_S + ((ks - 6) * 2 + sel) * 8, 8)
        def Wk(ks, sel): return wk(ks, sel) if ks < 6 else vr(R_S + ((ks - 6) * 2 + sel) * 8, 8)
        def Qs(ks, sel): return smf(accQ + 4 * sel, R_M + 4 * ks, Wq(ks, sel))
        def Ks(ks, sel): return smf(accK + 4 * sel, R_M + 4 * ks, Wk(ks, sel))
        accV = R_S + 16
        def Vs(ks, sel): return smf(accV + 4 * sel, R_M + 4 * ks, wv(ks, sel))
        others = [ks for ks in (6, 7, 0, 1, 2, 3, 4, 5) if ks not in own]
        mread = {ks: (lambda ks=ks: lg.issue(f'    ds_read_b128 {vr(R_M + 4*ks, 4)}, {vr(V_LIN16)} offset:{LDS_M + ks * 1024}', f'm{ks}')) for ks in others}
        wkst = []
        for f in range(4): wkst += stage(lg, R_S + f * 8, 4 + f, f'wk{f}')
        def waits(*tags):
            def f():
                for t in tags:
                    if t in lg.tags: lg.wait(t)
            return f
        S = Sched(a)
        if not last:
            for ks in own:
                for sel in range(2): S.add(Qs(ks, sel))
        if w < 3:
            for ks in own:
                for sel in range(2): S.add(Ks(ks, sel))
        nE = len(S.mf)
        rd = list(others)
        mread[rd.pop(0)](); mread[rd.pop(0)]()
        stamp(a, cfg, 0)
        nvm = 0
        KP = X + 2
        pub_rd = [lambda: lg.issue(f'    ds_read_b64_tr_b16 {vr(KP, 2)}, {vr(V_QR)} offset:{256 + w * 1024}'),
                  lambda: lg.issue(f'    ds_read_b64_tr_b16 {vr(KP + 2, 2)}, {vr(V_QR)} offset:{256 + w * 1024 + 128}', 'kp')]
        vmp = f'    buffer_store_dwordx4 {vr(V_VB,4)}, {vr(V_LIN16)}, {WS}, s{S_VMP} offen offset:{w * 1024} sc1'
        kmp = [waits('kp'), f'    s_mov_b64 exec, s[{S_MASK_T}:{S_MASK_T+1}]',
               f'    buffer_store_dwordx4 {vr(KP,4)}, {vr(V_OW)}, {WS}, s{S_KMP} offen offset:{w * 512} sc1', '    s_mov_b64 exec, -1']
        rst = [f'    buffer_store_dwordx4 {vr(R_Q+8,4)}, {vr(V_LIN16)}, {WS}, s{S_PR0} offen {ST}',
               f'    buffer_store_dwordx4 {vr(R_Q+8,4)}, {vr(V_LIN16)}, {WS}, s{S_PR0} offen offset:1024 {ST}']
        nvm += 2
        if not last:
            bg = [[f'    s_mov_b32 m0, s{S_KDST}', f'    buffer_load_dwordx4 {vr(V_LIN16)}, {WS}, s{S_KSRC} offen lds'],
                  [f'    buffer_load_dwordx4 {vr(V_LIN16)}, {WS}, s{S_KSRC} offen offset:1024 lds'],
                  [f'    s_mov_b32 m0, {LDS_MISC + w * 512}', f'    buffer_load_dword {vr(V_VLD)}, {WS}, s{S_VSRC} offen lds'],
                  [f'    buffer_load_dword {vr(V_VLD)}, {WS}, s{S_VSRC} offen offset:256 lds']]
            nvm += 4
            if cfg.get('progress') and w == 0:
                bg.append([f'    s_lshl_b32 s{S_T0}, s{S_H}, 7', f'    s_add_u32 s{S_T0}, s{S_T0}, {FL_P}',
                           f'    s_sub_u32 s{S_T1}, s{S_STEP}, 1', f'    s_max_i32 s{S_T1}, s{S_T1}, 0', f'    v_mov_b32 {vr(X)}, s{S_T1}', f'    v_mov_b32 {vr(X+1)}, 0', f'    s_mov_b64 exec, 1',
                           f'    buffer_store_dword {vr(X)}, {vr(X+1)}, {WS}, s{S_T0} offen sc1', f'    s_mov_b64 exec, -1'])
                nvm += 1
            laststagedQ = None
            for ks in others:
                for sel in range(2):
                    i = S.add(Qs(ks, sel))
                    if sel == 0: S.P(i, waits(f'm{ks}'))
                    if ks >= 6: laststagedQ = i
            if laststagedQ is None: laststagedQ = 3
            g = 0
            while rd:
                S.D(g, mread[rd.pop(0)]); g += 1
            S.D(g, pub_rd[0]); S.D(g + 1, pub_rd[1]); g += 2
            for gi, grp in zip((1, 4, 6, 9, 11), bg):
                for x in grp: S.V(gi, x)
            if cfg.get('rstE'):
                S.V(cfg.get('rp0', 2), rst[0]); S.V(cfg.get('rp1', 13), rst[1]); nvm += 2
            g = max(g, laststagedQ)
            k = 0
            while k < 8 and g < len(S.mf):
                S.D(g, wkst[k]); k += 1; g += 1
            S.emit()
            while k < 8: wkst[k](); k += 1
        else:
            if cfg.get('progress') and w == 0:
                a(f"""
    s_lshl_b32 s{S_T0}, s{S_H}, 7
    s_add_u32 s{S_T0}, s{S_T0}, {FL_P}
    s_sub_u32 s{S_T1}, s{S_STEP}, 1
    v_mov_b32 {vr(X)}, s{S_T1}
    v_mov_b32 {vr(X+1)}, 0
    s_mov_b64 exec, 1
    buffer_store_dword {vr(X)}, {vr(X+1)}, {WS}, s{S_T0} offen sc1
    s_mov_b64 exec, -1
""")
            for ks in rd: mread[ks]()
            for th in pub_rd: th()
            a(vmp)
            for x in kmp: x() if callable(x) else a(x)
            if nE > 0: S.emit()
            for th in wkst: th()
        stamp(a, cfg, 1); T(a, cfg, 3); TN(a, cfg, 'Qend')
        nonst = [ks for ks in others if ks < 6]
        if w < 3: kord = [6, nonst[0], 7] + nonst[1:]
        else: kord = [0, 6, 1, 7, 2, 3, 4, 5]
        S = Sched(a)
        pos6 = pos7 = None
        for ks in kord:
            for sel in range(2):
                i = S.add(Ks(ks, sel))
                if sel == 0:
                    t = [f'm{ks}']
                    if ks >= 6: t.append(f'wk{(ks - 6) * 2 + 1}')
                    S.P(i, waits(*t))
                if ks == 6: pos6 = i
                if ks == 7: pos7 = i
        nk = len(S.mf)
        accV = R_K
        def Vs(ks, sel): return smf(accV + 4 * sel, R_M + 4 * ks, wv(ks, sel))
        Sx, KA, Sm, ON, Pq, PM16, Lx, Ox = R_K + 8, R_M, R_M + 16, R_M + 20, R_M + 24, R_M + 28, X, R_K
        kx = {(tau, k2): (lambda tau=tau, k2=k2: lg.issue(f'    ds_read_b128 {vr(R_S + tau*16 + 4*k2, 4)}, {vr((V_K0, V_K1)[tau])} offset:{k2 * 2048}', f'kx{tau}{k2}'))
              for tau in range(2) for k2 in range(4)}
        if not last:
            qa, qb_ = add2(accQ, accQ, accQ + 2), add2(accQ + 4, accQ + 4, accQ + 6)
            S.V(1, qa[0]); S.V(2, qa[1]); S.V(2, qb_[0]); S.V(3, qb_[1]); S.V(3, cvt(accQ, accQ, accQ + 1)); S.V(4, cvt(accQ + 4, accQ + 4, accQ + 5))
            S.D(5, lambda: lg.issue(f'    ds_write2_b32 {vr(V_QW)}, {vr(accQ)}, {vr(accQ+4)} offset0:0 offset1:128', 'qw'))
            g = max(pos6 + 1, 2)
            for k2 in range(4):
                S.D(g, kx[(0, k2)]); g += 1
            g = max(g, pos7 + 1, 6)
            kx1 = [kx[(1, k2)] for k2 in range(4)]
            while kx1 and g < nk:
                S.D(g, kx1.pop(0)); g += 1
            S.V(7, vmp)
            S.P(nk - 3, waits('qw'))
            S.V(nk - 3, mov64(accV)); S.V(nk - 2, mov64(accV + 2)); S.V(nk - 1, mov64(accV + 4)); S.V(nk - 1, mov64(accV + 6))
            S.V(3, tn('k3')); S.V(7, tn('k7'))
            S.emit()
            for th in kx1: th()
        else:
            S.emit()
            for r in range(0, 8, 2): a(mov64(accV + r))
        stamp(a, cfg, 2); T(a, cfg, 5); TN(a, cfg, 'Kend')

    kf = add2(accK, accK, accK + 2) + add2(accK + 4, accK + 4, accK + 6) + [cvt(accK, accK, accK + 1), cvt(accK + 4, accK + 4, accK + 5)]
    kw = lambda: lg.issue(f'    ds_write2_b32 {vr(V_QW)}, {vr(accK)}, {vr(accK+4)} offset0:64 offset1:192', 'kw')
    qb = [(lambda k2=k2, hh=hh: lg.issue(f'    ds_read_b64_tr_b16 {vr(R_Q + 4*k2 + 2*hh, 2)}, {vr(V_QR)} offset:{k2 * 1024 + hh * 128}', f'q{k2}'))
          for k2 in range(4) for hh in range(2)]
    kar = [(lambda k2=k2, hh=hh: lg.issue(f'    ds_read_b64_tr_b16 {vr(KA + 4*k2 + 2*hh, 2)}, {vr(V_QR)} offset:{256 + k2 * 1024 + hh * 128}', f'k{k2}'))
           for k2 in range(4) for hh in range(2)]
    vm = [Vs(ks, sel) for ks in range(8) for sel in range(2)]
    MX, T1, NEG, al = X, X + 1, X + 2, X + 4
    S = Sched(a)
    for x in vm: S.add(x)
    S.V(1, kf[0]); S.V(1, kf[1]); S.V(2, kf[2]); S.V(2, kf[3]); S.V(3, kf[4]); S.V(3, kf[5]); S.D(4, kw)
    for k, th in enumerate(kx_pending): S.D(k if k < 4 else k + 1, th)
    gb = cfg.get('gb2', 8)
    if not last:
        for x in kmp: S.D(gb, x)
    S.D(gb, waits('kw')); S.D(gb, '    s_barrier'); S.D(gb, tn('B2'))
    if not last:
        qpg = cfg.get('qpg', 1)
        for k, th in enumerate(qb): S.D(min(gb + k // qpg, 15), th)
    S.V(3, tn('v3')); S.V(7, tn('v7'))
    S.emit()
    if last:
        kmst = [f'    s_mov_b64 exec, s[{S_MASK_T}:{S_MASK_T+1}]',
                f'    buffer_store_dwordx4 {vr(KA + 4*w,4)}, {vr(V_OW)}, {WS}, s{S_KMO} offen offset:{w * 512} sc1',
                f'    s_mov_b64 exec, -1']
        for th in kar: th()
        a(pkadd(accV, accV, accV + 2)); a(pkadd(accV + 4, accV + 4, accV + 6))
        a(cvt(V_VB, accV, accV + 1)); a(cvt(V_VB + 2, accV + 4, accV + 5))
        a(f'    buffer_store_dwordx4 {vr(V_VB,4)}, {vr(V_LIN16)}, {WS}, s{S_VMO} offen offset:{w * 1024} sc1')
        lg.wait('k3')
        for x in kmst: a(x)
        return
    stamp(a, cfg, 3); T(a, cfg, 6); TN(a, cfg, 'Vend')
    a(f'    s_waitcnt vmcnt({nvm})')
    for th in kar[:4]: th()
    S = Sched(a)
    for tau in range(2):
        for k2 in range(4):
            i = S.add(mf32(Sx + 4 * tau, vr(R_S + tau * 16 + 4 * k2, 4), vr(R_Q + 4 * k2, 4), '0' if k2 == 0 else vr(Sx + 4 * tau, 4)))
            S.P(i, waits(f'q{k2}', f'kx{tau}{k2}'))
    for k, th in enumerate(kar[4:]): S.D(k, th)
    va, vb_ = add2(accV, accV, accV + 2), add2(accV + 4, accV + 4, accV + 6)
    S.V(1, va[0]); S.V(1, va[1]); S.V(2, vb_[0]); S.V(2, vb_[1])
    S.V(4, cvt(V_VB, accV, accV + 1)); S.V(4, cvt(V_VB + 2, accV + 4, accV + 5))
    S.V(3, mov64(ON, f's[{S_ONE2}:{S_ONE2+1}]')); S.V(3, mov64(ON + 2, f's[{S_ONE2}:{S_ONE2+1}]'))
    S.V(6, f'    v_max3_f32 {vr(MX)}, {vr(Sx)}, {vr(Sx+1)}, {vr(Sx+2)}')
    S.V(7, f'    v_max_f32 {vr(MX)}, {vr(MX)}, {vr(Sx+3)}')
    b = len(S.mf)
    for k2 in range(4):
        i = S.add(mf32(Sm, vr(KA + 4 * k2, 4), vr(R_Q + 4 * k2, 4), '0' if k2 == 0 else vr(Sm, 4)))
        S.P(i, waits(f'k{k2}'))
    stg = []
    for tau in range(4): stg += stage(lg, R_S + tau * 8, 8 + tau, f'wo{tau}')
    S.D(4, stg[0]); S.D(5, stg[1]); S.D(6, stg[2]); S.D(7, stg[3])
    S.D(b, stg[4]); S.D(b + 1, stg[5]); S.D(b + 2, stg[6]); S.D(b + 3, stg[7])
    S.V(b + 1, f'    v_max3_f32 {vr(T1)}, {vr(Sx+4)}, {vr(Sx+5)}, {vr(Sx+6)}')
    S.V(b + 1, mov64(R_Q)); S.V(b + 2, mov64(R_Q + 2)); S.V(b + 3, mov64(R_Q + 4)); S.V(b + 3, mov64(R_Q + 6))
    S.V(b + 2, f'    v_max3_f32 {vr(MX)}, {vr(MX)}, {vr(Sx+7)}, {vr(T1)}')
    S.V(0, tn('sx0')); S.V(3, tn('sx3')); S.V(7, tn('sx7')); S.V(b, tn('smm0')); S.V(b + 3, tn('smm3'))
    S.emit()
    stamp(a, cfg, 4); T(a, cfg, 8)
    stg2 = []
    for tau in range(4, 6): stg2 += stage(lg, R_M + (tau - 4) * 8, 8 + tau, f'wo{tau}')
    seq = [mov64(R_Q + 8), mov64(R_Q + 10), mov64(R_Q + 12), mov64(R_Q + 14), stg2[0], stg2[1],
           f'    v_max3_f32 {vr(MX)}, {vr(MX)}, {vr(Sm)}, {vr(Sm+1)}',
           f'    v_max3_f32 {vr(MX)}, {vr(MX)}, {vr(Sm+2)}, {vr(Sm+3)}',
           f'    v_cndmask_b32 {vr(Sm)}, {vr(Sm)}, {vr(Sm+2)}, s[{S_MASK_ODD}:{S_MASK_ODD+1}]',
           f'    v_mov_b32 {vr(T1)}, {vr(MX)}',
           f'    v_cndmask_b32 {vr(Sm+1)}, {vr(Sm+1)}, {vr(Sm+3)}, s[{S_MASK_ODD}:{S_MASK_ODD+1}]',
           stg2[2],
           f'    v_permlane16_swap_b32 {vr(MX)}, {vr(T1)}',
           f'    v_max_f32 {vr(MX)}, {vr(MX)}, {vr(T1)}',
           f'    v_mov_b32 {vr(T1)}, {vr(MX)}',
           stg2[3], f'    v_mov_b32 {vr(PM16+1)}, 0',
           f'    v_permlane32_swap_b32 {vr(MX)}, {vr(T1)}',
           f'    v_max_f32 {vr(MX)}, {vr(MX)}, {vr(T1)}',
           f'    v_mul_f32 {vr(NEG)}, s{S_C}, {vr(MX)}']
    for r in [Sx, Sx + 2, Sx + 4, Sx + 6, Sm]:
        seq.append(f'    v_pk_fma_f32 {vr(r,2)}, {vr(r,2)}, s[{S_CC}:{S_CC+1}], {vr(NEG,2)} op_sel_hi:[1,1,0] neg_lo:[0,0,1] neg_hi:[0,0,1]')
    for r in list(range(Sx, Sx + 8)) + [Sm, Sm + 1]:
        seq.append(f'    v_exp_f32 {vr(r)}, {vr(r)}')
    for r in range(4):
        seq.append(cvt(Pq + r, Sx + 2 * r, Sx + 2 * r + 1))
    seq.append(cvt(PM16, Sm, Sm + 1))
    for x in seq: x() if callable(x) else a(x)
    TN(a, cfg, 'pvx')
    S = Sched(a)
    S.add(mf32(Ox, vr(V_VX, 4), vr(Pq, 4), '0'))
    S.add(mf32(Ox + 4, vr(V_VX + 4, 4), vr(Pq, 4), '0'))
    S.add(mf32(Lx, vr(ON, 4), vr(Pq, 4), '0'))
    S.add(f'    v_mfma_f32_16x16x16_bf16 {vr(Lx, 4)}, {vr(V_ON16, 2)}, {vr(PM16, 2)}, {vr(Lx, 4)}')
    for phi in range(2):
        S.add(f'    v_mfma_f32_16x16x16_bf16 {vr(Ox + 4*phi, 4)}, {vr(V_VB + 2*phi, 2)}, {vr(PM16, 2)}, {vr(Ox + 4*phi, 4)}')
    S.V(1, mov64(Sx)); S.V(1, mov64(Sx + 2)); S.V(2, mov64(Sx + 4)); S.V(2, mov64(Sx + 6))
    S.V(2, f'    buffer_load_dwordx4 {vr(V_VX,4)}, {vr(V_VLD)}, {WS}, s{S_VSRC} offen')
    S.V(3, f'    buffer_load_dwordx4 {vr(V_VX+4,4)}, {vr(V_VLD)}, {WS}, s{S_VSRC} offen offset:256')
    S.emit()
    TN(a, cfg, 'pvm')
    a(f'    v_rcp_f32 {vr(al)}, {vr(Lx)}')
    TN(a, cfg, 'rcp')
    dump(a, cfg, w, 2, Ox, 8)
    O4 = Pq
    if cfg.get('pkm'):
        for r in range(4):
            a(f'    v_pk_mul_f32 {vr(Ox+2*r,2)}, {vr(Ox+2*r,2)}, {vr(al,2)} op_sel_hi:[1,0]')
        for r in range(4): a(cvt(O4 + r, Ox + 2 * r, Ox + 2 * r + 1))
    else:
        for r in range(4):
            a(f'    v_mul_f32 {vr(Ox+2*r)}, {vr(Ox+2*r)}, {vr(al)}')
            a(f'    v_mul_f32 {vr(Ox+2*r+1)}, {vr(Ox+2*r+1)}, {vr(al)}')
            a(cvt(O4 + r, Ox + 2 * r, Ox + 2 * r + 1))
    a(f'    s_mov_b64 exec, s[{S_MASK_T}:{S_MASK_T+1}]')
    lg.issue(f'    ds_write_b128 {vr(V_OW)}, {vr(O4,4)} offset:{LDS_OX + w * 512}', 'ow')
    a('    s_mov_b64 exec, -1')
    stg6 = stage(lg, R_M + 16, 8 + 6, 'wo6')
    stg6[0](); stg6[1]()
    if not cfg.get('rstE'):
        a(mov64(X + 2, '-1')); a(mov64(X + 4, '-1'))
        a(f'    buffer_store_dwordx4 {vr(X+2,4)}, {vr(V_LIN16)}, {WS}, s{S_PR0} offen {ST}')
    T(a, cfg, 9); TN(a, cfg, 'ow')
    lg.wait('ow')
    a('    s_barrier')
    T(a, cfg, 10); TN(a, cfg, 'B3')
    OA = R_M + 24
    for kap in range(2):
        lg.issue(f'    ds_read_b128 {vr(OA + 4*kap, 4)}, {vr(V_OR)} offset:{kap * 1024}', f'oa{kap}')
    if not cfg.get('rstE'):
        a(f'    buffer_store_dwordx4 {vr(X+2,4)}, {vr(V_LIN16)}, {WS}, s{S_PR0} offen offset:1024 {ST}')
    stamp(a, cfg, 5)
    dump(a, cfg, w, 4, OA, 8)
    accO = [R_Q + 4 * i for i in range(4)] + [R_K + 4 * i for i in range(4)]
    def src1(tau): return R_S + tau * 8 if tau < 4 else (R_M + (tau - 4) * 8 if tau < 7 else R_S)
    last7 = stage(lg, R_S, 8 + 7, 'wo7')
    S = Sched(a)
    wov = cfg.get('wov', 0)
    if wov == 0: order = [(0,0),(1,0),(2,0),(3,0),(0,1),(1,1),(2,1),(3,1),(4,0),(5,0),(6,0),(7,0),(4,1),(5,1),(6,1),(7,1)]
    elif wov == 1: order = [(0,0),(0,1),(1,0),(1,1),(2,0),(2,1),(3,0),(3,1),(4,0),(4,1),(5,0),(5,1),(6,0),(6,1),(7,0),(7,1)]
    else: order = [(0,0),(1,0),(0,1),(1,1),(2,0),(3,0),(2,1),(3,1),(4,0),(5,0),(4,1),(5,1),(6,0),(7,0),(6,1),(7,1)]
    idx = {}
    for tau, kap in order:
        if kap == 0:
            i = S.add(smf(accO[tau], OA, wo0(tau))); S.P(i, waits('oa0'))
        else:
            i = S.add(smf(accO[tau], OA + 4, vr(src1(tau), 8))); S.P(i, waits('oa1', f'wo{tau}'))
        idx[(tau, kap)] = i
    S.D(idx[(0, 1)] + 1, last7[0]); S.D(idx[(0, 1)] + 2, last7[1])
    z = [mov64(R_K + 2 * k) for k in range(4)]
    for k in range(4): S.V(min(k, idx[(4, 0)] - 2), z[k])
    def pack(q, t):
        T0_ = accO[4 * q]
        return cvt(T0_ + t, accO[4 * q + t], accO[4 * q + t] + 1)
    def pstore(q): return f'    buffer_store_dwordx4 {vr(accO[4*q],4)}, {vr(V_PLD)}, {WS}, s{S_PST if q == 0 else S_PL1} offen {ST}'
    f2 = lambda tau: add2(accO[tau], accO[tau], accO[tau] + 2)
    per = cfg.get('woper', 2)
    work = []
    for q in range(2):
        for t in range(4):
            tau = 4 * q + t
            e = idx[(tau, 1)] + 3
            work += [(e, f2(tau)[0]), (e, f2(tau)[1]), (e, pack(q, t))]
        work.append((idx[(4 * q + 3, 1)] + 3, pstore(q)))
    pos = 0; used = {}
    tail = []
    for e, x in work:
        p = max(e, pos)
        while p <= 15 and used.get(p, 0) >= per: p += 1
        if p > 15: tail.append(x); pos = 99
        else:
            S.V(p, x); used[p] = used.get(p, 0) + 1; pos = p
    S.V(0, tn('wo0')); S.V(7, tn('wo7')); S.V(15, tn('wo15'))
    S.emit()
    for x in tail: a(x)
    stamp(a, cfg, 6); T(a, cfg, 11); TN(a, cfg, 'Woend')
    PA, D, SEL = R_Q, R_Q + 8, R_Q + 12
    lg2 = LG(a)
    a(f'    v_mov_b32 {vr(X)}, 0x3f80')
    a(f'    v_mov_b32 {vr(X+1)}, 0x3f800000')
    a(f'    v_cndmask_b32 {vr(X)}, {vr(X)}, {vr(X+1)}, s[{S_MASK_ODDL}:{S_MASK_ODDL+1}]')
    for u in range(4):
        a(f'    v_cndmask_b32 {vr(SEL+u)}, 0, {vr(X)}, s[{S_SEL+2*u}:{S_SEL+2*u+1}]')
    for f in range(4):
        for th in stage(lg2, R_S + f * 8, f): th()
    for r in range(0, 16, 2): a(mov64(R_K + r))
    a(mov64(X + 2, '-1')); a(mov64(X + 4, '-1'))
    a(f'    s_mov_b32 s{S_CNT}, 0')
    if cfg.get('sp') and cfg.get('d1e') is not None:
        a(f'    s_bitcmp1_b32 s{S_H}, 2\n    s_cbranch_scc0 L_d1e_{tag}')
        delay(a, cfg.get('d1', 0) - cfg.get('d1e'))
        a(f'L_d1e_{tag}:')
        delay(a, cfg.get('d1e'))
    else:
        delay(a, cfg.get('d1', 0))
    a(hop1_loads())
    T(a, cfg, 12)
    np1 = cfg.get('np1', 1)
    for i in range(np1 - 1):
        delay(a, cfg.get('g1', 0))
        a(hop1_loads())
    if cfg.get('fused'):
        a(f"""
    s_and_b32 s{S_T0}, s{S_STEP}, 7
    s_cmp_eq_u32 s{S_T0}, 6
    s_cbranch_scc0 L_nkv_{tag}
    s_add_u32 s{S_T0}, s{S_STEP}, 2
    s_lshr_b32 s{S_T0}, s{S_T0}, 3
    s_lshl_b32 s{S_T0}, s{S_T0}, 7
    s_add_u32 s{S_T0}, s{S_T0}, {FL_G1}
    v_mov_b32 {vr(X)}, s{S_T0}
    buffer_load_dword {vr(X+1)}, {vr(X)}, {WS}, 0 offen sc1
    s_waitcnt vmcnt(0)
L_nkv_{tag}:
""")
    a(f'L_p1w_{tag}:')
    a(f'    s_waitcnt vmcnt({2 * (np1 - 1)})')
    a(mf32(D, vr(SEL, 4), vr(PA, 4), '0'))
    a(mf32(D, vr(SEL, 4), vr(PA + 4, 4), vr(D, 4)))
    a(f'    v_cmp_u_f32 vcc, {vr(D)}, {vr(D)}')
    a(f'    s_cbranch_vccnz L_p1r_{tag}')
    a(f'L_p1d_{tag}:')
    ool.append(lambda: retry_block(a, f'L_p1r_{tag}', f'L_p1w_{tag}', f'L_p1d_{tag}', hop1_loads()))
    stamp(a, cfg, 7); T(a, cfg, 13)
    for r in range(4):
        a(f'    v_add_f32_dpp {vr(D+r)}, {vr(D+r)}, {vr(D+r)} row_ror:8 row_mask:0xf bank_mask:0xf')
    for r in range(4):
        a(f'    v_add_f32_dpp {vr(D+r)}, {vr(D+r)}, {vr(D+r)} row_ror:4 row_mask:0xf bank_mask:0xf')
    a(f"""
    v_cvt_pk_bf16_f32 {vr(D)}, {vr(D)}, {vr(D+2)}
    v_cvt_pk_bf16_f32 {vr(D+1)}, {vr(D+1)}, {vr(D+3)}
    s_mov_b64 exec, s[{S_MASK_M}:{S_MASK_M+1}]
    v_cndmask_b32 {vr(D)}, {vr(D)}, {vr(D+1)}, s[{S_MASK_PB}:{S_MASK_PB+1}]
    v_min_u32 {vr(D)}, -2, {vr(D)}
    buffer_store_dword {vr(D)}, {vr(V_MST)}, {WS}, s{S_MNXT} offen {ST}
""")
    if cfg.get('dbgm'):
        a(f"""
    s_add_u32 s{S_DBGM}, s{S_DBGM}, 8192
    buffer_store_dword {vr(D)}, {vr(V_MST)}, {WS}, s{S_DBGM} offen
""")
    a(f"""
    buffer_store_dword {vr(X+2)}, {vr(V_MST)}, {WS}, s{S_MCUR} offen {ST}
    s_mov_b64 exec, -1
""")
    stamp(a, cfg, 8); T(a, cfg, 14)
    a(f"""
    s_add_u32 s{S_MPOLL}, s{S_MNXT}, {w * 2048}
    s_mov_b32 s{S_CNT}, 0
    s_add_u32 s{S_STEP}, s{S_STEP}, 1
""")
    if cfg.get('fused'):
        a(f"""
    s_and_b32 s{S_T0}, s{S_STEP}, 7
    s_cmp_eq_u32 s{S_T0}, 7
    s_cbranch_scc0 L_ckv_{tag}
    s_cmp_ge_u32 s{S_STEP}, 57
    s_cbranch_scc1 L_ckv_{tag}
L_ckvl_{tag}:
    v_readfirstlane_b32 s{S_T0}, {vr(X+1)}
    s_and_b32 s{S_T0}, s{S_T0}, 0xff
    s_cmp_eq_u32 s{S_T0}, 128
    s_cbranch_scc1 L_ckv_{tag}
    s_add_u32 s{S_CNT}, s{S_CNT}, 1
    s_cmp_lt_u32 s{S_CNT}, 400000
    s_cbranch_scc0 L_ckv_{tag}
    s_sleep 2
    buffer_load_dword {vr(X+1)}, {vr(X)}, {WS}, 0 offen sc1
    s_waitcnt vmcnt(0)
    s_branch L_ckvl_{tag}
L_ckv_{tag}:
    s_mov_b32 s{S_CNT}, 0
""")
    delay(a, cfg.get('d2', 0))
    a(hop2_loads(w))
    a(f"""
    s_mov_b32 s{S_T0}, s{S_MCUR}
    s_mov_b32 s{S_MCUR}, s{S_MNXT}
    s_mov_b32 s{S_MNXT}, s{S_MOTH}
    s_mov_b32 s{S_MOTH}, s{S_T0}
    s_xor_b32 s{S_PST}, s{S_PST}, 0x40000
    s_mov_b32 s{S_PR0}, s{S_PL0}
    s_xor_b32 s{S_PL0}, s{S_PL0}, 0x40000
    s_xor_b32 s{S_PL1}, s{S_PL1}, 0x40000
    s_add_u32 s{S_KSRC}, s{S_KSRC}, 0x40000
    s_xor_b32 s{S_KDST}, s{S_KDST}, 8192
    s_add_u32 s{S_VSRC}, s{S_VSRC}, 0x40000
    s_mov_b32 s{S_KMP}, s{S_KMO}
    s_mov_b32 s{S_VMP}, s{S_VMO}
    s_add_u32 s{S_KMO}, s{S_KMO}, 65536
    s_add_u32 s{S_VMO}, s{S_VMO}, 131072
    v_xor_b32 {vr(V_K0)}, 0x2000, {vr(V_K0)}
    v_xor_b32 {vr(V_K1)}, 0x2000, {vr(V_K1)}
""")
    if cfg.get('clk') and w == 0:
        a(f"""
    s_and_b32 s{S_T0}, s{S_STEP}, 7
    s_cmp_eq_u32 s{S_T0}, 0
    s_cbranch_scc0 L_clk_{tag}
    s_cmp_eq_u32 s{S_H}, 0
    s_cbranch_scc0 L_clk_{tag}
    s_memtime s[64:65]
    s_memrealtime s[66:67]
    s_waitcnt lgkmcnt(0)
    s_lshl_b32 s{S_T0}, s{S_STEP}, 1
    s_add_u32 s{S_T0}, s{S_T0}, 0x30000
    s_mov_b64 exec, 1
    v_mov_b32 {vr(X)}, s64
    v_mov_b32 {vr(X+1)}, 0
    buffer_store_dword {vr(X)}, {vr(X+1)}, {WS}, s{S_T0} offen
    v_mov_b32 {vr(X)}, s66
    buffer_store_dword {vr(X)}, {vr(X+1)}, {WS}, s{S_T0} offen offset:4
    s_mov_b64 exec, -1
L_clk_{tag}:
""")
    T(a, cfg, 15)
    stamp_accum(a, cfg)
    trace_dump(a, cfg, w)
    for i in range(np2 - 1):
        delay(a, cfg.get('g2', 0))
        a(hop2_loads(w))
    if cfg.get('rstend'):
        delay(a, cfg.get('d3', 0))
        a(f'    buffer_store_dwordx4 {vr(X+2,4)}, {vr(V_LIN16)}, {WS}, s{S_PR0} offen {ST}')
        a(f'    buffer_store_dwordx4 {vr(X+2,4)}, {vr(V_LIN16)}, {WS}, s{S_PR0} offen offset:1024 {ST}')
    else:
        a(mov64(R_Q + 8, '-1')); a(mov64(R_Q + 10, '-1'))

def emit_wave(a, cfg, w):
    ool = []
    emit_setup(a, cfg, w)
    def hook():
        if cfg.get('fused'):
            a(f"""
    s_cmp_lg_u32 s{S_H}, 0
    s_cbranch_scc1 L_nofi_{w}
    v_mov_b64 {vr(R_S,2)}, 0
    v_mov_b64 {vr(R_S+2,2)}, 0
    s_mov_b32 s{S_T0}, {WS_FL + w * 4096}
""")
            for i in range(4):
                a(f'    buffer_store_dwordx4 {vr(R_S,4)}, {vr(V_LIN16)}, {WS}, s{S_T0} offen offset:{i * 1024} sc1')
            a(f"""
L_nofi_{w}:
""")
        emit_init(a, cfg, w)
        a('    s_barrier')
        if w == 0:
            if cfg.get('fused'):
                a(f"""
    s_cmp_lg_u32 s{S_H}, 0
    s_cbranch_scc1 L_nofj
    s_mov_b64 exec, 1
    v_mov_b32 {vr(R_S)}, {DB_INIT}
    v_mov_b32 {vr(R_S+1)}, 1
    global_store_dword {vr(R_S)}, {vr(R_S+1)}, s[{S_DBG}:{S_DBG+1}] sc1
    s_mov_b64 exec, -1
L_nofj:
""")
            a(f"""
    s_mov_b64 exec, 1
    v_mov_b32 {vr(R_S)}, {DB_CBAR}
    v_mov_b32 {vr(R_S+1)}, s{S_ARR}
    global_atomic_add {vr(R_S)}, {vr(R_S+1)}, s[{S_DBG}:{S_DBG+1}] sc1
    s_mov_b64 exec, -1
    s_waitcnt vmcnt(0)
""")
    def hookB():
        a(f"""
    v_mov_b32 {vr(V_VX+3)}, {DB_INIT}
    global_load_dword {vr(V_VX)}, {vr(V_VX+3)}, s[{S_DBG}:{S_DBG+1}] sc1
    v_mov_b32 {vr(V_VX+4)}, {DB_CBAR}
    global_load_dword {vr(V_VX+1)}, {vr(V_VX+4)}, s[{S_DBG}:{S_DBG+1}] sc1
""")
    def hookA():
        a(f"""
    v_mov_b32 {vr(V_VX+5)}, {FL_G1}
    buffer_load_dword {vr(V_VX+2)}, {vr(V_VX+5)}, {WS}, 0 offen sc1
""")
    def hook2():
        a(f"""
    v_readfirstlane_b32 s{S_T0}, {vr(V_VX+1)}
    s_lshr_b32 s{S_MODE}, s{S_T0}, 16
    s_and_b32 s{S_T0}, s{S_T0}, 0xffff
    s_cmp_ge_u32 s{S_T0}, 32
    s_cbranch_scc1 L_cbd{w}
    v_mov_b32 {vr(R_X)}, {DB_CBAR}
    s_mov_b32 s{S_CNT}, 0
L_cb{w}:
    global_load_dword {vr(R_X+1)}, {vr(R_X)}, s[{S_DBG}:{S_DBG+1}] sc1
    s_waitcnt vmcnt(0)
    v_readfirstlane_b32 s{S_T0}, {vr(R_X+1)}
    s_lshr_b32 s{S_MODE}, s{S_T0}, 16
    s_and_b32 s{S_T0}, s{S_T0}, 0xffff
    s_cmp_ge_u32 s{S_T0}, 32
    s_cbranch_scc1 L_cbd{w}
    s_add_u32 s{S_CNT}, s{S_CNT}, 1
    s_cmp_lt_u32 s{S_CNT}, s{S_ERR}
    s_cbranch_scc1 L_cb{w}
    s_mov_b32 s{S_ERR}, 0
L_cbd{w}:
""")
        if cfg.get('fused'):
            a(f"""
    v_readfirstlane_b32 s{S_T0}, {vr(V_VX)}
    v_readfirstlane_b32 s{S_T1}, {vr(V_VX+2)}
    s_and_b32 s{S_T1}, s{S_T1}, 0xff
    s_cmp_eq_u32 s{S_T1}, 128
    s_cselect_b32 s{S_T1}, s{S_T0}, 0
    s_cmp_lg_u32 s{S_T1}, 0
    s_cbranch_scc1 L_kv0d_{w}
    v_mov_b32 {vr(R_X)}, {DB_INIT}
    s_mov_b32 s{S_CNT}, 0
L_ini_{w}:
    global_load_dword {vr(R_X+1)}, {vr(R_X)}, s[{S_DBG}:{S_DBG+1}] sc1
    s_waitcnt vmcnt(0)
    v_readfirstlane_b32 s{S_T0}, {vr(R_X+1)}
    s_cmp_lg_u32 s{S_T0}, 0
    s_cbranch_scc1 L_inid_{w}
    s_add_u32 s{S_CNT}, s{S_CNT}, 1
    s_cmp_lt_u32 s{S_CNT}, 100000
    s_cbranch_scc1 L_ini_{w}
L_inid_{w}:
    v_mov_b32 {vr(R_X)}, {FL_G1}
    s_mov_b32 s{S_CNT}, 0
L_kv0_{w}:
    buffer_load_dword {vr(R_X+1)}, {vr(R_X)}, {WS}, 0 offen sc1
    s_waitcnt vmcnt(0)
    v_readfirstlane_b32 s{S_T0}, {vr(R_X+1)}
    s_and_b32 s{S_T0}, s{S_T0}, 0xff
    s_cmp_eq_u32 s{S_T0}, 128
    s_cbranch_scc1 L_kv0d_{w}
    s_sleep 2
    s_add_u32 s{S_CNT}, s{S_CNT}, 1
    s_cmp_lt_u32 s{S_CNT}, 400000
    s_cbranch_scc1 L_kv0_{w}
L_kv0d_{w}:
""")
        a(f"""
    s_lshl_b32 s{S_T0}, s{S_H}, 13
    s_add_u32 s{S_T0}, s{S_T0}, {w * 2048}
    s_add_u32 s{S_KSRC}, s{S_T0}, {WS_K}
    s_mov_b32 s{S_KDST}, {LDS_KB + w * 2048}
    s_mov_b32 m0, s{S_KDST}
    s_add_u32 s{S_VSRC}, s{S_T0}, {WS_V}
    buffer_load_dwordx4 {vr(V_LIN16)}, {WS}, s{S_KSRC} offen lds
    buffer_load_dwordx4 {vr(V_LIN16)}, {WS}, s{S_KSRC} offen offset:1024 lds
    buffer_load_dwordx4 {vr(V_VX,4)}, {vr(V_VLD)}, {WS}, s{S_VSRC} offen
    buffer_load_dwordx4 {vr(V_VX+4,4)}, {vr(V_VLD)}, {WS}, s{S_VSRC} offen offset:256
    s_add_u32 s{S_KSRC}, s{S_KSRC}, 0x40000
    s_xor_b32 s{S_KDST}, s{S_KDST}, 8192
    s_add_u32 s{S_VSRC}, s{S_VSRC}, 0x40000
    s_mov_b32 s{S_STEP}, 0
    s_mov_b32 s{S_MCUR}, {WS_M}
    s_mov_b32 s{S_MNXT}, {WS_M + 8192}
    s_mov_b32 s{S_MOTH}, {WS_M + 16384}
    s_lshl_b32 s{S_T0}, s{S_H}, 6
    s_add_u32 s{S_PST}, s{S_T0}, {WS_P + (2 * w) * 32768}
    s_add_u32 s{S_PL1}, s{S_PST}, 32768
    s_lshl_b32 s{S_T0}, s{S_H}, 13
    s_add_u32 s{S_PL0}, s{S_T0}, {WS_P + w * 2048}
    s_add_u32 s{S_PR0}, s{S_PL0}, 262144
    s_lshl_b32 s{S_T0}, s{S_H}, 11
    s_add_u32 s{S_KMO}, s{S_T0}, {WS_KM}
    s_lshl_b32 s{S_T0}, s{S_H}, 12
    s_add_u32 s{S_VMO}, s{S_T0}, {WS_VM}
    s_mov_b32 s{S_DBGM}, {WS_DBGM}
    s_mov_b32 s{S_KMP}, 0x0F000000
    s_mov_b32 s{S_VMP}, 0x0F000000
    s_mov_b32 s96, {f2u(SOFT_C):#x}
    s_mov_b32 s97, {f2u(SOFT_C):#x}
    s_mov_b32 s98, 0x3f803f80
    s_mov_b32 s99, 0x3f803f80
    s_mov_b32 s{S_MASK_ODDL}, 0xaaaaaaaa
    s_mov_b32 s{S_MASK_ODDL+1}, 0xaaaaaaaa
""")

    if cfg.get('timing'): a('    s_memrealtime s[78:79]')
    emit_weight_prologue(a, cfg, w, hook, hook2, hookA, hookB)
    if cfg.get('timing'): a('    s_memrealtime s[80:81]')
    for k in range(10):
        a(f'    s_mov_b32 s{STAMP_ACC+k}, 0')
    a('    s_waitcnt vmcnt(0)')
    a('    s_barrier')
    lg = LG(a)
    idle_prep(a, lg)
    a(mov64(R_X + 2, '-1')); a(mov64(R_X + 4, '-1')); a(mov64(R_Q + 8, '-1')); a(mov64(R_Q + 10, '-1'))
    a(f"""
    s_add_u32 s{S_MPOLL}, s{S_MCUR}, {w * 2048}
    s_mov_b32 s{S_CNT}, 0
""")
    a(hop2_loads(w))
    a(f"""
    s_memtime s[{S_TM0}:{S_TM0+1}]
    s_memrealtime s[74:75]
    s_waitcnt vmcnt(0) lgkmcnt(0)
    s_mov_b32 s94, s{S_TM0}
""")
    modes = [('', cfg)]
    if cfg.get('fallback'):
        slow = dict(cfg); slow['st'] = 'sc1'; slow['sfx'] = 's'; slow.pop('trace', None); slow.pop('stamp', None); slow.pop('clk', None)
        modes.append(('s', slow))
        a(f'    s_cmp_lg_u32 s{S_MODE}, 0\n    s_cbranch_scc1 L_step{w}s')
    for sfx, c in modes:
        a(f'L_step{w}{sfx}:')
        emit_step(a, c, w, False, ool)
        a(f"""
    s_cmp_lt_u32 s{S_STEP}, {cfg.get('nsteps', 63)}
    s_cbranch_scc1 L_step{w}{sfx}
""")
        emit_step(a, c, w, True, ool)
        if sfx == '' and len(modes) > 1: a(f'    s_branch L_cfin{w}')
    a(f'L_cfin{w}:')
    a(f"""
    s_waitcnt vmcnt(0)
    s_barrier
    s_memtime s[{S_TM1}:{S_TM1+1}]
    s_memrealtime s[76:77]
    s_waitcnt lgkmcnt(0)
""")
    if cfg.get('progress') and w == 0:
        a(f"""
    s_mov_b64 exec, 1
    v_mov_b32 {vr(R_X)}, 64
    s_lshl_b32 s{S_T0}, s{S_H}, 7
    s_add_u32 s{S_T0}, s{S_T0}, {FL_P}
    v_mov_b32 {vr(R_X+1)}, 0
    buffer_store_dword {vr(R_X)}, {vr(R_X+1)}, {WS}, s{S_T0} offen sc1
    s_mov_b64 exec, -1
""")
    if cfg.get('timing'):
        a(f"""
    s_sub_u32 s{S_TM1}, s{S_TM1}, s{S_TM0}
    s_lshl_b32 s{S_T0}, s{S_H}, 2
    s_add_u32 s{S_T0}, s{S_T0}, {w}
    s_lshl_b32 s{S_T0}, s{S_T0}, 7
    s_add_u32 s{S_T0}, s{S_T0}, 0x1000
    s_mov_b64 exec, 1
    v_mov_b32 {vr(R_X)}, 0
    v_mov_b32 {vr(R_X+1)}, s{S_TM1}
    buffer_store_dword {vr(R_X+1)}, {vr(R_X)}, {WS}, s{S_T0} offen
    v_mov_b32 {vr(R_X+1)}, s{S_ERR}
    buffer_store_dword {vr(R_X+1)}, {vr(R_X)}, {WS}, s{S_T0} offen offset:4
""")
        for k in range(17):
            a(f'    v_mov_b32 {vr(R_X+1)}, s{(STAMP_ACC+k) if k < 10 else {10: 74, 11: 76, 12: 73, 13: 78, 14: 80, 15: 68, 16: 66}[k]}')
            a(f'    buffer_store_dword {vr(R_X+1)}, {vr(R_X)}, {WS}, s{S_T0} offen offset:{8+4*k}')
        a('    s_mov_b64 exec, -1')
    a('    s_branch L_chain_end')
    for f in ool: f()

class Filt:
    def __init__(self, a, cfg): self.a = a; self.cfg = cfg; self.lines = a.lines
    def __call__(self, text):
        out = []
        for ln in text.split('\n'):
            if self.cfg.get('nopub') and ('sc1' in ln and 'store_dwordx4' in ln): continue
            if self.cfg.get('nokv') and (' lds' in ln and f's{S_KSRC}' in ln): continue
            if self.cfg.get('nokv') and (f's{S_VSRC} offen' in ln): continue
            if self.cfg.get('noreset') and (f's{S_PR0} offen' in ln or f's{S_PR1} offen' in ln):
                continue
            out.append(ln)
        self.a('\n'.join(out))
    def label(self, n): self.a.label(n)

def emit_chain(a, cfg):
    HOP2_BOTH[0] = bool(cfg.get('both'))
    a = Filt(a, cfg)
    a(f"""
    s_load_dwordx2 s[{S_WSP}:{S_WSP+1}], s[0:1], {KA_WS}
    s_load_dwordx2 s[{S_DBG}:{S_DBG+1}], s[0:1], {KA_DBG}
    s_load_dwordx2 s[{SRD_Q}:{SRD_Q+1}], s[0:1], {KA_WQ}
    s_load_dwordx2 s[{SRD_K}:{SRD_K+1}], s[0:1], {KA_WK}
    s_load_dwordx2 s[{SRD_V}:{SRD_V+1}], s[0:1], {KA_WV}
    s_load_dwordx2 s[{SRD_O}:{SRD_O+1}], s[0:1], {KA_WO}
    s_load_dwordx2 s[{SRD_A}:{SRD_A+1}], s[0:1], {KA_MEM0}
    s_waitcnt lgkmcnt(0)
    s_mov_b32 s{SRD_WS}, s{S_WSP}
    s_mov_b32 s{SRD_WS+1}, s{S_WSP+1}
    s_mov_b32 s{SRD_WS+2}, {WS_SIZE}
    s_mov_b32 s{SRD_WS+3}, 0x20000
    s_mov_b32 s{SRD_A+2}, 8192
    s_mov_b32 s{SRD_A+3}, 0x20000
""")
    for S in (SRD_Q, SRD_K, SRD_V, SRD_O):
        a(f'    s_mov_b32 s{S+2}, 0x400000\n    s_mov_b32 s{S+3}, 0x20000')
    a(f'    s_mov_b32 s{S_ERR}, {cfg.get("maxpoll", 20000)}')
    for w in range(1, 4):
        a(f'    s_cmp_eq_u32 s{S_W}, {w}\n    s_cbranch_scc1 L_wave{w}')
    for w in range(4):
        a(f'L_wave{w}:')
        emit_wave(a, cfg, w)
    a('L_chain_end:')
```

```python
from asmlib import *
from layout import *

S_W = 4
SRD_WS, SRD_WO, SRD_W2, SRD_OUT = 8, 12, 16, 20
S_SL, S_SEG, S_NSEG = 5, 6, 7
S_OA, S_HA, S_OAN, S_HAN = 24, 25, 26, 27
S_T0, S_T1, S_T2 = 28, 29, 30
S_STEP, S_END = 31, 32
WS = f's[{SRD_WS}:{SRD_WS+3}]'
V_LIN16, V_L, V_TR, V_DM, V_RW, V_RR, V_GA, V_OUT, V_TMP = 0, 1, 2, 3, 4, 5, 6, 7, 8
ACC_A, ACC_B = 12, 28 + 0
ACC_A, ACC_B = 16, 32
V_BUF = 48
NB = 24
V_W2 = 144
LDS_RED = 0

def wo(hh, jj): return ar((hh * 8 + jj) * 4, 4)
def w2(j): return vr(V_W2 + 4 * j, 4)

def emit_setup(a):
    L = V_L; t0, t1, t2 = 16, 17, 18
    a(f'''
    v_and_b32 {vr(L)}, 63, v0
    v_lshlrev_b32 {vr(V_LIN16)}, 4, {vr(L)}
    v_lshrrev_b32 {vr(t0)}, 2, {vr(L)}
    v_lshlrev_b32 {vr(t0)}, 10, {vr(t0)}
    v_and_b32 {vr(t1)}, 3, {vr(L)}
    v_lshlrev_b32 {vr(t1)}, 4, {vr(t1)}
    v_add_u32 {vr(V_DM)}, {vr(t0)}, {vr(t1)}
    v_lshrrev_b32 {vr(t0)}, 5, {vr(L)}
    v_lshlrev_b32 {vr(t0)}, 8, {vr(t0)}
    v_bfe_u32 {vr(t1)}, {vr(L)}, 2, 2
    v_lshlrev_b32 {vr(t1)}, 6, {vr(t1)}
    v_add_u32 {vr(t0)}, {vr(t0)}, {vr(t1)}
    v_bfe_u32 {vr(t1)}, {vr(L)}, 4, 1
    v_lshlrev_b32 {vr(t1)}, 5, {vr(t1)}
    v_and_b32 {vr(t2)}, 3, {vr(L)}
    v_lshlrev_b32 {vr(t2)}, 3, {vr(t2)}
    v_add3_u32 {vr(t0)}, {vr(t0)}, {vr(t1)}, {vr(t2)}
    s_lshl_b32 s{S_T0}, s{S_W}, 15
    v_add_u32 {vr(V_TR)}, s{S_T0}, {vr(t0)}
    v_and_b32 {vr(t0)}, 31, {vr(L)}
    v_lshlrev_b32 {vr(t1)}, 7, {vr(t0)}
    v_and_b32 {vr(t0)}, 7, {vr(t0)}
    v_lshrrev_b32 {vr(t2)}, 5, {vr(L)}
    v_xor_b32 {vr(t0)}, {vr(t0)}, {vr(t2)}
    v_lshlrev_b32 {vr(t0)}, 4, {vr(t0)}
    v_add_u32 {vr(t0)}, {vr(t0)}, {vr(t1)}
    s_lshl_b32 s{S_T0}, s{S_W}, 13
    v_add_u32 {vr(V_RW)}, s{S_T0}, {vr(t0)}
    v_lshrrev_b32 {vr(t0)}, 3, {vr(L)}
    v_and_b32 {vr(t1)}, 7, {vr(L)}
    v_xor_b32 {vr(t2)}, {vr(t0)}, {vr(t1)}
    v_lshlrev_b32 {vr(t2)}, 4, {vr(t2)}
    v_lshlrev_b32 {vr(t0)}, 7, {vr(t0)}
    v_add_u32 {vr(t2)}, {vr(t2)}, {vr(t0)}
    s_lshl_b32 s{S_T0}, s{S_W}, 10
    v_add_u32 {vr(V_RR)}, s{S_T0}, {vr(t2)}
    v_lshrrev_b32 {vr(t0)}, 3, {vr(L)}
    s_lshl_b32 s{S_T0}, s{S_W}, 3
    v_add_u32 {vr(t0)}, s{S_T0}, {vr(t0)}
    v_lshlrev_b32 {vr(V_GA)}, 2, {vr(t0)}
    v_lshlrev_b32 {vr(t0)}, 10, {vr(t0)}
    v_lshlrev_b32 {vr(t1)}, 3, {vr(t1)}
    v_add_u32 {vr(V_OUT)}, {vr(t0)}, {vr(t1)}
''')

def emit_weights(a):
    def batch(srd, row0_sgpr_expr, nrows, frags):
        a(f'    s_lshl_b32 s{S_T1}, s{S_W}, 15')
        for i in range(nrows // 16):
            a(f'    s_mov_b32 m0, s{S_T1}')
            a(f'    buffer_load_dwordx4 {vr(V_DM)}, s[{srd}:{srd+3}], s{S_T0} offen lds')
            a(f'    s_add_u32 s{S_T0}, s{S_T0}, 16384')
            a(f'    s_add_u32 s{S_T1}, s{S_T1}, 1024')
        a('    s_waitcnt vmcnt(0)')
        for n, (cls, reg, blk) in enumerate(frags):
            for rr in range(2):
                d = (ar if cls == 'a' else vr)(reg + 2 * rr, 2)
                a(f'    ds_read_b64_tr_b16 {d}, {vr(V_TR)} offset:{blk * 1024 + rr * 512}')
            if n % 6 == 5: a('    s_waitcnt lgkmcnt(0)')
        a('    s_waitcnt lgkmcnt(0)')
    a(f'''
    s_lshl_b32 s{S_T0}, s{S_W}, 20
    s_lshl_b32 s{S_T2}, s{S_SL}, 6
    s_add_u32 s{S_T0}, s{S_T0}, s{S_T2}
''')
    for half in range(2):
        frags = [('a', ((half * 4 + hh) * 8 + jj) * 4, hh * 8 + jj) for hh in range(4) for jj in range(8)]
        batch(SRD_WO, None, 512, frags)
    a(f'''
    s_mul_i32 s{S_T0}, s{S_W}, {448 * 1024}
    s_add_u32 s{S_T0}, s{S_T0}, s{S_T2}
''')
    batch(SRD_W2, None, 448, [('v', V_W2 + 4 * j, j) for j in range(28)])

def seg_offsets(a, seg, so, sh):
    a(f'''
    s_lshl_b32 s{so}, s{seg}, 18                 ; seg*32*8192
    s_lshl_b32 s{S_T0}, s{S_W}, 16               ; 8 heads * 8192
    s_add_u32 s{so}, s{so}, s{S_T0}
    s_add_u32 s{so}, s{so}, {WS_O}
    s_mul_i32 s{sh}, s{seg}, {H_SEG}
    s_mul_i32 s{S_T0}, s{S_W}, {28 * 1024}
    s_add_u32 s{sh}, s{sh}, s{S_T0}
    s_add_u32 s{sh}, s{sh}, {WS_H}
''')

NL = 92
def load_i(a, i, nxt, fl):
    buf = V_BUF + 4 * (i % NB)
    if i < 28: base, off = (S_HAN if nxt else S_HA), i * 1024
    else: base, off = (S_OAN if nxt else S_OA), (i - 28) * 1024
    if off >= 4096:
        a(f'    s_add_u32 s{S_T1}, s{base}, {off & ~4095}')
        a(f'    buffer_load_dwordx4 {vr(buf,4)}, {vr(V_LIN16)}, {WS}, s{S_T1} offen offset:{off & 4095} {fl}')
    else:
        a(f'    buffer_load_dwordx4 {vr(buf,4)}, {vr(V_LIN16)}, {WS}, s{base} offen offset:{off} {fl}')

def emit_epilogue(a, stmask=None):
    T = V_TMP
    for ab, A in ((0, ACC_A), (1, ACC_B)):
        for q in range(4):
            a(f'    v_xor_b32 {vr(T)}, {(2 * q) << 4}, {vr(V_RW)}')
            a(f'    ds_write_b128 {vr(T)}, {vr(A + 4*q, 4)} offset:{LDS_RED + ab * 4096}')
    a('    s_waitcnt lgkmcnt(0)')
    a('    s_barrier')
    for ab, A in ((0, ACC_A), (1, ACC_B)):
        for w in range(4):
            a(f'    ds_read_b128 {vr(A + 4*w, 4)}, {vr(V_RR)} offset:{LDS_RED + w * 8192 + ab * 4096}')
    a('    s_waitcnt lgkmcnt(0)')
    a('    s_barrier')
    for A in (ACC_A, ACC_B):
        for i in (0, 2):
            a(f'    v_pk_add_f32 {vr(A+i,2)}, {vr(A+i,2)}, {vr(A+4+i,2)}')
            a(f'    v_pk_add_f32 {vr(A+8+i,2)}, {vr(A+8+i,2)}, {vr(A+12+i,2)}')
        for i in (0, 2):
            a(f'    v_pk_add_f32 {vr(A+i,2)}, {vr(A+i,2)}, {vr(A+8+i,2)}')
    G, OMG = 9, 10
    def rnd(r):
        a(f'    v_cvt_pk_bf16_f32 {vr(T)}, {vr(r)}, {vr(r+1)}')
        a(f'    v_lshlrev_b32 {vr(r)}, 16, {vr(T)}')
        a(f'    v_and_b32 {vr(r+1)}, 0xffff0000, {vr(T)}')
    a(f'    v_sub_f32 {vr(OMG)}, 1.0, {vr(G)}')
    a(f'    v_cvt_pk_bf16_f32 {vr(OMG)}, {vr(OMG)}, {vr(OMG)}')
    a(f'    v_and_b32 {vr(OMG)}, 0xffff0000, {vr(OMG)}')
    for i in (0, 2):
        rnd(ACC_A + i); rnd(ACC_B + i)
    for i in range(4):
        a(f'    v_mul_f32 {vr(ACC_A+i)}, {vr(ACC_A+i)}, {vr(G)}')
        a(f'    v_mul_f32 {vr(ACC_B+i)}, {vr(ACC_B+i)}, {vr(OMG)}')
    for i in (0, 2):
        rnd(ACC_A + i); rnd(ACC_B + i)
    for i in (0, 2):
        a(f'    v_pk_add_f32 {vr(ACC_A+i,2)}, {vr(ACC_A+i,2)}, {vr(ACC_B+i,2)}')
    a(f'    v_cvt_pk_bf16_f32 {vr(ACC_A+4)}, {vr(ACC_A)}, {vr(ACC_A+1)}')
    a(f'    v_cvt_pk_bf16_f32 {vr(ACC_A+5)}, {vr(ACC_A+2)}, {vr(ACC_A+3)}')
    a(f'''
    s_lshl_b32 s{S_T0}, s{S_SEG}, 15            ; seg*32*1024
    s_lshl_b32 s{S_T1}, s{S_SL}, 6
    s_add_u32 s{S_T0}, s{S_T0}, s{S_T1}
''')
    if stmask:
        a(f'    s_mov_b64 exec, s[{stmask}]')
        a('    s_cbranch_execz L_fin_nost')
    a(f'    buffer_store_dwordx2 {vr(ACC_A+4,2)}, {vr(V_OUT)}, s[{SRD_OUT}:{SRD_OUT+3}], s{S_T0} offen')
    if stmask:
        a('L_fin_nost:')
        a('    s_mov_b64 exec, -1')

def emit_seg(a, fl=''):
    a(f'''
    s_lshl_b32 s{S_T0}, s{S_SEG}, 7
    s_add_u32 s{S_T0}, s{S_T0}, {WS_G}
    buffer_load_dword v9, {vr(V_GA)}, {WS}, s{S_T0} offen
''')
    for i in range(NL):
        extra = 2 if i < NB else 0
        a(f'    s_waitcnt vmcnt({NB - 1 + extra})')
        buf = vr(V_BUF + 4 * (i % NB), 4)
        if i < 28:
            a(f'    v_mfma_f32_32x32x16_bf16 {vr(ACC_B,16)}, {w2(i)}, {buf}, {"0" if i == 0 else vr(ACC_B,16)}')
        else:
            k = i - 28
            a(f'    v_mfma_f32_32x32x16_bf16 {vr(ACC_A,16)}, {wo(k // 8, k % 8)}, {buf}, {"0" if k == 0 else vr(ACC_A,16)}')
        j = i + NB
        if j < NL: load_i(a, j, False, fl)
        else: load_i(a, j - NL, True, fl)
    emit_epilogue(a)

def emit_fin_kernel(a, cfg):
    a(f"""
    s_load_dwordx2 s[{SRD_WS}:{SRD_WS+1}], s[0:1], {KA_WS}
    s_load_dwordx2 s[{SRD_WO}:{SRD_WO+1}], s[0:1], {KA_WO}
    s_load_dwordx2 s[{SRD_W2}:{SRD_W2+1}], s[0:1], {KA_W2}
    s_load_dwordx2 s[{SRD_OUT}:{SRD_OUT+1}], s[0:1], {KA_OUT}
    v_lshrrev_b32 v1, 6, v0
    s_nop 1
    v_readfirstlane_b32 s{S_W}, v1
    s_waitcnt lgkmcnt(0)
    s_mov_b32 s{SRD_WS+2}, {WS_SIZE}
    s_mov_b32 s{SRD_WS+3}, 0x20000
    s_mov_b32 s{SRD_WO+2}, 0x400000
    s_mov_b32 s{SRD_WO+3}, 0x20000
    s_mov_b32 s{SRD_W2+2}, {1792 * 1024}
    s_mov_b32 s{SRD_W2+3}, 0x20000
    s_mov_b32 s{SRD_OUT+2}, {2048 * 1024}
    s_mov_b32 s{SRD_OUT+3}, 0x20000
    s_lshr_b32 s{S_SL}, s2, 3
    s_and_b32 s{S_SL}, s{S_SL}, 15
    s_and_b32 s{S_SEG}, s2, 7
    s_lshl_b32 s{S_SEG}, s{S_SEG}, 1
    s_lshr_b32 s{S_T0}, s2, 7
    s_add_u32 s{S_SEG}, s{S_SEG}, s{S_T0}
""")
    emit_setup(a)
    emit_weights(a)
    a('    s_barrier')
    seg_offsets(a, S_SEG, S_OA, S_HA)
    for i in range(NB): load_i(a, i, False, '')
    a(f'    buffer_load_dword v10, {vr(V_LIN16)}, {WS}, 0 offen')
    a('L_fin_loop:')
    a(f"""
    s_add_u32 s{S_NSEG}, s{S_SEG}, 16
    s_cmp_ge_u32 s{S_NSEG}, 64
    s_cselect_b32 s{S_NSEG}, s{S_SEG}, s{S_NSEG}
""")
    seg_offsets(a, S_NSEG, S_OAN, S_HAN)
    emit_seg(a)
    a(f"""
    s_mov_b32 s{S_OA}, s{S_OAN}
    s_mov_b32 s{S_HA}, s{S_HAN}
    s_add_u32 s{S_SEG}, s{S_SEG}, 16
    s_cmp_lt_u32 s{S_SEG}, 64
    s_cbranch_scc1 L_fin_loop
    s_waitcnt vmcnt(0)
""")


S_DBG2, S_CNT, S_ERR, S_WID = 34, 36, 37, 90
def poll(a, lab, check, sleep=16):
    a(f"""
    s_cmp_lg_u32 s{S_W}, 0
    s_cbranch_scc1 {lab}_d
    v_mov_b32 v11, s{S_T1}
    s_mov_b32 s{S_CNT}, 0
{lab}:
    buffer_load_dword v10, v11, {WS}, 0 offen sc1
    s_waitcnt vmcnt(0)
    v_readfirstlane_b32 s{S_T0}, v10
{check}
    s_cbranch_scc1 {lab}_d
    s_sleep {sleep}
    s_add_u32 s{S_CNT}, s{S_CNT}, 1
    s_cmp_lt_u32 s{S_CNT}, s{S_ERR}
    s_cbranch_scc1 {lab}
    s_mov_b32 s{S_ERR}, 0
{lab}_d:
    s_barrier
""")

def emit_fin_worker(a, cfg):
    a(f"""
    s_load_dwordx2 s[{SRD_WS}:{SRD_WS+1}], s[0:1], {KA_WS}
    s_load_dwordx2 s[{SRD_WO}:{SRD_WO+1}], s[0:1], {KA_WO}
    s_load_dwordx2 s[{SRD_W2}:{SRD_W2+1}], s[0:1], {KA_W2}
    s_load_dwordx2 s[{SRD_OUT}:{SRD_OUT+1}], s[0:1], {KA_OUT}
    s_load_dwordx2 s[{S_DBG2}:{S_DBG2+1}], s[0:1], {KA_DBG}
    s_waitcnt lgkmcnt(0)
    s_mov_b32 s{SRD_WS+2}, {WS_SIZE}
    s_mov_b32 s{SRD_WS+3}, 0x20000
    s_mov_b32 s{SRD_WO+2}, 0x400000
    s_mov_b32 s{SRD_WO+3}, 0x20000
    s_mov_b32 s{SRD_W2+2}, {1792 * 1024}
    s_mov_b32 s{SRD_W2+3}, 0x20000
    s_mov_b32 s{SRD_OUT+2}, {2048 * 1024}
    s_mov_b32 s{SRD_OUT+3}, 0x20000
    s_mov_b32 s{S_ERR}, {cfg.get('maxpoll_w', 400000)}
    s_sub_u32 s{S_T0}, s{S_WID}, {cfg.get('natt', 32)}
    s_and_b32 s{S_SL}, s{S_T0}, 15
    s_lshr_b32 s{S_SEG}, s{S_T0}, 4
""")
    HS = cfg.get('halfsplit')
    if HS:
        a(f"""
    s_and_b32 s38, s{S_SEG}, 1
    s_lshr_b32 s{S_SEG}, s{S_SEG}, 1
    s_mov_b32 s40, 0x0000ffff
    s_cmp_eq_u32 s38, 1
    s_cselect_b32 s40, 0xffff0000, s40
    s_mov_b32 s41, s40
    s_lshr_b32 s42, s{S_W}, 1
    s_cmp_eq_u32 s42, s38
    s_cselect_b32 s42, -1, 0
    s_mov_b32 s43, s42
""")
    emit_setup(a)
    emit_weights(a)
    a('    s_barrier')
    a('L_finw_loop:')
    seg_offsets(a, S_SEG, S_OA, S_HA)
    a(f"""
    s_lshr_b32 s{S_T1}, s{S_SEG}, 3
    s_lshl_b32 s{S_T1}, s{S_T1}, 7
    s_add_u32 s{S_T1}, s{S_T1}, {FL_G1}
""")
    poll(a, 'L_finw_p1', f'    s_lshr_b32 s{S_T0}, s{S_T0}, 16\n    s_cmp_eq_u32 s{S_T0}, {28 + (1 << 8)}')
    a(f"""
    s_lshl_b32 s{S_T0}, s{S_SEG}, 7
    s_add_u32 s{S_T0}, s{S_T0}, {WS_G}
    buffer_load_dword v9, {vr(V_GA)}, {WS}, s{S_T0} offen
""")
    def LD(i):
        if HS: a('    s_mov_b64 exec, s[40:41]')
        load_i(a, i, False, '')
        if HS: a('    s_mov_b64 exec, -1')
    for i in range(min(NB, 28)): LD(i)
    for i in range(28):
        issued = min(28, NB + i)
        a(f'    s_waitcnt vmcnt({issued - 1 - i})')
        a(f'    v_mfma_f32_32x32x16_bf16 {vr(ACC_B,16)}, {w2(i)}, {vr(V_BUF + 4 * (i % NB), 4)}, {"0" if i == 0 else vr(ACC_B,16)}')
        if i + NB < 28: LD(i + NB)
    a(f"""
    s_lshl_b32 s{S_T1}, s{S_SEG}, 7
    s_add_u32 s{S_T1}, s{S_T1}, {FL_O}
""")
    poll(a, 'L_finw_p2', f'    s_cmp_eq_u32 s{S_T0}, 32', sleep=6)
    def ldo(k): LD(28 + k)
    for k in range(NB): ldo(k)
    for k in range(64):
        issued = min(64, NB + k)
        a(f'    s_waitcnt vmcnt({issued - 1 - k})')
        a(f'    v_mfma_f32_32x32x16_bf16 {vr(ACC_A,16)}, {wo(k // 8, k % 8)}, {vr(V_BUF + 4 * ((28 + k) % NB), 4)}, {"0" if k == 0 else vr(ACC_A,16)}')
        if k + NB < 64: ldo(k + NB)
    emit_epilogue(a, '42:43' if HS else None)
    a(f"""
    s_add_u32 s{S_SEG}, s{S_SEG}, {cfg.get('nsets', (224 - cfg.get('natt', 32)) // 16) // (2 if HS else 1)}
    s_cmp_lt_u32 s{S_SEG}, 64
    s_cbranch_scc1 L_finw_loop
    s_waitcnt vmcnt(0)
""")
```
